```python
import torch

def _softmax(x, axis=-1):
    return torch.softmax(x, dim=axis)
def _gelu(x):
    return torch.nn.functional.gelu(x, approximate="tanh")
def _silu(x):
    return torch.nn.functional.silu(x)
def _sigmoid(x):
    return torch.sigmoid(x)
def _layernorm(x, axis=-1, eps=1e-5):
    m = x.mean(dim=axis, keepdim=True)
    v = x.var(dim=axis, keepdim=True, unbiased=False)
    return (x - m) / torch.sqrt(v + eps)
def _scatter_add(tgt, idx, src, axis=0):
    return tgt.clone().index_add_(axis, idx, src)
def _segment_sum(src, seg, n):
    out = torch.zeros((n,) + src.shape[1:], dtype=src.dtype)
    return out.index_add_(0, seg, src)
def _pad(x, pw):
    flat = tuple(v for pair in reversed(pw) for v in pair)
    return torch.nn.functional.pad(x, flat)

kernel_name = 'standalone__gqa_block_cached__near_ridge'

def setup_inputs():

    _w = (lambda a: (lambda t: t.to(torch.bfloat16) if t.is_floating_point() else t)(torch.as_tensor(a)))
    B, Sq, D = 8, 80, 512
    Hq, Hkv, Sk, Dh = 32, 8, 2048, 128
    assert Hq % Hkv == 0, (Hq, Hkv)
    return {
        "x": _w((lambda *s: torch.randn(*s, dtype=torch.bfloat16) * 0.8)(B, Sq, D)),
        "k_cache": _w((lambda *s: torch.randn(*s, dtype=torch.bfloat16) * 0.8)(B, Hkv, Sk, Dh)),
        "v_cache": _w((lambda *s: torch.randn(*s, dtype=torch.bfloat16) * 0.05)(B, Hkv, Sk, Dh)),
        "wq": _w((lambda *s: torch.randn(*s, dtype=torch.bfloat16) * 0.8)(D, Hq * Dh) * (D ** -0.5)),
        "wo": _w((lambda *s: torch.randn(*s, dtype=torch.bfloat16) * 0.05)(Hq * Dh, D) * ((Hq * Dh) ** -0.5)),
    }

def reference(x, k_cache, v_cache, wq, wo):
    B, Sq, D = x.shape
    Hq, Dh = 32, 128
    Hkv = k_cache.shape[1]
    rep = Hq // Hkv
    q = (lambda x, *d: x.permute(*d))((x @ wq).reshape(B, Sq, Hq, Dh), 0, 2, 1, 3)
    k = (lambda x, n, axis: torch.repeat_interleave(x, n, dim=axis))(k_cache, rep, axis=1)
    v = (lambda x, n, axis: torch.repeat_interleave(x, n, dim=axis))(v_cache, rep, axis=1)
    scores = torch.einsum("bhqd,bhkd->bhqk", q, k) * (Dh ** -0.5)
    p = _softmax(scores, axis=-1)
    o = torch.einsum("bhqk,bhkd->bhqd", p, v)
    return (lambda x, *d: x.permute(*d))(o, 0, 2, 1, 3).reshape(B, Sq, Hq * Dh) @ wo
```

```python
KNAME = "standalone__gqa_block_cached__near_ridge_kernel"

def header(grid, block=256, lds=0, name=KNAME):
    return f"""; @launch grid=({grid},1,1) block=({block},1,1) lds={lds}
.amdgcn_target "amdgcn-amd-amdhsa--gfx950"
.text
.globl {name}
.p2align 8
.type {name},@function
{name}:
"""

def footer(vgpr=512, accum=256, sgpr=102, name=KNAME):
    return f"""
.section .rodata,"a"
.p2align 6
.amdhsa_kernel {name}
  .amdhsa_next_free_vgpr {vgpr}
  .amdhsa_next_free_sgpr {sgpr}
  .amdhsa_accum_offset {accum}
  .amdhsa_group_segment_fixed_size 0
  .amdhsa_kernarg_size 64
  .amdhsa_user_sgpr_count 2
  .amdhsa_user_sgpr_kernarg_segment_ptr 1
  .amdhsa_system_sgpr_workgroup_id_x 1
.end_amdhsa_kernel
"""

def srd(dst, base, nbytes):
    return [f"s_mov_b32 s{dst}, s{base}", f"s_and_b32 s{dst+1}, s{base+1}, 0xffff",
            f"s_mov_b32 s{dst+2}, {hex(nbytes)}", f"s_mov_b32 s{dst+3}, 0x20000"]

def vr(i, n=1):
    return f"v{i}" if n == 1 else f"v[{i}:{i+n-1}]"
def ar(i, n=1):
    return f"a{i}" if n == 1 else f"a[{i}:{i+n-1}]"
```

```python
from sched import *

V_KA = 8
V_VA = 12
V_KD = 20
V_VD = 24
V_NEGM = 28
V_S = 48
V_P = 72
V_K = 84
V_V = 116
V_Q = 148
A_O = 0
A_L = 160
A_ONE = 180
S_KSRD = 12; S_VSRD = 16
S_LDSW = 24
S_KOFF = 25; S_VOFF = 26
NT = 16
KSLOT = [0, 8192]; VSLOT = [16384, 24576]
DMAFLAGS = [""]

def Sreg(G, s, r=None):
    b = V_S + (G % 3)*8 + s*4
    return R("v", b, 4) if r is None else f"v{b+r}"
def Preg(G, i=None):
    b = V_P + (G % 3)*4
    return R("v", b, 4) if i is None else f"v{b+i}"
def Kf(s, j): return R("v", V_K + (s*4+j)*4, 4)
def Vf(dt, h=None):
    b = V_V + dt*4
    return R("v", b, 4) if h is None else R("v", b+2*h, 2)
def Qf(n, j): return R("v", V_Q + (n*4+j)*4, 4)
def Of(dt, n): return R("a", A_O + (dt*5+n)*4, 4)
def Lf(n): return R("a", A_L + n*4, 4)

def qk_mfmas(G):
    n = G % 5
    L = []
    for s in range(2):
        for j in range(4):
            c = R("v", V_NEGM + n*4, 4) if j == 0 else Sreg(G, s)
            L.append(mfma16(Sreg(G, s), Kf(s, j), Qf(n, j), c, tag=("qk", G, s, j)))
    return L
def pv_mfmas(G):
    n = G % 5
    L = []
    for dt in range(8):
        L.append(mfma16(Of(dt, n), Vf(dt), Preg(G), Of(dt, n), tag=("pv", G, dt)))
    L.append(mfma16(Lf(n), R("a", A_ONE, 4), Preg(G), Lf(n), tag=("l", G)))
    return L
def softmax_fillers(G):
    e = [vexp(Sreg(G, s, r), Sreg(G, s, r)) for s in range(2) for r in range(4)]
    c = [vcvtpk(Preg(G, i), Sreg(G, i//2, (i%2)*2), Sreg(G, i//2, (i%2)*2+1)) for i in range(4)]
    return [e[0], e[1], e[2], c[0], e[3], e[4], c[1], e[5], e[6], c[2], e[7], c[3]]
def k_reads(t):
    sl = KSLOT[t % 2]
    return [ds_read128(Kf(s, j), f"v{V_KA+j}", sl + s*4096) for s in range(2) for j in range(4)]
def v_reads(t):
    sl = VSLOT[t % 2]
    return [ds_read_tr(Vf(dt, h), f"v{V_VA+dt}", sl + h*4096) for dt in range(8) for h in range(2)]
def k_dma(t):
    sl = KSLOT[t % 2]; out = []
    for half in range(2):
        g = [salu(f"s_add_u32 m0, s{S_LDSW}, {sl + half*4096}")]
        for i in range(4):
            g.append(dma(f"v{V_KD+i}", f"s[{S_KSRD}:{S_KSRD+3}]", f"s{S_KOFF+half*2}", i*1024, ("K", t), DMAFLAGS[0]))
        out.append(g)
    return out
def v_dma(t):
    sl = VSLOT[t % 2]; out = []
    for half in range(2):
        g = [salu(f"s_add_u32 m0, s{S_LDSW}, {sl + half*4096}")]
        for i in range(4):
            g.append(dma(f"v{V_VD+(i&1)}", f"s[{S_VSRD}:{S_VSRD+3}]", f"s{S_VOFF+half*2}", i*1024, ("V", t), DMAFLAGS[0]))
        out.append(g)
    return out
def upk(): return [salu(f"s_add_u32 s{S_KOFF}, s{S_KOFF}, 8192"), salu(f"s_add_u32 s{S_KOFF+2}, s{S_KOFF+2}, 8192")]
def upv(): return [salu(f"s_add_u32 s{S_VOFF}, s{S_VOFF}, 8192"), salu(f"s_add_u32 s{S_VOFF+2}, s{S_VOFF+2}, 8192")]

def initial_dmas():
    S = [salu(f"s_mov_b32 s{S_KOFF}, 0"), salu(f"s_mov_b32 s{S_KOFF+2}, 4096"),
         salu(f"s_mov_b32 s{S_VOFF}, 0"), salu(f"s_mov_b32 s{S_VOFF+2}, 4096")]
    for t in range(2):
        g = k_dma(t); S += g[0] + g[1] + upk()
        g = v_dma(t); S += g[0] + g[1] + upv()
    return S
def initial_reads():
    kr = k_reads(0); kr[0].need_vm = [("K", 0)]
    vr_ = v_reads(0); vr_[0].need_vm = [("V", 0)]
    return kr, vr_

class F:
    def __init__(s, ins, lo, hi): s.ins = ins; s.lo = lo; s.hi = hi

def place(mf, chains, cap=8):
    stream = []
    ptr = [0]*len(chains)
    for m, ins in enumerate(mf):
        stream.append(ins)
        used = 0
        while True:
            cand = []
            for c, ch in enumerate(chains):
                if ptr[c] < len(ch) and ch[ptr[c]].lo <= m:
                    cand.append((ch[ptr[c]].hi, c))
            if not cand: break
            cand.sort()
            placed = False
            for hi, c in cand:
                f = chains[c][ptr[c]]
                if used + f.ins.cost <= cap or hi <= m:
                    stream.append(f.ins); used += f.ins.cost; ptr[c] += 1; placed = True
                    break
            if not placed: break
    for c, ch in enumerate(chains):
        assert ptr[c] == len(ch), (c, ptr[c], len(ch))
    return stream

def build(opt):
    nt = opt.get("nt", NT)
    nG = 5*nt
    mf = []; qk_idx = {}; pv_idx = {}
    for X in range(nG + 2):
        if X < nG:
            qk_idx[X] = len(mf); mf += qk_mfmas(X)
        if 0 <= X-2 < nG:
            pv_idx[X-2] = len(mf); mf += pv_mfmas(X-2)
    chains = []
    allf = []
    for G in range(nG):
        fl = softmax_fillers(G)
        lo0 = qk_idx[G] + 3 + 5; lo1 = qk_idx[G] + 7 + 5
        hi = pv_idx[G] - 2
        for k, ins in enumerate(fl):
            lo = lo1 if k >= 5 else lo0
            allf.append(F(ins, min(lo, hi), hi))
    chains.append(allf)
    kr = []; vr_ = []
    for idx, ins in enumerate(v_reads(0)):
        if idx == 0: ins.need_vm = [("V", 0)]
        vr_.append(F(ins, 2 + idx//2, pv_idx[0] - 4))
    for t in range(1, nt):
        G = 5*t - 1
        for idx, ins in enumerate(k_reads(t)):
            if idx == 0: ins.need_vm = [("K", t)]
            kr.append(F(ins, qk_idx[G] + idx, qk_idx[G+1] + idx - 4))
        for idx, ins in enumerate(v_reads(t)):
            dt = idx // 2
            if idx == 0: ins.need_vm = [("V", t)]
            vr_.append(F(ins, pv_idx[G] + dt, pv_idx[G+1] + dt - 4))
    chains.append(kr); chains.append(vr_)
    dm = []
    for t in range(0, nt):
        if t + 2 < nt:
            g = k_dma(t+2)
            lo = qk_idx[5*t] + 8
            for ins in g[0] + g[1] + upk(): dm.append(F(ins, lo, qk_idx[5*t+2] + 4))
            g = v_dma(t+2)
            lo = pv_idx[5*t] + 9
            for ins in g[0] + g[1] + upv(): dm.append(F(ins, lo, pv_idx[5*t+2] + 4))
    chains.append(dm)
    return place(mf, chains, opt.get("cap", 8))
```

```python
import re

def regs(spec):
    m = re.fullmatch(r"([vas])\[(\d+):(\d+)\]", spec)
    if m: return [f"{m.group(1)}{i}" for i in range(int(m.group(2)), int(m.group(3))+1)]
    if re.fullmatch(r"[vas]\d+", spec): return [spec]
    if spec == "vcc": return ["vcc"]
    if spec == "m0": return ["m0"]
    if spec == "exec": return ["exec"]
    return []

def R(f, i, n=1):
    return f"{f}{i}" if n == 1 else f"{f}[{i}:{i+n-1}]"

TRANS = ("v_exp_f32", "v_log_f32", "v_rcp_f32", "v_rsq_f32", "v_sqrt_f32", "v_sin_f32", "v_cos_f32")

class I:
    def __init__(s, text, kind, rd=(), wr=(), cost=4, tag=None, srcc=(), need_vm=None, vm_tag=None):
        s.text = text; s.kind = kind
        s.rd = [r for x in rd for r in regs(x)]
        s.wr = [r for x in wr for r in regs(x)]
        s.srcc = [r for x in srcc for r in regs(x)]
        s.cost = cost; s.tag = tag
        s.need_vm = need_vm
        s.vm_tag = vm_tag
    def __repr__(s): return s.text

def split_ops(rest):
    ops = []; depth = 0; cur = ""
    for ch in rest:
        if ch == "[": depth += 1
        if ch == "]": depth -= 1
        if ch == "," and depth == 0:
            ops.append(cur.strip()); cur = ""
        else: cur += ch
    if cur.strip(): ops.append(cur.strip())
    return ops

def P(text, tag=None, need_vm=None, vm_tag=None):
    text = text.strip()
    if text.endswith(":"): return I(text, "label", cost=0)
    if text.startswith(";"): return I(text, "comment", cost=0)
    parts = text.split(None, 1)
    mn = parts[0]; rest = parts[1] if len(parts) > 1 else ""
    ops = split_ops(rest)
    first = lambda o: o.split()[0] if o else ""
    ops1 = [first(o) for o in ops]
    kw = dict(tag=tag, need_vm=need_vm, vm_tag=vm_tag)
    if mn.startswith("v_mfma"):
        d, a, b, c = ops1[:4]
        cost = 8
        return I(text, "mfma", rd=[a, b] + ([c] if regs(c) else []), wr=[d], cost=cost, srcc=([c] if regs(c) else []), **kw)
    if mn.startswith("v_cmp"):
        return I(text, "valu", rd=ops1[1:], wr=[ops1[0]], **kw)
    if mn.startswith("v_permlane"):
        return I(text, "valu", rd=ops1[:2], wr=ops1[:2], **kw)
    if mn.startswith("v_fmac") or mn.startswith("v_dot2c"):
        return I(text, "valu", rd=ops1, wr=[ops1[0]], **kw)
    if mn.startswith("v_cndmask") and len(ops1) == 4:
        return I(text, "valu", rd=ops1[1:], wr=[ops1[0]], **kw)
    if mn.startswith("v_"):
        kind = "trans" if mn in TRANS else "valu"
        return I(text, kind, rd=ops1[1:], wr=[ops1[0]], cost=8 if kind == "trans" else 4, **kw)
    if mn.startswith("ds_read"):
        return I(text, "ds", rd=[ops1[1]], wr=[ops1[0]], **kw)
    if mn.startswith("ds_write") or mn.startswith("ds_add"):
        return I(text, "dsw", rd=ops1, **kw)
    if mn.startswith("buffer_load") or mn.startswith("global_load"):
        if re.search(r"\blds\b", rest):
            return I(text, "dma", rd=[ops1[0]], **kw)
        return I(text, "vmem", rd=[ops1[1]], wr=[ops1[0]], **kw)
    if mn.startswith("buffer_atomic") or mn.startswith("global_atomic"):
        ret = " sc0" in text
        return I(text, "vmem", rd=ops1[:3], wr=([ops1[0]] if ret else []), tag=tag, need_vm=need_vm, vm_tag=vm_tag or "atomic")
    if mn.startswith("buffer_store") or mn.startswith("global_store"):
        return I(text, "vmem", rd=ops1[:2], tag=tag, need_vm=need_vm, vm_tag=vm_tag or "store")
    if mn.startswith("buffer_wbl2") or mn.startswith("buffer_inv"):
        return I(text, "vmem", tag=tag, vm_tag="cache")
    if mn == "s_waitcnt": return I(text, "wait", **kw)
    if mn == "s_nop": return I(text, "nop", cost=4*(int(ops1[0])+1), **kw)
    if mn == "s_barrier": return I(text, "barrier", **kw)
    if mn.startswith("s_cbranch") or mn == "s_branch" or mn == "s_endpgm": return I(text, "branch", **kw)
    if mn.startswith("s_cmp") or mn.startswith("s_bitcmp"): return I(text, "salu", rd=ops1, **kw)
    if mn.startswith("s_"):
        return I(text, "salu", rd=ops1[1:], wr=[ops1[0]] if ops1 else [], **kw)
    raise ValueError(text)

def PL(lines):
    return [P(l) if isinstance(l, str) else l for l in lines]

def mfma16(d, a, b, c, tag=None): return P(f"v_mfma_f32_16x16x32_bf16 {d}, {a}, {b}, {c}", tag=tag)
def vexp(d, s): return P(f"v_exp_f32 {d}, {s}")
def vcvtpk(d, a, b): return P(f"v_cvt_pk_bf16_f32 {d}, {a}, {b}")
def salu(text): return P(text)
def ds_read128(d, addr, off): return P(f"ds_read_b128 {d}, {addr} offset:{off}")
def ds_read_tr(d, addr, off): return P(f"ds_read_b64_tr_b16 {d}, {addr} offset:{off}")
def dma(voff, srd, soff, off, tag, flags=""):
    return P(f"buffer_load_dwordx4 {voff}, {srd}, {soff} offen offset:{off} {flags + ' ' if flags else ''}lds", vm_tag=tag)

def insert_waits(stream, vm_outstanding=None, lds_outstanding=None):
    out = []
    lds_q = list(lds_outstanding or [])
    vm_q = list(vm_outstanding or [])
    for ins in stream:
        if ins.kind == "wait":
            m = re.search(r"vmcnt\((\d+)\)", ins.text)
            if m:
                n = int(m.group(1)); vm_q = vm_q[len(vm_q)-n:] if n > 0 and len(vm_q) > n else (vm_q if n > 0 else [])
            m = re.search(r"lgkmcnt\((\d+)\)", ins.text)
            if m:
                n = int(m.group(1)); lds_q = lds_q[len(lds_q)-n:] if n > 0 and len(lds_q) > n else (lds_q if n > 0 else [])
            out.append(ins); continue
        need_l = None
        touched = set(ins.rd) | set(ins.wr)
        for idx, w in enumerate(lds_q):
            if w & touched: need_l = idx
        need_v = None
        if ins.need_vm:
            for idx, t in enumerate(vm_q):
                if t in ins.need_vm: need_v = idx
        for idx, t in enumerate(vm_q):
            if isinstance(t, tuple) and t[0] == "reg" and (t[1] & touched):
                need_v = idx if need_v is None else max(need_v, idx)
        parts = []
        if need_v is not None:
            n = len(vm_q) - 1 - need_v
            assert n <= 63, n
            parts.append(f"vmcnt({n})"); vm_q = vm_q[need_v+1:]
        if need_l is not None:
            n = len(lds_q) - 1 - need_l
            n = min(n, 15)
            parts.append(f"lgkmcnt({n})"); lds_q = lds_q[len(lds_q)-n:] if n > 0 else []
        if parts:
            out.append(I("s_waitcnt " + " ".join(parts), "wait", cost=4))
        out.append(ins)
        if ins.kind == "ds": lds_q.append(set(ins.wr))
        elif ins.kind == "dsw": lds_q.append(set())
        elif ins.kind == "dma": vm_q.append(ins.vm_tag)
        elif ins.kind == "vmem": vm_q.append(("reg", frozenset(ins.wr)) if ins.wr else ins.vm_tag)
        assert len(vm_q) <= 63, "too many vmem ops outstanding"
    return out, vm_q, lds_q

def nop_states(p):
    if p.kind == "nop": return int(p.text.split()[1]) + 1
    if p.kind in ("label", "comment"): return 0
    return 1

def isv(r): return r[0] in "va" and r != "vcc"
def iss(r): return (r[0] == "s") or r == "vcc"

def need_states(ins, hist):
    extra = 0
    rd = set(ins.rd); wr = set(ins.wr)
    dist = 0
    for p in reversed(hist):
        req = 0
        pw = set(p.wr)
        if p.kind == "mfma":
            if ins.kind == "mfma":
                cset = set(ins.srcc)
                absrc = set(ins.rd[:len(ins.rd)-len(ins.srcc)])
                if pw & absrc: req = max(req, 8)
                if pw & cset:
                    req = max(req, 0 if cset == pw else 6)
                if (pw & wr) and not (cset == pw): req = max(req, 8)
            elif ins.kind in ("valu", "trans", "ds", "dsw", "dma", "vmem"):
                if pw & (rd | wr): req = max(req, 8)
            if ins.kind in ("valu", "trans") and (set(p.srcc) & wr): req = max(req, 3)
        elif p.kind in ("valu", "trans"):
            pv = {r for r in pw if isv(r)}; ps = {r for r in pw if iss(r)}
            if ins.kind == "mfma" and (pv & rd): req = max(req, 2)
            if p.kind == "trans" and ins.kind == "valu" and (pv & rd): req = max(req, 1)
            if "permlane" in ins.text and (pv & (rd | wr)): req = max(req, 2)
            if ("dpp" in ins.text or "row_" in ins.text) and (pv & rd): req = max(req, 2)
            if ("readlane" in ins.text or "readfirstlane" in ins.text) and (pv & rd): req = max(req, 1)
            if ps:
                if ins.kind in ("valu", "trans") and (ps & rd): req = max(req, 2)
                if ins.kind in ("vmem", "dma"):
                    allr = set(r for o in split_ops(ins.text.split(None, 1)[1]) for r in regs(o.split()[0]))
                    if ps & allr: req = max(req, 5)
                if ins.kind in ("salu", "branch") and ((ps & rd) or ("vcc" in ps and "vcc" in ins.text)): req = max(req, 4)
            if "exec" in pw and ins.kind == "mfma": req = max(req, 4)
        elif p.kind == "salu":
            if "m0" in pw and ins.kind == "dma": req = max(req, 1)
            if "exec" in pw and ins.kind in ("valu", "trans", "mfma"): req = max(req, 1)
        elif p.kind == "vmem" and ("store_dwordx4" in p.text or "store_dwordx3" in p.text):
            if set(p.rd) & wr: req = max(req, 2)
        if req > dist: extra = max(extra, req - dist)
        dist += nop_states(p)
        if dist > 20: break
    return extra

def check_hazards(stream, fix=True):
    out = []; nfix = 0; hist = []
    for ins in stream:
        e = need_states(ins, hist)
        if e > 0:
            nfix += 1
            n = I(f"s_nop {e-1}", "nop", cost=4*e)
            out.append(n); hist.append(n)
        out.append(ins); hist.append(ins)
        if len(hist) > 48: hist = hist[-48:]
    return out, nfix

def finalize(stream, vm=None):
    stream = PL(stream)
    stream, vmq, ldsq = insert_waits(stream, vm)
    stream, nfix = check_hazards(stream)
    return stream, nfix

def emit(stream):
    return "\n".join(("    " + i.text) if i.kind != "label" else i.text for i in stream)
```

```python
import sys
from asmlib import *
from sched import *
import mainloop as ml
from mainloop import *

K1 = "attn_kernel"; K2 = "oproj_kernel"
CSCALE = 0x3e0293ee
import struct, math
CSCALE = struct.unpack("<I", struct.pack("<f", math.log2(math.e)/math.sqrt(128.0)))[0]

CB = [0, 53248, 106496]
XOFF = 0; WOFF = 20480
QBUF = 131072
V_QD = 84
V_QA = [148, 176]
V_QB = [156, 184]
V_WD = 228; V_XD = 232; V_XD4 = 236; V_WA = 237; V_XA = 239
S_X = 32; S_WQ = 36; S_WS = 40
S_FB = 46

def stamp(idx, on):
    if not on: return []
    return [f"s_memtime s[{70+2*idx}:{71+2*idx}]"]

def k1_setup(opt):
    L = []
    L += ["s_cmp_ge_u32 s2, 256", "s_cbranch_scc1 L_k1_end"]
    L += ["s_load_dwordx8 s[4:11], s[0:1], 0", "s_load_dwordx2 s[44:45], s[0:1], 56"]
    if opt.get("stamps"): L += ["s_memrealtime s[66:67]"]
    L += ["v_lshrrev_b32 v1, 6, v0", "v_and_b32 v0, 63, v0", "v_readfirstlane_b32 s20, v1"]
    L += ["s_and_b32 s23, s2, 7", "s_lshr_b32 s29, s2, 3", "s_and_b32 s29, s29, 3", "s_lshr_b32 s21, s2, 5",
          "s_lshl_b32 s22, s23, 2", "s_add_u32 s22, s22, s29"]
    L += ["s_lshl_b32 s28, s21, 3", "s_add_u32 s28, s28, s23", "s_lshl_b32 s28, s28, 19",
          "s_lshl_b32 s29, s20, 17", "s_add_u32 s28, s28, s29"]
    L += [f"s_lshl_b32 s{S_LDSW}, s20, 15"]
    L += ["v_and_b32 v2, 15, v0", "v_lshrrev_b32 v3, 4, v0"]
    L += ["s_waitcnt lgkmcnt(0)"]
    L += ["s_add_u32 s12, s6, s28", "s_addc_u32 s13, s7, 0", "s_and_b32 s13, s13, 0xffff", "s_mov_b32 s14, 0x20000", "s_mov_b32 s15, 0x20000"]
    L += ["s_add_u32 s16, s8, s28", "s_addc_u32 s17, s9, 0", "s_and_b32 s17, s17, 0xffff", "s_mov_b32 s18, 0x20000", "s_mov_b32 s19, 0x20000"]
    L += srd(S_X, 4, 8*80*512*2)
    L += srd(S_WQ, 10, 512*4096*2)
    L += srd(S_WS, 44, 0x1000000)
    L += ["v_xor_b32 v4, v2, v3"]
    for i in range(4):
        L += [f"v_xor_b32 v5, {4*i}, v4", "v_lshlrev_b32 v5, 4, v5", "v_lshl_add_u32 v5, v3, 10, v5", f"v_add_u32 v{V_XD+i}, {i*3072}, v5"]
    L += ["s_lshl_b32 s29, s20, 2", "v_xor_b32 v5, s29, v4", "v_lshlrev_b32 v5, 4, v5", "v_lshl_add_u32 v5, v3, 10, v5",
          "s_lshl_b32 s29, s20, 12", f"v_add_u32 v{V_XD4}, s29, v5"]
    L += ["v_lshrrev_b32 v5, 1, v2", "v_and_b32 v6, 1, v0"]
    for i in range(4):
        L += [f"v_or_b32 v7, {(i>>1)<<2}, v3", "v_xor_b32 v7, v7, v5", "v_lshl_or_b32 v7, v7, 1, v6", "v_lshlrev_b32 v7, 4, v7",
              "v_lshl_add_u32 v7, v3, 13, v7", f"v_add_u32 v{V_WD+i}, {i*31744}, v7"]
    return L

def qproj_dma(kc, cb):
    L = []
    tag = ("C", kc)
    L += [f"s_lshl_b32 s47, s20, 12", f"s_add_u32 m0, s47, {cb+XOFF}",
          f"s_mul_i32 s48, s21, 81920", f"s_lshl_b32 s47, s20, 14", "s_add_u32 s47, s47, s48", f"s_add_u32 s47, s47, {kc*256}"]
    for i in range(4): L.append(dma(f"v{V_XD+i}", f"s[{S_X}:{S_X+3}]", "s47", i*1024, tag))
    L += [f"s_lshl_b32 s47, s20, 10", f"s_add_u32 m0, s47, {cb+XOFF+16384}", f"s_add_u32 s47, s48, {65536+kc*256}"]
    L.append(dma(f"v{V_XD4}", f"s[{S_X}:{S_X+3}]", "s47", 0, tag))
    for grp in range(2):
        L += [f"s_lshl_b32 s47, s20, 13", f"s_add_u32 m0, s47, {cb+WOFF+grp*4096}",
              f"s_lshl_b32 s47, s20, 18", f"s_lshl_b32 s49, s22, 8", "s_add_u32 s47, s47, s49", f"s_add_u32 s47, s47, {(128*kc+16*grp)*8192}"]
        for i in range(4): L.append(dma(f"v{V_WD+i}", f"s[{S_WQ}:{S_WQ+3}]", "s47", i*1024, tag))
    return L

def ring_addrs():
    L = []
    L += ["v_xor_b32 v4, v2, v3"]
    for i in range(4):
        L += [f"v_xor_b32 v5, {4*i}, v4", "v_lshlrev_b32 v5, 4, v5", f"v_lshl_add_u32 v{V_KD+i}, v3, 8, v5"]
    for i in range(2):
        L += [f"v_add_u32 v5, {4*i}, v3", "v_lshlrev_b32 v5, 1, v5", "v_xor_b32 v5, v5, v2", "v_lshlrev_b32 v5, 4, v5", f"v_lshl_add_u32 v{V_VD+i}, v3, 8, v5"]
    for j in range(4):
        L += [f"v_add_u32 v5, {4*j}, v3", "v_xor_b32 v5, v5, v2", "v_lshlrev_b32 v5, 4, v5", "v_lshl_add_u32 v5, v2, 8, v5",
              f"v_add_u32 v{V_KA+j}, s{S_LDSW}, v5", f"v_mov_b32 v{V_XA+j}, v5"]
    L += ["v_lshrrev_b32 v4, 2, v2", "v_lshl_add_u32 v4, v3, 2, v4", "v_and_b32 v5, 7, v4", "v_lshlrev_b32 v5, 1, v5",
          "v_and_b32 v6, 3, v0", "v_lshrrev_b32 v6, 1, v6", "v_and_b32 v7, 1, v0", "v_lshlrev_b32 v7, 3, v7",
          "v_lshl_add_u32 v7, v4, 8, v7", f"v_add_u32 v7, s{S_LDSW}, v7"]
    for dt in range(8):
        L += [f"v_add_u32 v1, {2*dt}, v6", "v_xor_b32 v1, v1, v5", f"v_lshl_add_u32 v{V_VA+dt}, v1, 4, v7"]
    L += ["v_lshrrev_b32 v4, 2, v2", "v_and_b32 v5, 1, v3", "v_lshl_or_b32 v5, v5, 2, v4",
          "v_lshl_add_u32 v6, v3, 3, v4", "v_lshlrev_b32 v6, 8, v6",
          "v_and_b32 v7, 3, v0", "v_lshl_add_u32 v6, v7, 3, v6", "s_lshl_b32 s29, s20, 1"]
    for e in range(2):
        L += [f"s_add_u32 s30, s29, {e}", "v_xor_b32 v7, s30, v5", f"v_lshl_add_u32 v{V_WA+e}, v7, 5, v6"]
    return L

def qproj_compute(kc, cb, first):
    L = []
    base_w = cb + WOFF; base_x = cb + XOFF
    L += [f"v_add_u32 v4, {base_w}, v{V_WA}", f"v_add_u32 v5, {base_w}, v{V_WA+1}"]
    for ks in range(4): L.append(f"v_add_u32 v{244+ks}, {base_x}, v{V_XA+ks}")
    def reads(ks, s):
        r = []
        for e in range(2):
            for hh in range(2):
                r.append(f"ds_read_b64_tr_b16 {R('v', V_QA[s]+4*e+2*hh, 2)}, v{4+e} offset:{ks*8192+hh*1024}")
        for n in range(5):
            r.append(f"ds_read_b128 {R('v', V_QB[s]+4*n, 4)}, v{244+ks} offset:{n*4096}")
        return r
    def mf(ks, s):
        r = []
        for n in range(5):
            for e in range(2):
                d = R('v', V_QD+(e*5+n)*4, 4)
                c = "0" if (first and ks == 0) else d
                r.append(f"v_mfma_f32_16x16x32_bf16 {d}, {R('v', V_QA[s]+4*e, 4)}, {R('v', V_QB[s]+4*n, 4)}, {c}")
        return r
    L += reads(0, 0)
    for ks in range(4):
        m = mf(ks, ks % 2)
        if ks < 3:
            r = reads(ks+1, (ks+1) % 2)
            for i in range(10):
                L.append(m[i])
                if i < len(r): L.append(r[i])
        else:
            L += m
    return L

def q_finish():
    L = []
    L.append(f"s_mov_b32 s29, {hex(CSCALE)}")
    for i in range(40): L.append(f"v_mul_f32 v{V_QD+i}, s29, v{V_QD+i}")
    L += ["v_lshrrev_b32 v4, 1, v3", "s_lshl_b32 s30, s20, 2", "v_add_u32 v4, s30, v4"]
    L += ["v_and_b32 v5, 1, v3", "v_lshlrev_b32 v5, 3, v5", "v_lshl_add_u32 v5, v2, 8, v5", f"v_add_u32 v5, {QBUF}, v5"]
    for e in range(2):
        L += [f"v_add_u32 v6, {2*e}, v4", "v_xor_b32 v6, v6, v2", f"v_lshl_add_u32 v{6+e if False else 244+e}, v6, 4, v5"]
    for e in range(2):
        for n in range(5):
            d = V_QD + (e*5+n)*4
            t = 124 + (e*5+n)*2
            L += [f"v_cvt_pk_bf16_f32 v{t}, v{d}, v{d+1}", f"v_cvt_pk_bf16_f32 v{t+1}, v{d+2}, v{d+3}",
                  f"ds_write_b64 v{244+e}, v[{t}:{t+1}] offset:{n*4096}"]
    L += ["s_waitcnt lgkmcnt(0)", "s_barrier"]
    for j in range(4): L.append(f"v_add_u32 v{244+j}, {QBUF}, v{V_XA+j}")
    for n in range(5):
        for j in range(4):
            L.append(f"ds_read_b128 {Qf(n, j)}, v{244+j} offset:{n*4096}")
    return L

def zero_acc():
    return [f"v_accvgpr_write_b32 a{i}, 0" for i in range(180)]

def maxpass():
    L = []
    MX = 228
    for n in range(5): L.append(f"v_mov_b32 v{MX+n}, 0xff800000")
    L += [f"s_mov_b32 s{S_KOFF}, 0", f"s_mov_b32 s{S_KOFF+2}, 4096", "s_mov_b32 s50, 0"]
    L.append("L_maxloop:")
    g = k_dma(0); L += g[0] + g[1] + upk()
    L.append("s_waitcnt vmcnt(0)")
    L += k_reads(0)
    L.append("s_waitcnt lgkmcnt(0)")
    for n in range(5):
        for s in range(2):
            for j in range(4):
                d = R("v", V_S + s*4, 4)
                L.append(mfma16(d, Kf(s, j), Qf(n, j), "0" if j == 0 else d))
        L += [f"v_max3_f32 v{MX+n}, v{V_S}, v{V_S+1}, v{MX+n}", f"v_max3_f32 v{MX+n}, v{V_S+2}, v{V_S+3}, v{MX+n}",
              f"v_max3_f32 v{MX+n}, v{V_S+4}, v{V_S+5}, v{MX+n}", f"v_max3_f32 v{MX+n}, v{V_S+6}, v{V_S+7}, v{MX+n}"]
    L += ["s_add_u32 s50, s50, 1", "s_cmp_lt_u32 s50, 16", "s_cbranch_scc1 L_maxloop"]
    for n in range(5):
        m = MX + n
        L += [f"v_mov_b32 v4, v{m}", f"v_permlane16_swap_b32 v4, v{m}", f"v_max_f32 v{m}, v4, v{m}",
              f"v_mov_b32 v4, v{m}", f"v_permlane32_swap_b32 v4, v{m}", f"v_max_f32 v{m}, v4, v{m}"]
    MB = 151552
    L += ["s_barrier", "v_lshlrev_b32 v4, 2, v0", "s_mul_i32 s29, s20, 1280", "v_add_u32 v5, s29, v4", f"v_add_u32 v5, {MB}, v5", f"v_add_u32 v4, {MB}, v4"]
    for n in range(5): L.append(f"ds_write_b32 v5, v{MX+n} offset:{n*256}")
    L += ["s_waitcnt lgkmcnt(0)", "s_barrier"]
    for n in range(5):
        for w in range(4): L.append(f"ds_read_b32 v{V_S+w}, v4 offset:{w*1280+n*256}")
        L += ["s_waitcnt lgkmcnt(0)", f"v_max3_f32 v5, v{V_S}, v{V_S+1}, v{V_S+2}", f"v_max_f32 v5, v5, v{V_S+3}"]
        for r in range(4): L.append(f"v_sub_f32 v{V_NEGM+n*4+r}, 0, v5")
    L += ["s_barrier"]
    return L

RED = 0
LRED = 122880

def epilogue_variant(w):
    L = []
    others = [u for u in range(4) if u != w]
    for ui, u in enumerate(others):
        for e in range(2):
            for n in range(5):
                L.append(f"ds_write_b128 v4, {Of(2*u+e, n)} offset:{w*30720 + (ui*10+e*5+n)*1024 - (0 if w*30720 < 65536-30720 else 0)}" if False else
                         ("W", w*30720 + (ui*10+e*5+n)*1024, Of(2*u+e, n)))
    return L

def epilogue(opt):
    L = []
    L.append("s_barrier")
    L += ["v_lshlrev_b32 v4, 4, v0", "v_add_u32 v5, 61440, v4", "v_lshlrev_b32 v6, 2, v0", f"v_add_u32 v6, {LRED}, v6",
          "s_mul_i32 s29, s20, 1280", "v_add_u32 v7, s29, v6"]
    for n in range(5):
        L += [f"v_accvgpr_read_b32 v1, a{A_L+4*n}", f"ds_write_b32 v7, v1 offset:{n*256}"]
    def lds(addr):
        return ("v4", addr) if addr < 61440 else ("v5", addr - 61440)
    for w in range(4):
        L.append(f"s_cmp_eq_u32 s20, {w}"); L.append(f"s_cbranch_scc0 L_ew{w}")
        others = [u for u in range(4) if u != w]
        for ui, u in enumerate(others):
            for e in range(2):
                for n in range(5):
                    r, o = lds(w*30720 + (ui*10+e*5+n)*1024)
                    L.append(f"ds_write_b128 {r}, {Of(2*u+e, n)} offset:{o}")
        L.append(f"L_ew{w}:")
    L += ["s_waitcnt lgkmcnt(0)", "s_barrier"]
    for n in range(5):
        for w in range(4): L.append(f"ds_read_b32 v{28+n*4+w}, v6 offset:{w*1280+n*256}")
    L.append("s_waitcnt lgkmcnt(0)")
    for n in range(5):
        b = 28 + n*4
        L += [f"v_add_f32 v{b}, v{b}, v{b+1}", f"v_add_f32 v{b+2}, v{b+2}, v{b+3}", f"v_add_f32 v{b}, v{b}, v{b+2}"]
    L += ["s_mov_b32 s29, 0x21800000", "s_mov_b32 s30, 0x5d800000", "s_mov_b64 s[52:53], 0"]
    for n in range(5):
        b = 28 + n*4
        L += [f"v_cmp_nge_f32 vcc, v{b}, s29", "s_or_b64 s[52:53], s[52:53], vcc", f"v_cmp_nle_f32 vcc, v{b}, s30", "s_or_b64 s[52:53], s[52:53], vcc"]
    L += ["s_cmp_eq_u64 s[52:53], 0", "s_cbranch_scc1 L_safe", f"s_cmp_eq_u32 s{S_FB}, 0", "s_cbranch_scc0 L_safe"]
    L += [f"s_mov_b32 s{S_FB}, 1", "s_barrier"]
    L += maxpass()
    L += initial_dmas()
    L += ["s_branch L_attn"]
    L.append("L_safe:")
    for n in range(5): L.append(f"v_rcp_f32 v{28+n*4}, v{28+n*4}")
    T = 48
    L += ["s_mul_i32 s29, s21, 32", "s_add_u32 s29, s29, s22", "s_mul_i32 s29, s29, 20480", "s_lshl_b32 s30, s20, 10", "s_add_u32 s29, s29, s30"]
    for w in range(4):
        L.append(f"s_cmp_eq_u32 s20, {w}"); L.append(f"s_cbranch_scc0 L_er{w}")
        srcs = [u for u in range(4) if u != w]
        for n in range(5):
            base = T + (n % 2)*40
            for e in range(2):
                for si, u in enumerate(srcs):
                    wi = w if w < u else w - 1
                    r, o = lds(u*30720 + (wi*10+e*5+n)*1024)
                    L.append(f"ds_read_b128 {R('v', base+(e*3+si)*4, 4)}, {r} offset:{o}")
            for e in range(2):
                for rr in range(4):
                    a = A_O + ((2*w+e)*5+n)*4 + rr
                    o = base + 24 + e*4 + rr
                    L.append(f"v_accvgpr_read_b32 v{o}, a{a}")
            for e in range(2):
                for rr in range(4):
                    o = base + 24 + e*4 + rr
                    for si in range(3): L.append(f"v_add_f32 v{o}, v{o}, v{base+(e*3+si)*4+rr}")
                    L.append(f"v_mul_f32 v{o}, v{o}, v{28+n*4}")
            q = base + 32
            L += [f"v_cvt_pk_bf16_f32 v{q}, v{base+24}, v{base+25}", f"v_cvt_pk_bf16_f32 v{q+1}, v{base+26}, v{base+27}",
                  f"v_cvt_pk_bf16_f32 v{q+2}, v{base+28}, v{base+29}", f"v_cvt_pk_bf16_f32 v{q+3}, v{base+30}, v{base+31}"]
            L += [f"s_add_u32 s31, s29, {n*4096}", f"buffer_store_dwordx4 v[{q}:{q+3}], v4, s[{S_WS}:{S_WS+3}], s31 offen"]
        L.append(f"L_er{w}:")
    return L

def k1(opt):
    st = opt.get("stamps")
    L = k1_setup(opt)
    pre = []
    for c in range(3): pre += qproj_dma(c, CB[c])
    L += pre
    L += ring_addrs()
    L += zero_acc()
    for i in range(4): L += ["v_mov_b32 v1, 0x3f803f80", f"v_accvgpr_write_b32 a{A_ONE+i}, v1"]
    for i in range(20): L.append(f"v_mov_b32 v{V_NEGM+i}, 0")
    L.append(f"s_mov_b32 s{S_FB}, 0")
    L += stamp(0, st)
    L += ["s_waitcnt vmcnt(26)", "s_barrier"]
    L += qproj_compute(0, CB[0], True)
    L += ["s_waitcnt vmcnt(13)", "s_barrier"]
    L += qproj_dma(3, CB[0])
    L += qproj_compute(1, CB[1], False)
    L += ["s_waitcnt vmcnt(13)", "s_barrier"]
    L += qproj_compute(2, CB[2], False)
    L += ["s_waitcnt vmcnt(0)", "s_barrier"]
    L += qproj_compute(3, CB[0], False)
    L += ["s_waitcnt lgkmcnt(0)", "s_barrier"]
    L += stamp(1, st)
    L += initial_dmas()
    L += q_finish()
    S1, n1 = finalize(L)
    A = [P("L_attn:")]
    A += PL(zero_acc()) if False else []
    kr, _ = initial_reads()
    vmq = [("K", 0)]*8 + [("V", 0)]*8 + [("K", 1)]*8 + [("V", 1)]*8
    body = kr + build(opt)
    S2, _, _ = insert_waits(PL(stamp(2, st) + (["s_waitcnt lgkmcnt(0)"] if st else [])) + body, vm_outstanding=vmq)
    S2, n2 = check_hazards(S2)
    E = PL(["s_nop 7"] + stamp(3, st) + (["s_waitcnt lgkmcnt(0)"] if st else []))
    ep = epilogue(opt)
    idx = ep.index("s_branch L_attn")
    ep = ep[:idx] + zero_acc() + ["s_nop 1"] + ep[idx:]
    S3, n3 = finalize(E + PL(ep))
    T = []
    if st:
        T += ["s_memtime s[78:79]", "s_memrealtime s[68:69]", "s_waitcnt lgkmcnt(0)",
              "s_lshl_b32 s37, s2, 2", "s_add_u32 s37, s37, s20", "s_lshl_b32 s37, s37, 5", "s_add_u32 s37, s37, 0x800000", "v_mov_b32 v2, s37"]
        vals = [("s72", "s70"), ("s74", "s72"), ("s76", "s74"), ("s78", "s76")]
        for k, (a, b) in enumerate(vals):
            T += [f"s_sub_u32 s36, {a}, {b}", "v_mov_b32 v3, s36", f"buffer_store_dword v3, v2, s[{S_WS}:{S_WS+3}], 0 offen offset:{4*k}", "s_nop 1"]
        for k, s in ((4, "s66"), (5, "s68")):
            T += [f"v_mov_b32 v3, {s}", f"buffer_store_dword v3, v2, s[{S_WS}:{S_WS+3}], 0 offen offset:{4*k}", "s_nop 1"]
    T += ["s_waitcnt vmcnt(0)", "L_k1_end:", "s_endpgm"]
    S4, _ = finalize(T)
    print(f"; K1 nops inserted {n1} {n2} {n3}", file=sys.stderr)
    return emit(S1) + "\n" + emit(A) + "\n" + emit(S2) + "\n" + emit(S3) + "\n" + emit(S4) + "\n"

def k2(opt):
    L = []
    L += ["s_cmp_ge_u32 s2, 256", "s_cbranch_scc1 L_k2_end"]
    L += ["s_load_dwordx4 s[4:7], s[0:1], 32", "s_load_dwordx2 s[8:9], s[0:1], 56"]
    L += ["v_lshrrev_b32 v1, 6, v0", "v_and_b32 v0, 63, v0", "v_readfirstlane_b32 s20, v1"]
    L += ["s_and_b32 s21, s2, 7", "s_lshr_b32 s22, s2, 3"]
    L += ["v_and_b32 v2, 15, v0", "v_lshrrev_b32 v3, 4, v0"]
    L += ["s_waitcnt lgkmcnt(0)"]
    L += srd(12, 4, 4096*512*2) + srd(16, 6, 8*80*512*2) + srd(24, 8, 0x1000000)
    L += ["v_lshrrev_b32 v4, 1, v0", "v_and_b32 v5, 1, v0", "v_lshlrev_b32 v5, 4, v5", "v_lshl_add_u32 v4, v4, 10, v5"]
    for i in range(4): L.append(f"v_add_u32 v{8+i}, {i*31744}, v4")
    L += ["s_lshl_b32 s28, s20, 15"]
    def wdma(hh):
        r = [f"s_add_u32 m0, s28, {hh*4096}", "s_lshl_b32 s29, s20, 20", f"s_add_u32 s29, s29, {hh*131072}", "s_lshl_b32 s30, s22, 5", "s_add_u32 s29, s29, s30"]
        for i in range(4): r.append(dma(f"v{8+i}", "s[12:15]", "s29", i*1024, ("W", hh)))
        return r
    for hh in range(4): L += wdma(hh)
    L += ["v_lshrrev_b32 v4, 2, v2", "v_lshl_add_u32 v4, v3, 2, v4", "v_lshlrev_b32 v4, 5, v4", "v_and_b32 v5, 3, v0", "v_lshl_add_u32 v4, v5, 3, v4", "v_add_u32 v12, s28, v4"]
    L += ["v_lshlrev_b32 v13, 4, v0"]
    L += ["s_lshl_b32 s31, s21, 5", "s_lshl_b32 s30, s20, 3", "s_add_u32 s31, s31, s30", "s_mul_i32 s31, s31, 20480"]
    BF = [32, 112]; AF = [192, 208]; ACC = 224
    def bloads(hh):
        r = []
        for n in range(5):
            r.append(f"s_add_u32 s32, s31, {hh*20480+n*4096}")
            for j in range(4):
                r.append(f"buffer_load_dwordx4 {R('v', BF[hh%2]+(n*4+j)*4, 4)}, v13, s[24:27], s32 offen offset:{j*1024}")
        return r
    L += bloads(0)
    for hh in range(8):
        if hh < 7: L += bloads(hh+1)
        if hh < 4: L += wdma(hh+4)
        rd = []
        for j in range(4):
            for h2 in range(2):
                ins = P(f"ds_read_b64_tr_b16 {R('v', AF[hh%2]+j*4+h2*2, 2)}, v12 offset:{hh*4096+j*1024+h2*512}")
                if j == 0 and h2 == 0: ins.need_vm = [("W", hh)]
                rd.append(ins)
        L += rd
        for j in range(4):
            for n in range(5):
                d = R('v', ACC+4*n, 4)
                c = "0" if (hh == 0 and j == 0) else d
                L.append(f"v_mfma_f32_16x16x32_bf16 {d}, {R('v', AF[hh%2]+j*4, 4)}, {R('v', BF[hh%2]+(n*4+j)*4, 4)}, {c}")
    L += ["s_nop 7", "s_mul_i32 s29, s20, 5120", "v_add_u32 v14, s29, v13", "v_add_u32 v14, 0x20000, v14", "v_add_u32 v15, 0x20000, v13"]
    for n in range(5): L.append(f"ds_write_b128 v14, {R('v', ACC+4*n, 4)} offset:{n*1024}")
    L += ["s_waitcnt lgkmcnt(0)", "s_barrier"]
    L += ["s_mul_i32 s29, s21, 81920", "s_lshl_b32 s30, s22, 5", "s_add_u32 s29, s29, s30", "v_lshlrev_b32 v16, 10, v2", "v_lshl_add_u32 v16, v3, 3, v16"]
    def fin(nreg_or_const, label):
        r = []
        return r
    L += ["s_lshl_b32 s30, s20, 10", "v_add_u32 v17, s30, v15"]
    for u in range(4): L.append(f"ds_read_b128 {R('v', 32+4*u, 4)}, v17 offset:{u*5120}")
    for rr in range(4):
        L += [f"v_add_f32 v{32+rr}, v{32+rr}, v{36+rr}", f"v_add_f32 v{40+rr}, v{40+rr}, v{44+rr}", f"v_add_f32 v{32+rr}, v{32+rr}, v{40+rr}"]
    L += ["v_cvt_pk_bf16_f32 v48, v32, v33", "v_cvt_pk_bf16_f32 v49, v34, v35", "s_lshl_b32 s30, s20, 14", "s_add_u32 s30, s30, s29",
          "buffer_store_dwordx2 v[48:49], v16, s[16:19], s30 offen"]
    L += ["s_cmp_eq_u32 s20, 0", "s_cbranch_scc0 L_k2_done"]
    for u in range(4): L.append(f"ds_read_b128 {R('v', 52+4*u, 4)}, v15 offset:{u*5120+4096}")
    for rr in range(4):
        L += [f"v_add_f32 v{52+rr}, v{52+rr}, v{56+rr}", f"v_add_f32 v{60+rr}, v{60+rr}, v{64+rr}", f"v_add_f32 v{52+rr}, v{52+rr}, v{60+rr}"]
    L += ["v_cvt_pk_bf16_f32 v68, v52, v53", "v_cvt_pk_bf16_f32 v69, v54, v55", "s_add_u32 s30, s29, 65536",
          "buffer_store_dwordx2 v[68:69], v16, s[16:19], s30 offen"]
    L += ["L_k2_done:", "s_waitcnt vmcnt(0)", "L_k2_end:", "s_endpgm"]
    S, n = finalize(L)
    print(f"; K2 nops inserted {n}", file=sys.stderr)
    return emit(S) + "\n"

def kernel_text(name, body):
    return f".globl {name}\n.p2align 8\n.type {name},@function\n{name}:\n{body}"
def kd(name, vgpr, accum, sgpr=102):
    return f""".amdhsa_kernel {name}
  .amdhsa_next_free_vgpr {vgpr}
  .amdhsa_next_free_sgpr {sgpr}
  .amdhsa_accum_offset {accum}
  .amdhsa_group_segment_fixed_size 0
  .amdhsa_kernarg_size 64
  .amdhsa_user_sgpr_count 2
  .amdhsa_user_sgpr_kernarg_segment_ptr 1
  .amdhsa_system_sgpr_workgroup_id_x 1
.end_amdhsa_kernel
"""

def gen(opt):
    ml.DMAFLAGS[0] = opt.get("dmaflags", "")
    hdr = open("standalone__gqa_block_cached__near_ridge.s.ref").read().split("; Override")[0]
    s = hdr
    s += f"; @launch kernel={K1} grid=(256,1,1) block=(256,1,1) lds=163840\n"
    s += f"; @launch kernel={K2} grid=(256,1,1) block=(256,1,1) lds=163840\n"
    s += '.amdgcn_target "amdgcn-amd-amdhsa--gfx950"\n.text\n'
    s += kernel_text(K1, k1(opt)) + kernel_text(K2, k2(opt))
    s += '.section .rodata,"a"\n.p2align 6\n' + kd(K1, 512, 256) + ".p2align 6\n" + kd(K2, 256, 256)
    return s

if __name__ == "__main__":
    open("v1.s", "w").write(gen({}))
    open("v1_nt.s", "w").write(gen({"dmaflags": "nt"}))
    open("v1_st.s", "w").write(gen({"stamps": True}))
```

```python
from sched import *

V_KA = 8
V_VA = 12
V_KD = 20
V_VD = 24
V_L16 = 252
V_WD = 244
V_NEGM = 28
V_S = 48
V_P = 72
V_O = 84
A_Q = 0
A_K = 80
A_V = 112
A_L = 144
A_ONE = 164
S_KSRD = 12; S_VSRD = 16; S_WOSRD = 52
S_M0K = 24
S_TOFF = 26
S_WOFF = 95
S_W4K = 25
NT = 16
D = 4
OPT = {"flags": "nt"}
WO_LOC = [131072, 147456, 0, 65536, 16384, 81920, 32768, 98304]

def Sreg(G, s, r=None):
    b = V_S + (G % 3)*8 + s*4
    return R("v", b, 4) if r is None else f"v{b+r}"
def Preg(G, i=None):
    b = V_P + (G % 3)*4
    return R("v", b, 4) if i is None else f"v{b+i}"
def Kf(s, j): return R("a", A_K + (s*4+j)*4, 4)
def Vf(dt, h=None):
    b = A_V + dt*4
    return R("a", b, 4) if h is None else R("a", b+2*h, 2)
def Qf(n, j): return R("a", A_Q + (n*4+j)*4, 4)
def Of(dt, n): return R("v", V_O + (dt*5+n)*4, 4)
def Lf(n): return R("a", A_L + n*4, 4)

def qk_mfmas(G):
    n = G % 5
    L = []
    for s in range(2):
        for j in range(4):
            c = R("v", V_NEGM + n*4, 4) if j == 0 else Sreg(G, s)
            L.append(mfma16(Sreg(G, s), Kf(s, j), Qf(n, j), c, tag=("qk", G, s, j)))
    return L
def pv_mfmas(G):
    n = G % 5
    first = G < 5
    L = [mfma16(Of(dt, n), Vf(dt), Preg(G), "0" if first else Of(dt, n), tag=("pv", G, dt)) for dt in range(8)]
    L.append(mfma16(Lf(n), R("a", A_ONE, 4), Preg(G), "0" if first else Lf(n), tag=("l", G)))
    return L
def softmax_fillers(G):
    e = [vexp(Sreg(G, s, r), Sreg(G, s, r)) for s in range(2) for r in range(4)]
    c = [vcvtpk(Preg(G, i), Sreg(G, i//2, (i%2)*2), Sreg(G, i//2, (i%2)*2+1)) for i in range(4)]
    return [e[0], e[1], e[2], c[0], e[3], e[4], c[1], e[5], e[6], c[2], e[7], c[3]]
def k_reads(t):
    sl = (t % D)*16384
    return [ds_read128(Kf(s, j), f"v{V_KA+j}", sl + s*4096) for s in range(2) for j in range(4)]
def v_reads(t):
    sl = (t % D)*16384
    return [ds_read_tr(Vf(dt, h), f"v{V_VA+dt}", sl + h*4096) for dt in range(8) for h in range(2)]
def tile_dma(t):
    sl = (t % D)*16384
    L = [salu(f"s_mov_b32 s{S_TOFF}, {t*8192}"), salu(f"s_add_u32 m0, s{S_M0K}, {sl}")]
    for i in range(4): L.append(dma(f"v{V_KD+i}", f"s[{S_KSRD}:{S_KSRD+3}]", f"s{S_TOFF}", i*1024, ("T", t), OPT["flags"]))
    L.append(salu(f"s_add_u32 m0, s{S_M0K}, {sl + 8192}"))
    for i in range(4): L.append(dma(f"v{V_VD+(i&1)}", f"s[{S_VSRD}:{S_VSRD+3}]", f"s{S_TOFF}", i*1024, ("T", t), OPT["flags"]))
    return L
def wo_dma(p):
    L = [salu(f"s_add_u32 s{S_WOFF}, s{S_WOBASE}, {p*65536}"), salu(f"s_add_u32 m0, s{S_W4K}, {WO_LOC[p]}")]
    for i in range(4): L.append(dma(f"v{V_WD+i}", f"s[{S_WOSRD}:{S_WOSRD+3}]", f"s{S_WOFF}", i*1024, ("W", p)))
    return L
S_WOBASE = 94

class F:
    def __init__(s, ins, lo, hi): s.ins = ins; s.lo = lo; s.hi = hi

def place(mf, chains, cap=8, fixed=None):
    stream = []
    ptr = [0]*len(chains)
    for m, ins in enumerate(mf):
        if fixed and m in fixed: stream += fixed[m]
        stream.append(ins)
        used = 0
        while True:
            cand = []
            for c, ch in enumerate(chains):
                if ptr[c] < len(ch) and ch[ptr[c]].lo <= m:
                    cand.append((ch[ptr[c]].hi, c))
            if not cand: break
            cand.sort()
            placed = False
            for hi, c in cand:
                f = chains[c][ptr[c]]
                if used + f.ins.cost <= cap or hi <= m:
                    stream.append(f.ins); used += f.ins.cost; ptr[c] += 1; placed = True
                    break
            if not placed: break
    for c, ch in enumerate(chains):
        assert ptr[c] == len(ch), (c, ptr[c], len(ch))
    return stream

def spaced(instrs, start, sp, win):
    out = []; k = 0
    for ins in instrs:
        lo = start + k*sp
        out.append(F(ins, lo, lo + win))
        if ins.kind == "dma": k += 1
    return out

def build(opt):
    nt = NT
    nG = 5*nt
    mf = []; qk_idx = {}; pv_idx = {}
    for X in range(nG + 2):
        if X < nG:
            qk_idx[X] = len(mf); mf += qk_mfmas(X)
        if 0 <= X-2 < nG:
            pv_idx[X-2] = len(mf); mf += pv_mfmas(X-2)
    allf = []
    for G in range(nG):
        fl = softmax_fillers(G)
        lo0 = qk_idx[G] + 3 + 5; lo1 = qk_idx[G] + 7 + 5
        hi = pv_idx[G] - 2
        for k, ins in enumerate(fl):
            allf.append(F(ins, min(lo1 if k >= 5 else lo0, hi), hi))
    kr = []; vr_ = []; dm = []
    fixed = {}
    sp = opt.get("space", 8); st0 = opt.get("dstart", 8); win = opt.get("dwin", 6)
    for idx, ins in enumerate(v_reads(0)):
        vr_.append(F(ins, 2 + idx//2, pv_idx[0] - 4))
    for t in range(1, nt):
        G = 5*t - 1
        fixed[qk_idx[G]] = [P("s_barrier", need_vm=[("T", t)])]
        for idx, ins in enumerate(k_reads(t)):
            kr.append(F(ins, qk_idx[G] + idx, qk_idx[G+1] + idx - 4))
        for idx, ins in enumerate(v_reads(t)):
            dt = idx // 2
            vr_.append(F(ins, pv_idx[G] + dt, pv_idx[G+1] + dt - 4))
        base = qk_idx[G] + st0
        if t == 1:
            dm += spaced(tile_dma(3), base, 4, win) + spaced(tile_dma(4), base + 34, 4, win)
        elif t - 1 + D < nt:
            items = tile_dma(t - 1 + D)
            if opt.get("wo", True) and t in (6, 7):
                dm += spaced(items, base, sp - 2, win) + spaced(wo_dma(t - 6), base + 8*(sp-2), 4, win)
            else:
                dm += spaced(items, base, sp, win)
        elif opt.get("wo", True):
            k = t - 1 + D - nt
            dm += spaced(wo_dma(2 + 2*k) + wo_dma(3 + 2*k), base, sp, win)
    return place(mf, [allf, kr, vr_, dm], opt.get("cap", 8), fixed)
```

```python
import sys, struct, math
from asmlib import *
from sched import *
import mainc2 as mc
from mainc2 import *

KN = "standalone__gqa_block_cached__near_ridge_kernel"
CSCALE = struct.unpack("<I", struct.pack("<f", math.log2(math.e)/math.sqrt(128.0)))[0]

WS_PART = 0x0000000
WS_LP   = 0x0B00000
WS_OUTP = 0x0C00000
WS_FLAG = 0x1200000
WS_MX   = 0x1300000
WS_STAMP= 0x1400000
WS_DUMP = 0x1800000
WS_SIZE = 0x4000000
FL2, FL3, FL2B, FLF = 0, 0x4000, 0x8000, 0xC000
S_W, S_B, S_C, S_G = 20, 21, 22, 23
S_MODE = 27
S_X, S_WQ, S_WS, S_OUT, S_DBG = 32, 36, 40, 56, 60
S_NONCE = 64
S_E, S_KQ = 65, 66
QP_W = [32768, 98304, 0]
QP_X = [151552, 131072, 65536]
QBUF = 114688
V_XD = 236; V_WQD = 239
V_WB = 243
V_XB = (248, 249)
V_QD = 84
QA = [164, 200]; QB = [180, 216]

def stamp(i, on):
    return [f"s_memtime s[{70+2*i}:{71+2*i}]"] if on else []

def setup0(opt):
    L = ["s_cmp_ge_u32 s2, 256", "s_cbranch_scc1 L_end",
         "s_load_dwordx8 s[4:11], s[0:1], 0", "s_load_dwordx4 s[44:47], s[0:1], 32", "s_load_dwordx4 s[48:51], s[0:1], 48"]
    if opt.get("stamps"): L += ["s_memrealtime s[68:69]"]
    L += ["v_lshrrev_b32 v1, 6, v0", "v_and_b32 v0, 63, v0", f"v_readfirstlane_b32 s{S_W}, v1",
          f"s_and_b32 s{S_G}, s2, 7", f"s_lshr_b32 s{S_C}, s2, 3", f"s_and_b32 s{S_C}, s{S_C}, 3", f"s_lshr_b32 s{S_B}, s2, 5",
          f"s_and_b32 s{S_E}, s{S_W}, 1", f"s_lshr_b32 s{S_KQ}, s{S_W}, 1", f"s_mov_b32 s{S_MODE}, 0", f"s_mov_b32 s{S_NONCE}, 0",
          "s_memrealtime s[66+0:67+0]" if False else "s_nop 0",
          "s_waitcnt lgkmcnt(0)"]
    L += [f"s_lshl_b32 s28, s{S_B}, 3", f"s_add_u32 s28, s28, s{S_G}", "s_lshl_b32 s28, s28, 19",
          f"s_and_b32 s29, s{S_C}, 1", "s_lshl_b32 s29, s29, 18", "s_add_u32 s28, s28, s29",
          f"s_lshl_b32 s29, s{S_KQ}, 17", "s_add_u32 s28, s28, s29"]
    L += ["s_add_u32 s12, s6, s28", "s_addc_u32 s13, s7, 0", "s_and_b32 s13, s13, 0xffff", "s_mov_b32 s14, 0x20000", "s_mov_b32 s15, 0x20000"]
    L += ["s_add_u32 s16, s8, s28", "s_addc_u32 s17, s9, 0", "s_and_b32 s17, s17, 0xffff", "s_mov_b32 s18, 0x20000", "s_mov_b32 s19, 0x20000"]
    L += [f"s_mul_i32 s28, s{S_B}, 81920", f"s_add_u32 s{S_X}, s4, s28", f"s_addc_u32 s{S_X+1}, s5, 0", f"s_and_b32 s{S_X+1}, s{S_X+1}, 0xffff",
          f"s_mov_b32 s{S_X+2}, 81920", f"s_mov_b32 s{S_X+3}, 0x20000"]
    L += srd(S_WQ, 10, 512*4096*2) + srd(S_WS, 50, WS_SIZE) + srd(S_WOSRD, 44, 4096*512*2) + srd(S_OUT, 46, 8*80*512*2) + srd(S_DBG, 48, 256)
    return L

def setup1(opt):
    L = ["v_and_b32 v2, 15, v0", "v_lshrrev_b32 v3, 4, v0", f"v_lshlrev_b32 v{V_L16}, 4, v0"]
    L += ["v_lshrrev_b32 v4, 3, v0", f"s_mul_i32 s28, s{S_W}, 24", "v_add_u32 v4, s28, v4", "v_and_b32 v5, 7, v0"]
    for m in range(3):
        L += [f"v_add_u32 v6, {8*m}, v4", "v_lshrrev_b32 v7, 1, v6", "v_and_b32 v7, 7, v7", "v_xor_b32 v7, v7, v5", "v_lshlrev_b32 v7, 4, v7",
              "v_lshl_add_u32 v7, v6, 10, v7", f"v_subrev_u32 v{V_XD+m}, {m*1024}, v7"]
    L += ["v_lshrrev_b32 v4, 5, v0", f"s_lshl_b32 s28, s{S_W}, 4", "v_and_b32 v5, 16, v0"]
    for i in range(4):
        L += [f"v_add_u32 v6, {2*i}, v4", "v_and_b32 v7, 3, v6", "v_lshlrev_b32 v7, 2, v7", "v_xor_b32 v7, v7, v2", "v_or_b32 v7, v7, v5", "v_lshlrev_b32 v7, 4, v7",
              "v_add_u32 v6, s28, v6", "v_lshl_add_u32 v7, v6, 13, v7", f"v_subrev_u32 v{V_WQD+i}, {i*1024}, v7"]
    L += [f"s_add_u32 s28, s{S_C}, s{S_B}", "s_and_b32 s28, s28, 3", "s_lshl_b32 s28, s28, 1", f"s_lshr_b32 s29, s{S_B}, 2", "s_add_u32 s67, s28, s29"]
    L += [f"s_lshl_b32 s28, s{S_G}, 2", f"s_and_b32 s29, s{S_C}, 2", "s_add_u32 s28, s28, s29", "s_lshl_b32 s31, s28, 8"]
    return L

def qp_dma(hc):
    buf = hc % 3; tag = ("C", hc)
    L = [f"s_add_u32 s28, s67, {hc}", "s_and_b32 s28, s28, 7",
         "s_lshl_b32 s29, s28, 7",
         f"s_mul_i32 s30, s{S_W}, 3072", f"s_add_u32 m0, s30, {QP_X[buf]}"]
    for m in range(3): L.append(dma(f"v{V_XD+m}", f"s[{S_X}:{S_X+3}]", "s29", m*1024, tag))
    L += ["s_lshl_b32 s29, s28, 19", "s_add_u32 s29, s29, s31", f"s_lshl_b32 s30, s{S_W}, 13", f"s_add_u32 m0, s30, {QP_W[buf]}"]
    for i in range(4): L.append(dma(f"v{V_WQD+i}", f"s[{S_WQ}:{S_WQ+3}]", "s29", i*1024, tag))
    L += ["s_add_u32 s29, s29, 65536", f"s_add_u32 m0, s30, {QP_W[buf]+4096}"]
    for i in range(4): L.append(dma(f"v{V_WQD+i}", f"s[{S_WQ}:{S_WQ+3}]", "s29", i*1024, tag))
    return L

def ring_addrs():
    L = []
    L += [f"s_lshl_b32 s28, s{S_KQ}, 16", f"s_lshl_b32 s29, s{S_E}, 12", f"s_add_u32 s{S_M0K}, s28, s29", f"s_lshl_b32 s{S_W4K}, s{S_W}, 12"]
    L += [f"s_lshl_b32 s29, s{S_E}, 4", "v_add_u32 v4, s29, v3", "v_xor_b32 v6, v2, v3"]
    for i in range(4):
        L += [f"v_xor_b32 v5, {4*i}, v6", "v_lshlrev_b32 v5, 4, v5", f"v_lshl_add_u32 v{V_KD+i}, v4, 8, v5"]
    for i in range(2):
        L += [f"v_add_u32 v5, {4*i}, v3", "v_lshlrev_b32 v5, 1, v5", "v_xor_b32 v5, v5, v2", "v_lshlrev_b32 v5, 4, v5", f"v_lshl_add_u32 v{V_VD+i}, v4, 8, v5"]
    for j in range(4):
        L += [f"v_add_u32 v5, {4*j}, v3", "v_xor_b32 v5, v5, v2", "v_lshlrev_b32 v5, 4, v5", "v_lshl_add_u32 v5, v2, 8, v5", f"v_add_u32 v{V_KA+j}, s28, v5"]
    L += ["v_lshrrev_b32 v4, 2, v2", "v_lshl_add_u32 v4, v3, 2, v4", "v_and_b32 v5, 7, v4", "v_lshlrev_b32 v5, 1, v5",
          "v_and_b32 v6, 3, v0", "v_lshrrev_b32 v6, 1, v6", "v_and_b32 v7, 1, v0", "v_lshlrev_b32 v7, 3, v7",
          "v_lshl_add_u32 v7, v4, 8, v7", "s_add_u32 s28, s28, 8192", "v_add_u32 v7, s28, v7"]
    for dt in range(8):
        L += [f"v_add_u32 v1, {2*dt}, v6", "v_xor_b32 v1, v1, v5", f"v_lshl_add_u32 v{V_VA+dt}, v1, 4, v7"]
    L += [f"s_lshl_b32 s29, s{S_W}, 4", "v_add_u32 v4, s29, v3"]
    for i in range(4):
        L += [f"v_add_u32 v5, {4*(i&1)}, v3", "v_lshlrev_b32 v5, 1, v5", "v_xor_b32 v5, v5, v2", "v_lshlrev_b32 v5, 4, v5",
              f"v_add_u32 v6, {4*i}, v4", "v_lshl_add_u32 v5, v6, 10, v5", f"v_subrev_u32 v{V_WD+i}, {i*1024}, v5"]
    L += [f"s_lshl_b32 s{S_WOBASE}, s{S_G}, 19", f"s_lshl_b32 s29, s{S_C}, 8", f"s_add_u32 s{S_WOBASE}, s{S_WOBASE}, s29"]
    return L

def qp_lanebases():
    L = ["v_lshrrev_b32 v4, 2, v2", f"v_xor_b32 v5, s{S_W}, v4", "v_lshlrev_b32 v5, 6, v5", "v_lshl_add_u32 v6, v3, 3, v4", "v_lshl_add_u32 v5, v6, 9, v5",
         "v_and_b32 v6, 3, v0", f"v_lshl_add_u32 v{V_WB}, v6, 4, v5"]
    for ks in range(2):
        L += [f"v_add_u32 v5, {4*ks}, v3", "v_lshrrev_b32 v6, 1, v2", "v_xor_b32 v5, v5, v6", "v_lshlrev_b32 v5, 4, v5", f"v_lshl_add_u32 v{V_XB[ks]}, v2, 7, v5"]
    return L

def qp_compute(hc, extra=None):
    buf = hc % 3; first = hc == 0
    L = [f"v_add_u32 v1, {QP_W[buf]}, v{V_WB}", f"v_add_u32 v4, {QP_X[buf]}, v{V_XB[0]}", f"v_add_u32 v5, {QP_X[buf]}, v{V_XB[1]}"]
    def reads(ks, s):
        r = []
        for n in range(5): r.append(f"ds_read_b128 {R('v', QB[s]+4*n, 4)}, v{4+ks} offset:{n*2048}")
        for ep in range(2):
            for e in range(2):
                for hh in range(2):
                    r.append(f"ds_read_b64_tr_b16 {R('v', QA[s]+(ep*2+e)*4+2*hh, 2)}, v1 offset:{ks*16384+hh*2048+ep*256+e*8}")
        return [r[5], r[6], r[0]] + r[7:9] + [r[1]] + r[9:11] + [r[2]] + r[11:13] + [r[3], r[4]]
    def mf(ks, s):
        r = []
        for n in range(5):
            for ep in range(2):
                for e in range(2):
                    d = R('v', V_QD+((ep*2+e)*5+n)*4, 4)
                    c = "0" if (first and ks == 0) else d
                    r.append(f"v_mfma_f32_16x16x32_bf16 {d}, {R('v', QA[s]+(ep*2+e)*4, 4)}, {R('v', QB[s]+4*n, 4)}, {c}")
        return r
    L += reads(0, 0)
    m0 = mf(0, 0); r1 = reads(1, 1); m1 = mf(1, 1)
    ex = list(extra or [])
    for i in range(20):
        L.append(m0[i])
        if i < len(r1): L.append(r1[i])
        elif ex: L.append(ex.pop(0))
    for i in range(20):
        L.append(m1[i])
        if ex: L.append(ex.pop(0))
    L += ex
    return L

def q_finish():
    L = [f"s_mov_b32 s29, {hex(CSCALE)}"]
    L += [f"s_lshl_b32 s28, s{S_W}, 10", f"v_add_u32 v4, s28, v{V_L16}", f"v_add_u32 v4, {QBUF}, v4"]
    for ep in range(2):
        for n in range(5):
            d0 = V_QD + ((ep*2+0)*5+n)*4; d1 = V_QD + ((ep*2+1)*5+n)*4
            for r in range(4): L += [f"v_mul_f32 v{d0+r}, s29, v{d0+r}", f"v_mul_f32 v{d1+r}, s29, v{d1+r}"]
            t = 164 + ((ep*5+n) % 4)*4
            L += [f"v_cvt_pk_bf16_f32 v{t}, v{d0}, v{d0+1}", f"v_cvt_pk_bf16_f32 v{t+1}, v{d0+2}, v{d0+3}",
                  f"v_cvt_pk_bf16_f32 v{t+2}, v{d1}, v{d1+1}", f"v_cvt_pk_bf16_f32 v{t+3}, v{d1+2}, v{d1+3}",
                  f"ds_write_b128 v4, v[{t}:{t+3}] offset:{(ep*5+n)*4096}"]
    L += ["s_waitcnt lgkmcnt(0)", "s_barrier"]
    L += [f"s_mul_i32 s28, s{S_E}, 20480", f"v_add_u32 v4, s28, v{V_L16}", f"v_add_u32 v4, {QBUF}, v4"]
    for n in range(5):
        for j in range(4): L.append(f"ds_read_b128 {Qf(n, j)}, v4 offset:{(n*4+j)*1024}")
    return L

def nonce_code():
    L = [f"s_cmp_lg_u32 s{S_NONCE}, 0", "s_cbranch_scc1 L_have_nonce",
         f"s_lshl_b32 s28, s{S_B}, 5", "v_mov_b32 v4, s28", "s_mov_b32 s29, 0", "L_nonce_poll:",
         f"buffer_load_dword v5, v4, s[{S_DBG}:{S_DBG+3}], 0 offen sc1", "s_waitcnt vmcnt(0)", f"v_readfirstlane_b32 s{S_NONCE}, v5",
         f"s_cmp_lg_u32 s{S_NONCE}, 0", "s_cbranch_scc1 L_have_nonce", "s_add_u32 s29, s29, 1", "s_cmp_lt_u32 s29, 0x40000", "s_cbranch_scc0 L_have_nonce",
         "s_sleep 2", "s_branch L_nonce_poll", "L_have_nonce:"]
    return L
def nonce_publish():
    L = [f"s_or_b32 s28, s{S_G}, s{S_C}", f"s_or_b32 s28, s28, s{S_W}", "s_cmp_eq_u32 s28, 0", "s_cbranch_scc0 L_not_leader",
         "s_memrealtime s[28:29]", "s_waitcnt lgkmcnt(0)", "s_or_b32 s28, s28, 1", "v_mov_b32 v5, s28", f"s_lshl_b32 s29, s{S_B}, 5", "v_mov_b32 v4, s29",
         f"buffer_store_dword v5, v4, s[{S_DBG}:{S_DBG+3}], 0 offen sc1", "L_not_leader:"]
    return L

_uid = [0]
def uid():
    _uid[0] += 1; return _uid[0]
def set_flag(addr_s, payload):
    u = uid()
    return ["s_waitcnt vmcnt(0)", "s_barrier", f"s_cmp_eq_u32 s{S_W}, 0", f"s_cbranch_scc0 L_sf{u}",
            f"v_mov_b32 v4, s{addr_s}", f"v_mov_b32 v6, s{S_NONCE}", f"v_mov_b32 v7, {payload}", "s_mov_b64 exec, 1",
            f"buffer_store_dwordx2 v[6:7], v4, s[{S_WS}:{S_WS+3}], 0 offen sc1", "s_mov_b64 exec, -1", f"L_sf{u}:"]
def poll_flags(base_s, np_):
    u = uid()
    return [f"v_and_b32 v4, {np_-1}, v0", "v_lshlrev_b32 v4, 3, v4", f"v_add_u32 v4, s{base_s}, v4", "s_mov_b32 s29, 0", f"L_pf{u}:",
            f"buffer_load_dwordx2 v[6:7], v4, s[{S_WS}:{S_WS+3}], 0 offen sc1", "s_waitcnt vmcnt(0)",
            f"v_cmp_ne_u32 vcc, s{S_NONCE}, v6", f"s_cbranch_vccz L_pf{u}_ok", "s_add_u32 s29, s29, 1", "s_cmp_lt_u32 s29, 0x40000",
            f"s_cbranch_scc0 L_pf{u}_ok", "s_sleep 1", f"s_branch L_pf{u}", f"L_pf{u}_ok:"]

UNS = 87040
T1L = 81920
def wo_reads():
    L = []
    L += ["v_lshrrev_b32 v4, 2, v2", "v_lshl_add_u32 v4, v3, 2, v4", "v_and_b32 v5, 7, v4", "v_lshlrev_b32 v5, 1, v5",
          "v_and_b32 v6, 3, v0", "v_lshrrev_b32 v6, 1, v6", "v_and_b32 v7, 1, v0", "v_lshlrev_b32 v7, 3, v7", "v_lshl_add_u32 v7, v4, 8, v7",
          f"s_lshl_b32 s28, s{S_W}, 2"]
    for ep in range(2):
        L += [f"s_add_u32 s29, s28, {2*ep}", "v_add_u32 v1, s29, v6", "v_xor_b32 v1, v1, v5", f"v_lshl_add_u32 v{28+ep*3}, v1, 4, v7",
              f"v_add_u32 v{29+ep*3}, 0x10000, v{28+ep*3}", f"v_add_u32 v{30+ep*3}, 0x20000, v{28+ep*3}"]
    R_ = []
    for ks in range(16):
        p = ks >> 1
        for ep in range(2):
            for hh in range(2):
                addr = WO_LOC[p] + (32*(ks & 1) + 16*hh)*256
                reg = 28 + ep*3 + (addr >> 16)
                R_.append(f"ds_read_b64_tr_b16 a[{(ks*2+ep)*4+2*hh}:{(ks*2+ep)*4+2*hh+1}], v{reg} offset:{addr & 0xffff}")
    return L, R_

def t1_variant(kq):
    keep = V_O + (0 if kq == 0 else 80); tmp = V_O + (80 if kq == 0 else 0)
    W = []; Rd = []; Add = []; Cv = []
    for i in range(20):
        W.append(f"ds_write_b128 v4, v[{tmp+4*i}:{tmp+4*i+3}] offset:{i*1024}")
        Rd.append(f"ds_read_b128 v[{tmp+4*i}:{tmp+4*i+3}], v5 offset:{i*1024}")
    for i in range(80): Add.append(f"v_add_f32 v{keep+i}, v{keep+i}, v{tmp+i}")
    return keep, tmp, W, Rd, Add

def tail_t1(opt):
    st = opt.get("stamps")
    L = []
    pre, rd = wo_reads()
    L += pre
    L += ["s_waitcnt vmcnt(0)", "s_barrier"]
    L += rd
    for n in range(5): L.append(f"v_accvgpr_read_b32 v{34+n}, a{A_L+4*n}")
    L += [f"s_mul_i32 s28, s{S_W}, 20480", f"v_add_u32 v4, s28, v{V_L16}", f"s_xor_b32 s29, s{S_W}, 2", "s_mul_i32 s28, s29, 20480", f"v_add_u32 v5, s28, v{V_L16}"]
    L += ["v_lshlrev_b32 v6, 2, v0", f"v_add_u32 v6, {T1L}, v6", f"s_mul_i32 s28, s{S_W}, 1280", "v_add_u32 v7, s28, v6", "s_mul_i32 s28, s29, 1280", "v_add_u32 v6, s28, v6"]
    L += ["s_waitcnt lgkmcnt(0)", "s_barrier"]
    for n in range(5): L.append(f"ds_write_b32 v7, v{34+n} offset:{n*256}")
    L += [f"s_cmp_eq_u32 s{S_KQ}, 0", "s_cbranch_scc0 L_t1w1"]
    L += t1_variant(0)[2] + ["s_branch L_t1w_done", "L_t1w1:"] + t1_variant(1)[2] + ["L_t1w_done:"]
    L += ["s_waitcnt lgkmcnt(0)", "s_barrier"]
    for n in range(5): L.append(f"ds_read_b32 v{39+n}, v6 offset:{n*256}")
    L += [f"s_lshl_b32 s28, s{S_B}, 3", f"s_add_u32 s28, s28, s{S_G}", "s_mul_i32 s30, s28, 163840",
          f"s_and_b32 s29, s{S_C}, 2", f"s_add_u32 s29, s29, s{S_E}", "s_lshl_b32 s29, s29, 1", f"s_and_b32 s31, s{S_C}, 1", "s_add_u32 s29, s29, s31",
          "s_mov_b32 s67, s29", "s_mul_i32 s29, s29, 20480", "s_add_u32 s30, s30, s29", f"s_lshl_b32 s29, s{S_KQ}, 11", "s_add_u32 s30, s30, s29"]
    if WS_PART: L += [f"s_add_u32 s30, s30, {WS_PART}"]
    for kq in range(2):
        keep, tmp, W, Rd, Add = t1_variant(kq)
        if kq == 0: L += [f"s_cmp_eq_u32 s{S_KQ}, 0", "s_cbranch_scc0 L_t1r1"]
        V = Rd + Add
        for n in range(5):
            V.append(f"s_add_u32 s31, s30, {n*4096}")
            for jl in range(2):
                a = keep + ((2*jl)*5+n)*4; b = keep + ((2*jl+1)*5+n)*4
                V += [f"v_cvt_pk_bf16_f32 v{a}, v{a}, v{a+1}", f"v_cvt_pk_bf16_f32 v{a+1}, v{a+2}, v{a+3}",
                      f"v_cvt_pk_bf16_f32 v{a+2}, v{b}, v{b+1}", f"v_cvt_pk_bf16_f32 v{a+3}, v{b+2}, v{b+3}",
                      f"buffer_store_dwordx4 v[{a}:{a+3}], v{V_L16}, s[{S_WS}:{S_WS+3}], s31 offen offset:{jl*1024} sc1"]
        L += V
        L += ["s_branch L_t1r_done", "L_t1r1:"] if kq == 0 else ["L_t1r_done:", "s_waitcnt lgkmcnt(0)"]
    for n in range(5): L.append(f"v_add_f32 v{34+n}, v{34+n}, v{39+n}")
    L += [f"s_lshl_b32 s28, s{S_B}, 3", f"s_add_u32 s28, s28, s{S_G}", "s_lshl_b32 s28, s28, 12", f"s_add_u32 s28, s28, {WS_LP}", "s_lshl_b32 s29, s67, 2", "s_add_u32 s28, s28, s29",
          "v_lshlrev_b32 v4, 5, v2"]
    for n in range(5): L.append(f"buffer_store_dword v{34+n}, v4, s[{S_WS}:{S_WS+3}], s28 offen offset:{n*512} sc1")
    L += ["s_mov_b32 s29, 0x21800000", "s_mov_b32 s30, 0x5d800000", "s_mov_b64 s[90:91], 0"]
    for n in range(5):
        L += [f"v_cmp_nge_f32 vcc, v{34+n}, s29", "s_or_b64 s[90:91], s[90:91], vcc", f"v_cmp_nle_f32 vcc, v{34+n}, s30", "s_or_b64 s[90:91], s[90:91], vcc"]
    L += ["s_cmp_lg_u64 s[90:91], 0", "s_cselect_b32 s28, 1, 0", f"s_cmp_eq_u32 s{S_MODE}, 0", "s_cselect_b32 s28, s28, 0",
          "v_mov_b32 v5, s28", f"s_lshl_b32 s29, s{S_W}, 2", f"s_add_u32 s29, s29, {UNS}", "v_mov_b32 v4, s29", "ds_write_b32 v4, v5", "s_waitcnt lgkmcnt(0)"]
    return L

def flag_t2():
    u = uid()
    L = [f"s_lshl_b32 s28, s{S_B}, 3", f"s_add_u32 s28, s28, s{S_G}", "s_lshl_b32 s28, s28, 7", f"s_add_u32 s28, s28, {WS_FLAG}",
         f"s_cmp_eq_u32 s{S_MODE}, 0", f"s_cselect_b32 s29, {FL2}, {FL2B}", "s_add_u32 s31, s28, s29",
         f"s_lshl_b32 s29, s{S_C}, 3", "s_add_u32 s30, s31, s29",
         "s_waitcnt vmcnt(0)", "s_barrier", f"s_cmp_eq_u32 s{S_W}, 0", f"s_cbranch_scc0 L_sf{u}",
         "v_and_b32 v4, 3, v0", "v_lshlrev_b32 v4, 2, v4", f"v_add_u32 v4, {UNS}, v4", "ds_read_b32 v5, v4", "s_waitcnt lgkmcnt(0)",
         "v_cmp_ne_u32 vcc, 0, v5", "s_cmp_lg_u64 vcc, 0", "s_cselect_b32 s29, 1, 0",
         "v_mov_b32 v4, s30", f"v_mov_b32 v6, s{S_NONCE}", "v_mov_b32 v7, s29", "s_mov_b64 exec, 1",
         f"buffer_store_dwordx2 v[6:7], v4, s[{S_WS}:{S_WS+3}], 0 offen sc1", "s_mov_b64 exec, -1", f"L_sf{u}:"]
    L += poll_flags(31, 4)
    L += ["v_cmp_ne_u32 vcc, 0, v7", "s_cmp_lg_u64 vcc, 0", "s_cbranch_scc1 L_fallback"]
    return L

def t2_gemm(opt):
    L = []
    L += [f"s_lshl_b32 s28, s{S_B}, 3", f"s_add_u32 s28, s28, s{S_G}", "s_mul_i32 s30, s28, 163840", f"s_add_u32 s30, s30, {WS_PART}" if WS_PART else "s_nop 0",
          f"s_mul_i32 s31, s{S_W}, 5120", "s_add_u32 s30, s30, s31"]
    L += [f"s_lshl_b32 s28, s28, 12", f"s_add_u32 s28, s28, {WS_LP}", "v_lshlrev_b32 v4, 5, v2"]
    D_ = []
    for ck in range(8):
        D_ += [f"s_add_u32 s29, s30, {ck*20480}", f"s_add_u32 m0, s31, {ck*20480}"]
        for i in range(4): D_.append(dma(f"v{V_L16}", f"s[{S_WS}:{S_WS+3}]", "s29", i*1024, ("P", ck), "sc1"))
        D_ += ["s_add_u32 s29, s29, 4096", f"s_add_u32 m0, s31, {ck*20480+4096}"]
        D_.append(dma(f"v{V_L16}", f"s[{S_WS}:{S_WS+3}]", "s29", 0, ("P", ck), "sc1"))
    L += D_
    for n in range(5):
        L += [f"buffer_load_dwordx4 a[{128+n*8}:{131+n*8}], v4, s[{S_WS}:{S_WS+3}], s28 offen offset:{n*512} sc1",
              f"buffer_load_dwordx4 a[{132+n*8}:{135+n*8}], v4, s[{S_WS}:{S_WS+3}], s28 offen offset:{n*512+16} sc1"]
    L += [f"v_mov_b32 v248, v{V_L16}", f"v_add_u32 v249, 0x10000, v{V_L16}", f"v_add_u32 v250, 0x20000, v{V_L16}"]
    ACC = V_O
    BT = 28
    nb = 0
    for ck in range(8):
        hl = ck >> 1; first = (ck & 1) == 0
        L.append(P("s_barrier", need_vm=[("P", ck)]))
        reads = []; mfs = []
        for j in range(4):
            for n in range(5):
                addr = ck*20480 + (n*4+j)*1024
                breg = BT + (nb % 14)*4; nb += 1
                reads.append(f"ds_read_b128 v[{breg}:{breg+3}], v{248 + (addr >> 16)} offset:{addr & 0xffff}")
                mm = []
                for ep in range(2):
                    d = R('v', ACC + ((hl*2+ep)*5+n)*4, 4)
                    c = "0" if (first and j == 0) else d
                    ks = hl*4 + j
                    mm.append(f"v_mfma_f32_16x16x32_bf16 {d}, a[{(ks*2+ep)*4}:{(ks*2+ep)*4+3}], v[{breg}:{breg+3}], {c}")
                mfs.append(mm)
        AH = 6
        L += reads[:AH]
        for i in range(20):
            L.append(mfs[i][0])
            if i + AH < 20: L.append(reads[i+AH])
            L.append(mfs[i][1])
    for n in range(5):
        for hl in range(4):
            L += [f"v_accvgpr_read_b32 v4, a{128+n*8+2*hl}", f"v_accvgpr_read_b32 v5, a{128+n*8+2*hl+1}", "v_add_f32 v4, v4, v5", f"v_rcp_f32 v{8+hl*5+n}, v4"]
    for n in range(5):
        for ep in range(2):
            a0 = ACC + ((0*2+ep)*5+n)*4
            for r in range(4): L.append(f"v_mul_f32 v{a0+r}, v{a0+r}, v{8+n}")
            for hl in range(1, 4):
                a = ACC + ((hl*2+ep)*5+n)*4
                for r in range(4): L.append(f"v_fmac_f32 v{a0+r}, v{a+r}, v{8+hl*5+n}")
    L += [f"s_lshl_b32 s28, s{S_B}, 2", f"s_add_u32 s28, s28, s{S_C}", "s_mul_i32 s28, s28, 20", f"s_mul_i32 s29, s{S_W}, 5", "s_add_u32 s28, s28, s29",
          "s_lshl_b32 s28, s28, 3", f"s_add_u32 s28, s28, s{S_G}", "s_lshl_b32 s28, s28, 10", f"s_add_u32 s28, s28, {WS_OUTP}"]
    for n in range(5):
        a = ACC + ((0*2+0)*5+n)*4; b = ACC + ((0*2+1)*5+n)*4
        t = 28 + n*4
        L += [f"v_cvt_pk_bf16_f32 v{t}, v{a}, v{a+1}", f"v_cvt_pk_bf16_f32 v{t+1}, v{a+2}, v{a+3}",
              f"v_cvt_pk_bf16_f32 v{t+2}, v{b}, v{b+1}", f"v_cvt_pk_bf16_f32 v{t+3}, v{b+2}, v{b+3}",
              f"s_add_u32 s29, s28, {n*8192}", f"buffer_store_dwordx4 v[{t}:{t+3}], v{V_L16}, s[{S_WS}:{S_WS+3}], s29 offen sc1"]
    return L

def t3(opt):
    L = []
    L += [f"s_lshl_b32 s28, s{S_B}, 2", f"s_add_u32 s28, s28, s{S_C}", "s_mov_b32 s67, s28", "s_lshl_b32 s28, s28, 7", f"s_add_u32 s31, s28, {WS_FLAG+FL3}",
          f"s_lshl_b32 s29, s{S_G}, 3", "s_add_u32 s30, s31, s29"]
    L += ["v_lshrrev_b32 v4, 2, v2", "v_cmp_eq_u32 vcc, v4, v3", "v_and_b32 v5, 1, v0", "v_lshlrev_b32 v5, 4, v5", "v_mov_b32 v6, 0x3f80", "v_lshlrev_b32 v6, v5, v6",
          "v_cndmask_b32 v6, 0, v6, vcc",
          "v_and_b32 v5, 2, v0", "v_cmp_eq_u32 vcc, 0, v5", "v_cndmask_b32 v48, 0, v6, vcc", "v_cndmask_b32 v49, v6, 0, vcc" ]
    L += ["v_mov_b32 v50, 0", "v_mov_b32 v51, 0", "v_mov_b32 v52, 0", "v_mov_b32 v53, 0", "v_mov_b32 v54, v48", "v_mov_b32 v55, v49"]
    L += set_flag(30, 0)
    L += [f"s_lshl_b32 s28, s{S_G}, 2", f"s_add_u32 s28, s28, s{S_W}", "s_cmp_lt_u32 s28, 20", "s_cbranch_scc0 L_done", "s_mov_b32 s65, s28"]
    L += poll_flags(31, 8)
    L += ["s_mul_i32 s29, s67, 20", "s_add_u32 s29, s29, s65", "s_lshl_b32 s29, s29, 13", f"s_add_u32 s29, s29, {WS_OUTP}", "s_add_u32 s30, s29, 4096"]
    for gp in range(8):
        L.append(f"buffer_load_dwordx4 v[{84+4*gp}:{87+4*gp}], v{V_L16}, s[{S_WS}:{S_WS+3}], s{29 if gp < 4 else 30} offen offset:{(gp&3)*1024} sc1")
    for gp in range(8):
        L += [f"v_mfma_f32_16x16x32_bf16 v[60:63], v[48:51], v[{84+4*gp}:{87+4*gp}], {'0' if gp == 0 else 'v[60:63]'}",
              f"v_mfma_f32_16x16x32_bf16 v[64:67], v[52:55], v[{84+4*gp}:{87+4*gp}], {'0' if gp == 0 else 'v[64:67]'}"]
    L += ["s_mul_i32 s28, s65, 52", "s_lshr_b32 s28, s28, 8", "s_mul_i32 s29, s28, 5", "s_sub_u32 s29, s65, s29",
          "s_lshl_b32 s29, s29, 14", "s_lshl_b32 s28, s28, 6", "s_add_u32 s28, s28, s29", f"s_lshl_b32 s29, s{S_C}, 8", "s_add_u32 s28, s28, s29",
          f"s_mul_i32 s29, s{S_B}, 81920", "s_add_u32 s28, s28, s29", "v_lshlrev_b32 v4, 10, v2", "v_lshl_add_u32 v4, v3, 3, v4"]
    L += ["v_cvt_pk_bf16_f32 v68, v60, v61", "v_cvt_pk_bf16_f32 v69, v62, v63", "v_cvt_pk_bf16_f32 v70, v64, v65", "v_cvt_pk_bf16_f32 v71, v66, v67",
          f"buffer_store_dwordx2 v[68:69], v4, s[{S_OUT}:{S_OUT+3}], s28 offen", f"buffer_store_dwordx2 v[70:71], v4, s[{S_OUT}:{S_OUT+3}], s28 offen offset:32"]
    L += ["L_done:"]
    return L

def fallback():
    return ["L_fallback:", f"s_mov_b32 s{S_MODE}, 1", "s_barrier", "s_branch L_restart"]

def maxpass():
    L = ["s_waitcnt vmcnt(0) lgkmcnt(0)", "s_barrier"]
    MX = 244 + 6
    MXR = [76, 77, 78, 79, 80]
    for n in range(5): L.append(f"v_mov_b32 v{MXR[n]}, 0xff800000")
    L += ["s_mov_b32 s92, 0", "L_maxloop:", f"s_lshl_b32 s{S_TOFF}, s92, 13", f"s_add_u32 m0, s{S_M0K}, {3*16384}"]
    for i in range(4): L.append(dma(f"v{V_KD+i}", f"s[{S_KSRD}:{S_KSRD+3}]", f"s{S_TOFF}", i*1024, ("X", 0)))
    L += ["s_waitcnt vmcnt(0)", "s_barrier"]
    L += k_reads(3)
    L += ["s_waitcnt lgkmcnt(0)"]
    for n in range(5):
        for s in range(2):
            for j in range(4):
                d = R("v", V_S + s*4, 4)
                L.append(mfma16(d, Kf(s, j), Qf(n, j), "0" if j == 0 else d))
        m = MXR[n]
        L += [f"v_max3_f32 v{m}, v{V_S}, v{V_S+1}, v{m}", f"v_max3_f32 v{m}, v{V_S+2}, v{V_S+3}, v{m}",
              f"v_max3_f32 v{m}, v{V_S+4}, v{V_S+5}, v{m}", f"v_max3_f32 v{m}, v{V_S+6}, v{V_S+7}, v{m}"]
    L += ["s_barrier", "s_add_u32 s92, s92, 1", "s_cmp_lt_u32 s92, 16", "s_cbranch_scc1 L_maxloop"]
    for n in range(5):
        m = MXR[n]
        L += [f"v_mov_b32 v4, v{m}", f"v_permlane16_swap_b32 v4, v{m}", f"v_max_f32 v{m}, v4, v{m}",
              f"v_mov_b32 v4, v{m}", f"v_permlane32_swap_b32 v4, v{m}", f"v_max_f32 v{m}, v4, v{m}"]
    L += [f"s_lshl_b32 s28, s{S_B}, 3", f"s_add_u32 s28, s28, s{S_G}", "s_lshl_b32 s28, s28, 2", f"s_and_b32 s29, s{S_C}, 2", f"s_add_u32 s29, s29, s{S_E}", "s_add_u32 s28, s28, s29",
          "s_mul_i32 s93, s28, 5120", f"s_add_u32 s93, s93, {WS_MX}",
          f"s_and_b32 s29, s{S_C}, 1", "s_lshl_b32 s29, s29, 1", f"s_add_u32 s29, s29, s{S_KQ}", "s_mul_i32 s29, s29, 1280", "s_add_u32 s29, s29, s93", "v_lshlrev_b32 v5, 2, v0"]
    for n in range(5): L.append(f"buffer_store_dword v{MXR[n]}, v5, s[{S_WS}:{S_WS+3}], s29 offen offset:{n*256} sc1")
    L += [f"s_lshl_b32 s28, s{S_B}, 3", f"s_add_u32 s28, s28, s{S_G}", "s_lshl_b32 s28, s28, 7", f"s_add_u32 s31, s28, {WS_FLAG+FLF}", f"s_lshl_b32 s29, s{S_C}, 3", "s_add_u32 s30, s31, s29"]
    L += set_flag(30, 0) + poll_flags(31, 4)
    L += ["v_lshlrev_b32 v5, 2, v0"]
    for n in range(5):
        for k in range(4):
            L.append(f"s_add_u32 s29, s93, {k*1280}")
            L.append(f"buffer_load_dword v{V_S+k}, v5, s[{S_WS}:{S_WS+3}], s29 offen offset:{n*256} sc1")
        L += ["s_waitcnt vmcnt(0)", f"v_max3_f32 v4, v{V_S}, v{V_S+1}, v{V_S+2}", f"v_max_f32 v4, v4, v{V_S+3}"]
        for r in range(4): L.append(f"v_sub_f32 v{V_NEGM+n*4+r}, 0, v4")
    for t in range(3): L += tile_dma(t)
    return L

def kernel(opt):
    st = opt.get("stamps")
    L = setup0(opt)
    L += nonce_publish()
    L += ["L_restart:"]
    L += setup1(opt)
    for hc in range(3): L += qp_dma(hc)
    L += qp_lanebases() + ring_addrs()
    for i in range(4): L += ["v_mov_b32 v1, 0x3f803f80", f"v_accvgpr_write_b32 a{A_ONE+i}, v1"]
    for i in range(20): L.append(f"v_mov_b32 v{V_NEGM+i}, 0")
    L += stamp(0, st)
    for hc in range(8):
        L.append(P("s_barrier", need_vm=[("C", hc)]))
        extra = []
        if 1 <= hc <= 5: extra = qp_dma(hc + 2)
        if hc == 6: extra = tile_dma(0) + tile_dma(1)
        L += qp_compute(hc, extra)
    L += ["s_waitcnt lgkmcnt(0)", "s_barrier"]
    L += stamp(1, st)
    L += tile_dma(2)
    L += q_finish()
    S1, n1 = finalize(L)
    M = [f"s_cmp_eq_u32 s{S_MODE}, 0", "s_cbranch_scc1 L_attn"] + maxpass() + ["L_attn:"]
    S1b, n1b = finalize(M)
    vmq = [("T", 0)]*8 + [("T", 1)]*8 + [("T", 2)]*8
    body = PL(stamp(2, st) + (["s_waitcnt lgkmcnt(0)"] if st else [])) + [P("s_barrier", need_vm=[("T", 0)])] + k_reads(0) + build(opt)
    S2, _, _ = insert_waits(body, vm_outstanding=vmq)
    S2, n2 = check_hazards(S2)
    T = ["s_nop 7"] + stamp(3, st) + (["s_waitcnt lgkmcnt(0)"] if st else [])
    T += nonce_code()
    T += tail_t1(opt)
    T += stamp(4, st) + (["s_waitcnt lgkmcnt(0)"] if st else [])
    T += flag_t2()
    T += stamp(5, st) + (["s_waitcnt lgkmcnt(0)"] if st else [])
    T += t2_gemm(opt)
    T += stamp(6, st) + (["s_waitcnt lgkmcnt(0)"] if st else [])
    T += t3(opt)
    if st:
        T += ["s_memtime s[84:85]", "s_memrealtime s[86:87]", "s_waitcnt lgkmcnt(0)",
              "s_lshl_b32 s28, s2, 2", f"s_add_u32 s28, s28, s{S_W}", "s_lshl_b32 s28, s28, 6", f"s_add_u32 s28, s28, {WS_STAMP}", "v_mov_b32 v2, s28"]
        for k in range(7):
            T += [f"s_sub_u32 s29, s{72+2*k}, s{70+2*k}", "v_mov_b32 v3, s29", f"buffer_store_dword v3, v2, s[{S_WS}:{S_WS+3}], 0 offen offset:{4*k}", "s_nop 1"]
        for k, s in ((8, "s68"), (9, "s86")):
            T += [f"v_mov_b32 v3, {s}", f"buffer_store_dword v3, v2, s[{S_WS}:{S_WS+3}], 0 offen offset:{4*k}", "s_nop 1"]
    T += ["s_waitcnt vmcnt(0)", "s_endpgm"] + fallback() + ["L_end:", "s_endpgm"]
    S3, n3 = finalize(T)
    print(f"; nops inserted {n1} {n1b} {n2} {n3}", file=sys.stderr)
    return emit(S1) + "\n" + emit(S1b) + "\n" + emit(S2) + "\n" + emit(S3) + "\n"

def gen(opt):
    mc.OPT["flags"] = opt.get("flags", "nt")
    hdr = open("standalone__gqa_block_cached__near_ridge.s.ref").read().split("; Override")[0]
    s = hdr + "; @launch grid=(256,1,1) block=(256,1,1) lds=163840\n"
    s += f'.amdgcn_target "amdgcn-amd-amdhsa--gfx950"\n.text\n.globl {KN}\n.p2align 8\n.type {KN},@function\n{KN}:\n'
    s += kernel(opt)
    s += footer(vgpr=512, accum=256, name=KN)
    return s

if __name__ == "__main__":
    open("c1.s", "w").write(gen({}))
    open("c1_st.s", "w").write(gen({"stamps": True}))
```

```python
from sched import *

V_KA = 8
V_VA = 12
V_KD = 20
V_VD = 24
V_L16 = 252
V_WD = 244
V_NEGM = 28
V_S = 48
V_P = 72
V_O = 84
A_Q = 0
A_K = 80
A_V = 112
A_L = 144
A_ONE = 164
S_KSRD = 12; S_VSRD = 16; S_WOSRD = 52
S_M0K = 24
S_TOFF = 26
S_WOFF = 95
S_W4K = 25
NT = 16
D = 4
OPT = {"flags": "nt"}
WO_LOC = [131072, 147456, 0, 65536, 16384, 81920, 32768, 98304]

def Sreg(G, s, r=None):
    b = V_S + (G % 3)*8 + s*4
    return R("v", b, 4) if r is None else f"v{b+r}"
def Preg(G, i=None):
    b = V_P + (G % 3)*4
    return R("v", b, 4) if i is None else f"v{b+i}"
def Kf(s, j): return R("a", A_K + (s*4+j)*4, 4)
def Vf(dt, h=None):
    b = A_V + dt*4
    return R("a", b, 4) if h is None else R("a", b+2*h, 2)
def Qf(n, j): return R("a", A_Q + (n*4+j)*4, 4)
def Of(dt, n): return R("v", V_O + (dt*5+n)*4, 4)
def Lf(n): return R("a", A_L + n*4, 4)

def qk_mfmas(G):
    n = G % 5
    L = []
    for s in range(2):
        for j in range(4):
            c = R("v", V_NEGM + n*4, 4) if j == 0 else Sreg(G, s)
            L.append(mfma16(Sreg(G, s), Kf(s, j), Qf(n, j), c, tag=("qk", G, s, j)))
    return L
def pv_mfmas(G):
    n = G % 5
    first = G < 5
    L = [mfma16(Of(dt, n), Vf(dt), Preg(G), "0" if first else Of(dt, n), tag=("pv", G, dt)) for dt in range(8)]
    L.append(mfma16(Lf(n), R("a", A_ONE, 4), Preg(G), "0" if first else Lf(n), tag=("l", G)))
    return L
def softmax_fillers(G):
    e = [vexp(Sreg(G, s, r), Sreg(G, s, r)) for s in range(2) for r in range(4)]
    c = [vcvtpk(Preg(G, i), Sreg(G, i//2, (i%2)*2), Sreg(G, i//2, (i%2)*2+1)) for i in range(4)]
    return [e[0], e[1], e[2], c[0], e[3], e[4], c[1], e[5], e[6], c[2], e[7], c[3]]
def k_reads(t):
    sl = (t % D)*16384
    return [ds_read128(Kf(s, j), f"v{V_KA+j}", sl + s*4096) for s in range(2) for j in range(4)]
def v_reads(t):
    sl = (t % D)*16384
    return [ds_read_tr(Vf(dt, h), f"v{V_VA+dt}", sl + h*4096) for dt in range(8) for h in range(2)]
def tile_dma(t):
    sl = (t % D)*16384
    if OPT.get("rot"):
        L = [salu(f"s_xor_b32 s{S_TOFF}, s{S_ROT}, {t*8192}"), salu(f"s_add_u32 m0, s{S_M0K}, {sl}")]
    else:
        L = [salu(f"s_mov_b32 s{S_TOFF}, {t*8192}"), salu(f"s_add_u32 m0, s{S_M0K}, {sl}")]
    for i in range(4): L.append(dma(f"v{V_KD+i}", f"s[{S_KSRD}:{S_KSRD+3}]", f"s{S_TOFF}", i*1024, ("T", t), OPT["flags"]))
    L.append(salu(f"s_add_u32 m0, s{S_M0K}, {sl + 8192}"))
    for i in range(4): L.append(dma(f"v{V_VD+(i&1)}", f"s[{S_VSRD}:{S_VSRD+3}]", f"s{S_TOFF}", i*1024, ("T", t), OPT["flags"]))
    return L
def wo_dma(p):
    base = S_WOBASE if (p >> 1) < 2 else S_WOBASE2
    L = [salu(f"s_add_u32 s{S_WOFF}, s{base}, {((p >> 1) & 1)*131072 + (p & 1)*65536}"), salu(f"s_add_u32 m0, s{S_W4K}, {WO_LOC[p]}")]
    for i in range(4): L.append(dma(f"v{V_WD+i}", f"s[{S_WOSRD}:{S_WOSRD+3}]", f"s{S_WOFF}", i*1024, ("W", p)))
    return L
S_WOBASE2 = 96
S_ROT = 100
S_WOBASE = 94

class F:
    def __init__(s, ins, lo, hi): s.ins = ins; s.lo = lo; s.hi = hi

def place(mf, chains, cap=8, fixed=None):
    stream = []
    ptr = [0]*len(chains)
    for m, ins in enumerate(mf):
        if fixed and m in fixed: stream += fixed[m]
        stream.append(ins)
        used = 0
        while True:
            cand = []
            for c, ch in enumerate(chains):
                if ptr[c] < len(ch) and ch[ptr[c]].lo <= m:
                    cand.append((ch[ptr[c]].hi, c))
            if not cand: break
            cand.sort()
            placed = False
            for hi, c in cand:
                f = chains[c][ptr[c]]
                if used + f.ins.cost <= cap or hi <= m:
                    stream.append(f.ins); used += f.ins.cost; ptr[c] += 1; placed = True
                    break
            if not placed: break
    for c, ch in enumerate(chains):
        assert ptr[c] == len(ch), (c, ptr[c], len(ch))
    return stream

def spaced(instrs, start, sp, win):
    out = []; k = 0
    for ins in instrs:
        lo = start + k*sp
        out.append(F(ins, lo, lo + win))
        if ins.kind == "dma": k += 1
    return out

def build(opt):
    nt = NT
    nG = 5*nt
    mf = []; qk_idx = {}; pv_idx = {}
    for X in range(nG + 2):
        if X < nG:
            qk_idx[X] = len(mf); mf += qk_mfmas(X)
        if 0 <= X-2 < nG:
            pv_idx[X-2] = len(mf); mf += pv_mfmas(X-2)
    allf = []
    for G in range(nG):
        fl = softmax_fillers(G)
        lo0 = qk_idx[G] + 3 + 5; lo1 = qk_idx[G] + 7 + 5
        hi = pv_idx[G] - 2
        for k, ins in enumerate(fl):
            allf.append(F(ins, min(lo1 if k >= 5 else lo0, hi), hi))
    kr = []; vr_ = []; dm = []
    fixed = {}
    sp = opt.get("space", 8); st0 = opt.get("dstart", 8); win = opt.get("dwin", 6)
    for idx, ins in enumerate(v_reads(0)):
        vr_.append(F(ins, 2 + idx//2, pv_idx[0] - 4))
    for t in range(1, nt):
        G = 5*t - 1
        fixed[qk_idx[G]] = [P("s_barrier", need_vm=[("T", t)])]
        ms = opt.get("mainstamps")
        if ms and t in ms:
            k = ms.index(t)
            fixed[qk_idx[G]].append(P(f"s_memtime s[{72+2*k}:{73+2*k}]"))
        for idx, ins in enumerate(k_reads(t)):
            kr.append(F(ins, qk_idx[G] + idx, qk_idx[G+1] + idx - 4))
        for idx, ins in enumerate(v_reads(t)):
            dt = idx // 2
            vr_.append(F(ins, pv_idx[G] + dt, pv_idx[G+1] + dt - 4))
        base = qk_idx[G] + st0
        if t == 1:
            dm += spaced(tile_dma(3), base, 4, win) + spaced(tile_dma(4), base + 34, 4, win)
        elif t - 1 + D < nt:
            items = tile_dma(t - 1 + D)
            if opt.get("wo", True) and t in (6, 7):
                dm += spaced(items, base, sp - 2, win) + spaced(wo_dma(t - 6), base + 8*(sp-2), 4, win)
            else:
                dm += spaced(items, base, sp, win)
        elif opt.get("wo", True):
            k = t - 1 + D - nt
            dm += spaced(wo_dma(2 + 2*k) + wo_dma(3 + 2*k), base, sp, win)
    return place(mf, [allf, kr, vr_, dm], opt.get("cap", 8), fixed)
```

```python
import sys, struct, math
from asmlib import *
from sched import *
import mainc2 as mc
from mainc2 import *

KN = "standalone__gqa_block_cached__near_ridge_kernel"
CSCALE = struct.unpack("<I", struct.pack("<f", math.log2(math.e)/math.sqrt(128.0)))[0]

WS_PART = 0x0000000
WS_LP   = 0x0B00000
WS_OUTP = 0x0C00000
WS_FLAG = 0x1200000
WS_MX   = 0x1300000
WS_STAMP= 0x1400000
WS_DUMP = 0x1800000
WS_SIZE = 0x4000000
FL2, FL3, FL2B, FLF = 0, 0x4000, 0x8000, 0xC000
S_W, S_B, S_C, S_G = 20, 21, 22, 23
S_MODE = 27
S_X, S_WQ, S_WS, S_OUT, S_DBG = 32, 36, 40, 56, 60
S_NONCE = 64
S_E, S_KQ = 65, 66
QP_W = [32768, 98304, 0]
QP_X = [151552, 131072, 65536]
QBUF = 114688
V_XD = 236; V_WQD = 239
V_WB = 243
V_XB = (248, 249)
V_QD = 84
QA = [164, 200]; QB = [180, 216]

MS = [None]
def stamp(i, on):
    if MS[0]:
        if i == MS[0][0]: return ['s_memtime s[70:71]']
        if i == MS[0][1]: return ['s_memtime s[86:87]']
        return []
    return [f"s_memtime s[{70+2*i}:{71+2*i}]"] if on else []

def setup0(opt):
    L = ["s_cmp_ge_u32 s2, 256", "s_cbranch_scc1 L_end",
         "s_load_dwordx8 s[4:11], s[0:1], 0", "s_load_dwordx4 s[44:47], s[0:1], 32", "s_load_dwordx4 s[48:51], s[0:1], 48"]
    if opt.get("stamps"): L += ["s_memrealtime s[68:69]"]
    L += ["v_lshrrev_b32 v1, 6, v0", "v_and_b32 v0, 63, v0", f"v_readfirstlane_b32 s{S_W}, v1",
          f"s_and_b32 s{S_G}, s2, 7", f"s_lshr_b32 s{S_C}, s2, 3", f"s_and_b32 s{S_C}, s{S_C}, 3", f"s_lshr_b32 s{S_B}, s2, 5",
          f"s_and_b32 s{S_E}, s{S_W}, 1", f"s_lshr_b32 s{S_KQ}, s{S_W}, 1", f"s_mov_b32 s{S_MODE}, 0", f"s_mov_b32 s{S_NONCE}, 0",
          "s_memrealtime s[66+0:67+0]" if False else "s_nop 0",
          "s_waitcnt lgkmcnt(0)"]
    L += [f"s_lshl_b32 s28, s{S_B}, 3", f"s_add_u32 s28, s28, s{S_G}", "s_lshl_b32 s28, s28, 19",
          f"s_and_b32 s29, s{S_C}, 1", "s_lshl_b32 s29, s29, 18", "s_add_u32 s28, s28, s29",
          f"s_lshl_b32 s29, s{S_KQ}, 17", "s_add_u32 s28, s28, s29"]
    L += ["s_add_u32 s12, s6, s28", "s_addc_u32 s13, s7, 0", "s_and_b32 s13, s13, 0xffff", "s_mov_b32 s14, 0x20000", "s_mov_b32 s15, 0x20000"]
    L += ["s_add_u32 s16, s8, s28", "s_addc_u32 s17, s9, 0", "s_and_b32 s17, s17, 0xffff", "s_mov_b32 s18, 0x20000", "s_mov_b32 s19, 0x20000"]
    L += [f"s_mul_i32 s28, s{S_B}, 81920", f"s_add_u32 s{S_X}, s4, s28", f"s_addc_u32 s{S_X+1}, s5, 0", f"s_and_b32 s{S_X+1}, s{S_X+1}, 0xffff",
          f"s_mov_b32 s{S_X+2}, 81920", f"s_mov_b32 s{S_X+3}, 0x20000"]
    L += srd(S_WQ, 10, 512*4096*2) + srd(S_WS, 50, WS_SIZE) + srd(S_WOSRD, 44, 4096*512*2) + srd(S_OUT, 46, 8*80*512*2) + srd(S_DBG, 48, 256)
    return L

def setup1(opt):
    L = ["v_and_b32 v2, 15, v0", "v_lshrrev_b32 v3, 4, v0", f"v_lshlrev_b32 v{V_L16}, 4, v0"]
    L += ["v_lshrrev_b32 v4, 3, v0", f"s_mul_i32 s28, s{S_W}, 24", "v_add_u32 v4, s28, v4", "v_and_b32 v5, 7, v0"]
    for m in range(3):
        L += [f"v_add_u32 v6, {8*m}, v4", "v_lshrrev_b32 v7, 1, v6", "v_and_b32 v7, 7, v7", "v_xor_b32 v7, v7, v5", "v_lshlrev_b32 v7, 4, v7",
              "v_lshl_add_u32 v7, v6, 10, v7", f"v_subrev_u32 v{V_XD+m}, {m*1024}, v7"]
    L += ["v_lshrrev_b32 v4, 5, v0", f"s_lshl_b32 s28, s{S_W}, 4", "v_and_b32 v5, 16, v0"]
    for i in range(4):
        L += [f"v_add_u32 v6, {2*i}, v4", "v_and_b32 v7, 3, v6", "v_lshlrev_b32 v7, 2, v7", "v_xor_b32 v7, v7, v2", "v_or_b32 v7, v7, v5", "v_lshlrev_b32 v7, 4, v7",
              "v_add_u32 v6, s28, v6", "v_lshl_add_u32 v7, v6, 13, v7", f"v_subrev_u32 v{V_WQD+i}, {i*1024}, v7"]
    L += [f"s_add_u32 s28, s{S_C}, s{S_B}", "s_and_b32 s28, s28, 3", "s_lshl_b32 s28, s28, 1", f"s_lshr_b32 s29, s{S_B}, 2", "s_add_u32 s67, s28, s29"]
    L += [f"s_lshl_b32 s28, s{S_G}, 2", f"s_and_b32 s29, s{S_C}, 2", "s_add_u32 s28, s28, s29", "s_lshl_b32 s31, s28, 8"]
    return L

def qp_dma(hc):
    buf = hc % 3; tag = ("C", hc)
    L = [f"s_add_u32 s28, s67, {hc}", "s_and_b32 s28, s28, 7",
         "s_lshl_b32 s29, s28, 7",
         f"s_mul_i32 s30, s{S_W}, 3072", f"s_add_u32 m0, s30, {QP_X[buf]}"]
    for m in range(3): L.append(dma(f"v{V_XD+m}", f"s[{S_X}:{S_X+3}]", "s29", m*1024, tag))
    L += ["s_lshl_b32 s29, s28, 19", "s_add_u32 s29, s29, s31", f"s_lshl_b32 s30, s{S_W}, 13", f"s_add_u32 m0, s30, {QP_W[buf]}"]
    for i in range(4): L.append(dma(f"v{V_WQD+i}", f"s[{S_WQ}:{S_WQ+3}]", "s29", i*1024, tag))
    L += ["s_add_u32 s29, s29, 65536", f"s_add_u32 m0, s30, {QP_W[buf]+4096}"]
    for i in range(4): L.append(dma(f"v{V_WQD+i}", f"s[{S_WQ}:{S_WQ+3}]", "s29", i*1024, tag))
    return L

def ring_addrs():
    L = []
    L += [f"s_lshl_b32 s28, s{S_KQ}, 16", f"s_lshl_b32 s29, s{S_E}, 12", f"s_add_u32 s{S_M0K}, s28, s29", f"s_lshl_b32 s{S_W4K}, s{S_W}, 12"]
    L += [f"s_lshl_b32 s29, s{S_E}, 4", "v_add_u32 v4, s29, v3", "v_xor_b32 v6, v2, v3"]
    for i in range(4):
        L += [f"v_xor_b32 v5, {4*i}, v6", "v_lshlrev_b32 v5, 4, v5", f"v_lshl_add_u32 v{V_KD+i}, v4, 8, v5"]
    for i in range(2):
        L += [f"v_add_u32 v5, {4*i}, v3", "v_lshlrev_b32 v5, 1, v5", "v_xor_b32 v5, v5, v2", "v_lshlrev_b32 v5, 4, v5", f"v_lshl_add_u32 v{V_VD+i}, v4, 8, v5"]
    for j in range(4):
        L += [f"v_add_u32 v5, {4*j}, v3", "v_xor_b32 v5, v5, v2", "v_lshlrev_b32 v5, 4, v5", "v_lshl_add_u32 v5, v2, 8, v5", f"v_add_u32 v{V_KA+j}, s28, v5"]
    L += ["v_lshrrev_b32 v4, 2, v2", "v_lshl_add_u32 v4, v3, 2, v4", "v_and_b32 v5, 7, v4", "v_lshlrev_b32 v5, 1, v5",
          "v_and_b32 v6, 3, v0", "v_lshrrev_b32 v6, 1, v6", "v_and_b32 v7, 1, v0", "v_lshlrev_b32 v7, 3, v7",
          "v_lshl_add_u32 v7, v4, 8, v7", "s_add_u32 s28, s28, 8192", "v_add_u32 v7, s28, v7"]
    for dt in range(8):
        L += [f"v_add_u32 v1, {2*dt}, v6", "v_xor_b32 v1, v1, v5", f"v_lshl_add_u32 v{V_VA+dt}, v1, 4, v7"]
    L += [f"s_lshl_b32 s29, s{S_W}, 4", "v_add_u32 v4, s29, v3"]
    for i in range(4):
        L += [f"v_add_u32 v5, {4*(i&1)}, v3", "v_lshlrev_b32 v5, 1, v5", "v_xor_b32 v5, v5, v2", "v_lshlrev_b32 v5, 4, v5",
              f"v_add_u32 v6, {4*i}, v4", "v_lshl_add_u32 v5, v6, 10, v5", f"v_subrev_u32 v{V_WD+i}, {i*1024}, v5"]
    rotm = mc.OPT.get("rot") or 0
    L += [f"s_lshr_b32 s{S_ROT}, s{S_C}, 1", f"s_mul_i32 s{S_ROT}, s{S_ROT}, {rotm*8192}"]
    L += [f"s_lshl_b32 s{S_WOBASE}, s{S_G}, 19", f"s_lshl_b32 s29, s{S_C}, 8", f"s_add_u32 s{S_WOBASE}, s{S_WOBASE}, s29",
          f"s_and_b32 s29, s{S_C}, 2", "s_xor_b32 s28, s29, 2", "s_lshl_b32 s29, s29, 17", "s_lshl_b32 s28, s28, 17",
          f"s_add_u32 s{S_WOBASE2}, s{S_WOBASE}, s28", f"s_add_u32 s{S_WOBASE}, s{S_WOBASE}, s29"]
    return L

def qp_lanebases():
    L = ["v_lshrrev_b32 v4, 2, v2", f"v_xor_b32 v5, s{S_W}, v4", "v_lshlrev_b32 v5, 6, v5", "v_lshl_add_u32 v6, v3, 3, v4", "v_lshl_add_u32 v5, v6, 9, v5",
         "v_and_b32 v6, 3, v0", f"v_lshl_add_u32 v{V_WB}, v6, 4, v5"]
    for ks in range(2):
        L += [f"v_add_u32 v5, {4*ks}, v3", "v_lshrrev_b32 v6, 1, v2", "v_xor_b32 v5, v5, v6", "v_lshlrev_b32 v5, 4, v5", f"v_lshl_add_u32 v{V_XB[ks]}, v2, 7, v5"]
    return L

def qp_reads(hc, ks):
    buf = hc % 3; st = ks
    xa = 4 + ks if False else V_QXA[hc % 2][ks]; wa = V_QWA[hc % 2]
    r = []
    for n in range(5): r.append(P(f"ds_read_b128 {R('v', QB[st]+4*n, 4)}, v{xa} offset:{n*2048}"))
    for ep in range(2):
        for e in range(2):
            for hh in range(2):
                r.append(P(f"ds_read_b64_tr_b16 {R('v', QA[st]+(ep*2+e)*4+2*hh, 2)}, v{wa} offset:{ks*16384+hh*2048+ep*256+e*8}"))
    return [r[5], r[6], r[0]] + r[7:9] + r[9:11] + r[11:13] + [r[1], r[2], r[3], r[4]]
def qp_addr(hc):
    buf = hc % 3
    return [P(f"v_add_u32 v{V_QWA[hc%2]}, {QP_W[buf]}, v{V_WB}"), P(f"v_add_u32 v{V_QXA[hc%2][0]}, {QP_X[buf]}, v{V_XB[0]}"),
            P(f"v_add_u32 v{V_QXA[hc%2][1]}, {QP_X[buf]}, v{V_XB[1]}")]
def qp_mfmas(hc, ks):
    r = []
    for n in range(5):
        for ep in range(2):
            for e in range(2):
                d = R('v', V_QD+((ep*2+e)*5+n)*4, 4)
                c = "0" if (hc == 0 and ks == 0) else d
                r.append(P(f"v_mfma_f32_16x16x32_bf16 {d}, {R('v', QA[ks]+(ep*2+e)*4, 4)}, {R('v', QB[ks]+4*n, 4)}, {c}"))
    return r
V_QWA = (250, 251); V_QXA = ((48, 49), (50, 51))

def qproj(opt):
    mf = []; idx = {}
    for hc in range(8):
        for ks in range(2):
            idx[(hc, ks)] = len(mf); mf += qp_mfmas(hc, ks)
    fixed = {}; rd = []; dm = []; misc = []
    pre = [P("s_barrier", need_vm=[("C", 0)])] + qp_addr(0) + qp_reads(0, 0)
    sp = opt.get("qsp", 3)
    for k, ins in enumerate(qp_reads(0, 1)): rd.append(F(ins, idx[(0, 0)] + k//2, idx[(0, 1)] - 3))
    for hc in range(1, 8):
        bpos = idx[(hc-1, 1)]
        fixed[bpos] = [P("s_waitcnt lgkmcnt(0)"), P("s_barrier", need_vm=[("C", hc)])] + qp_addr(hc)
        for k, ins in enumerate(qp_reads(hc, 0)): rd.append(F(ins, bpos + k//2, idx[(hc, 0)] - 3))
        for k, ins in enumerate(qp_reads(hc, 1)): rd.append(F(ins, idx[(hc, 0)] + k//2, idx[(hc, 1)] - 3))
    def sched(items, start, end):
        n = sum(1 for i in items if i.kind == "dma")
        step = max(1, (end - start) // max(n, 1))
        out = []; k = 0
        for ins in items:
            lo = min(start + k*step, end - 1)
            out.append(F(ins, lo, lo + step))
            if ins.kind == "dma": k += 1
        return out
    dm += sched(PL(qp_dma(2)), idx[(0, 0)], idx[(0, 1)])
    for hc in range(1, 6):
        dm += sched(PL(qp_dma(hc+2)), idx[(hc-1, 1)] + 1, idx[(hc, 1)])
    nl = PL([f"s_lshl_b32 s28, s{S_B}, 5", "v_mov_b32 v27, s28", f"buffer_load_dword v{V_NONCE}, v27, s[{S_DBG}:{S_DBG+3}], 0 offen sc1"])
    dm += sched(nl + tile_dma(0) + tile_dma(1), idx[(5, 1)] + 1, idx[(7, 0)])
    stream = pre + place(mf, [rd, dm], 8, fixed)
    return stream
V_NONCE = 253

def q_finish():
    L = [f"s_mov_b32 s29, {hex(CSCALE)}"]
    L += [f"s_lshl_b32 s28, s{S_W}, 10", f"v_add_u32 v4, s28, v{V_L16}", f"v_add_u32 v4, {QBUF}, v4"]
    for ep in range(2):
        for n in range(5):
            d0 = V_QD + ((ep*2+0)*5+n)*4; d1 = V_QD + ((ep*2+1)*5+n)*4
            for r in range(4): L += [f"v_mul_f32 v{d0+r}, s29, v{d0+r}", f"v_mul_f32 v{d1+r}, s29, v{d1+r}"]
            t = 164 + ((ep*5+n) % 4)*4
            L += [f"v_cvt_pk_bf16_f32 v{t}, v{d0}, v{d0+1}", f"v_cvt_pk_bf16_f32 v{t+1}, v{d0+2}, v{d0+3}",
                  f"v_cvt_pk_bf16_f32 v{t+2}, v{d1}, v{d1+1}", f"v_cvt_pk_bf16_f32 v{t+3}, v{d1+2}, v{d1+3}",
                  f"ds_write_b128 v4, v[{t}:{t+3}] offset:{(ep*5+n)*4096}"]
    L += ["s_waitcnt lgkmcnt(0)", "s_barrier"]
    L += [f"s_mul_i32 s28, s{S_E}, 20480", f"v_add_u32 v4, s28, v{V_L16}", f"v_add_u32 v4, {QBUF}, v4"]
    for n in range(5):
        for j in range(4): L.append(f"ds_read_b128 {Qf(n, j)}, v4 offset:{(n*4+j)*1024}")
    return L

def nonce_code():
    L = [f"s_cmp_lg_u32 s{S_NONCE}, 0", "s_cbranch_scc1 L_have_nonce", f"v_readfirstlane_b32 s{S_NONCE}, v{V_NONCE}",
         f"s_cmp_lg_u32 s{S_NONCE}, 0", "s_cbranch_scc1 L_have_nonce",
         f"s_lshl_b32 s28, s{S_B}, 5", "v_mov_b32 v4, s28", "s_mov_b32 s29, 0", "L_nonce_poll:",
         f"buffer_load_dword v5, v4, s[{S_DBG}:{S_DBG+3}], 0 offen sc1", "s_waitcnt vmcnt(0)", f"v_readfirstlane_b32 s{S_NONCE}, v5",
         f"s_cmp_lg_u32 s{S_NONCE}, 0", "s_cbranch_scc1 L_have_nonce", "s_add_u32 s29, s29, 1", "s_cmp_lt_u32 s29, 0x40000", "s_cbranch_scc0 L_have_nonce",
         "s_sleep 2", "s_branch L_nonce_poll", "L_have_nonce:"]
    return L
def nonce_publish():
    L = [f"s_or_b32 s28, s{S_G}, s{S_C}", f"s_or_b32 s28, s28, s{S_W}", "s_cmp_eq_u32 s28, 0", "s_cbranch_scc0 L_not_leader",
         "s_memrealtime s[28:29]", "s_waitcnt lgkmcnt(0)", "s_or_b32 s28, s28, 1", "v_mov_b32 v5, s28", f"s_lshl_b32 s29, s{S_B}, 5", "v_mov_b32 v4, s29",
         f"buffer_store_dword v5, v4, s[{S_DBG}:{S_DBG+3}], 0 offen sc1", "L_not_leader:"]
    return L

_uid = [0]
def uid():
    _uid[0] += 1; return _uid[0]
def set_flag(addr_s, payload):
    u = uid()
    return ["s_waitcnt vmcnt(0)", "s_barrier", f"s_cmp_eq_u32 s{S_W}, 0", f"s_cbranch_scc0 L_sf{u}",
            f"v_mov_b32 v4, s{addr_s}", f"v_mov_b32 v6, s{S_NONCE}", f"v_mov_b32 v7, {payload}", "s_mov_b64 exec, 1",
            f"buffer_store_dwordx2 v[6:7], v4, s[{S_WS}:{S_WS+3}], 0 offen sc1", "s_mov_b64 exec, -1", f"L_sf{u}:"]
def poll_flags(base_s, np_):
    u = uid()
    return [f"v_and_b32 v4, {np_-1}, v0", "v_lshlrev_b32 v4, 3, v4", f"v_add_u32 v4, s{base_s}, v4", "s_mov_b32 s29, 0", f"L_pf{u}:",
            f"buffer_load_dwordx2 v[6:7], v4, s[{S_WS}:{S_WS+3}], 0 offen sc1", "s_waitcnt vmcnt(0)",
            f"v_cmp_ne_u32 vcc, s{S_NONCE}, v6", f"s_cbranch_vccz L_pf{u}_ok", "s_add_u32 s29, s29, 1", "s_cmp_lt_u32 s29, 0x40000",
            f"s_cbranch_scc0 L_pf{u}_ok", "s_sleep 1", f"s_branch L_pf{u}", f"L_pf{u}_ok:"]

CLOC = [122880, 0, 143360, 20480, 40960, 61440, 81920, 102400]
CORD = [0, 2, 1, 3, 4, 5, 6, 7]
UNS = 87040
T1L = 81920
def wo_reads():
    L = []
    L += ["v_lshrrev_b32 v4, 2, v2", "v_lshl_add_u32 v4, v3, 2, v4", "v_and_b32 v5, 7, v4", "v_lshlrev_b32 v5, 1, v5",
          "v_and_b32 v6, 3, v0", "v_lshrrev_b32 v6, 1, v6", "v_and_b32 v7, 1, v0", "v_lshlrev_b32 v7, 3, v7", "v_lshl_add_u32 v7, v4, 8, v7",
          f"s_lshl_b32 s28, s{S_W}, 2"]
    for ep in range(2):
        L += [f"s_add_u32 s29, s28, {2*ep}", "v_add_u32 v1, s29, v6", "v_xor_b32 v1, v1, v5", f"v_lshl_add_u32 v{28+ep*3}, v1, 4, v7",
              f"v_add_u32 v{29+ep*3}, 0x10000, v{28+ep*3}", f"v_add_u32 v{30+ep*3}, 0x20000, v{28+ep*3}"]
    R_ = []
    for ks in range(16):
        p = ks >> 1
        for ep in range(2):
            for hh in range(2):
                addr = WO_LOC[p] + (32*(ks & 1) + 16*hh)*256
                reg = 28 + ep*3 + (addr >> 16)
                R_.append(f"ds_read_b64_tr_b16 a[{(ks*2+ep)*4+2*hh}:{(ks*2+ep)*4+2*hh+1}], v{reg} offset:{addr & 0xffff}")
    return L, R_

def t1_variant(kq):
    keep = V_O + (0 if kq == 0 else 80); tmp = V_O + (80 if kq == 0 else 0)
    W = []; Rd = []; Add = []; Cv = []
    for i in range(20):
        W.append(f"ds_write_b128 v4, v[{tmp+4*i}:{tmp+4*i+3}] offset:{i*1024}")
        Rd.append(f"ds_read_b128 v[{tmp+4*i}:{tmp+4*i+3}], v5 offset:{i*1024}")
    for i in range(80): Add.append(f"v_add_f32 v{keep+i}, v{keep+i}, v{tmp+i}")
    return keep, tmp, W, Rd, Add

def tail_t1(opt):
    st = opt.get("stamps")
    L = []
    pre, rd = wo_reads()
    L += pre
    L += ["s_waitcnt vmcnt(0)", "s_barrier"]
    L += rd
    for n in range(5): L.append(f"v_accvgpr_read_b32 v{34+n}, a{A_L+4*n}")
    L += [f"s_mul_i32 s28, s{S_W}, 20480", f"v_add_u32 v4, s28, v{V_L16}", f"s_xor_b32 s29, s{S_W}, 2", "s_mul_i32 s28, s29, 20480", f"v_add_u32 v5, s28, v{V_L16}"]
    L += ["v_lshlrev_b32 v6, 2, v0", f"v_add_u32 v6, {T1L}, v6", f"s_mul_i32 s28, s{S_W}, 1280", "v_add_u32 v7, s28, v6", "s_mul_i32 s28, s29, 1280", "v_add_u32 v6, s28, v6"]
    L += ["s_waitcnt lgkmcnt(0)", "s_barrier"]
    for n in range(5): L.append(f"ds_write_b32 v7, v{34+n} offset:{n*256}")
    L += [f"s_cmp_eq_u32 s{S_KQ}, 0", "s_cbranch_scc0 L_t1w1"]
    L += t1_variant(0)[2] + ["s_branch L_t1w_done", "L_t1w1:"] + t1_variant(1)[2] + ["L_t1w_done:"]
    L += ["s_waitcnt lgkmcnt(0)", "s_barrier"]
    for n in range(5): L.append(f"ds_read_b32 v{39+n}, v6 offset:{n*256}")
    L += [f"s_lshl_b32 s28, s{S_B}, 3", f"s_add_u32 s28, s28, s{S_G}", "s_mul_i32 s30, s28, 163840",
          f"s_and_b32 s29, s{S_C}, 2", f"s_add_u32 s29, s29, s{S_E}", "s_lshl_b32 s29, s29, 1", f"s_and_b32 s31, s{S_C}, 1", "s_add_u32 s29, s29, s31",
          "s_mov_b32 s67, s29", "s_mul_i32 s29, s29, 20480", "s_add_u32 s30, s30, s29", f"s_lshl_b32 s29, s{S_KQ}, 11", "s_add_u32 s30, s30, s29"]
    if WS_PART: L += [f"s_add_u32 s30, s30, {WS_PART}"]
    L += [f"s_mul_i32 s28, s{S_E}, {CLOC[2]-CLOC[0]}", f"s_lshl_b32 s29, s{S_KQ}, 11", "s_add_u32 s28, s28, s29", f"s_add_u32 s28, s28, {CLOC[0]}", f"v_add_u32 v44, s28, v{V_L16}"]
    for kq in range(2):
        keep, tmp, W, Rd, Add = t1_variant(kq)
        if kq == 0: L += [f"s_cmp_eq_u32 s{S_KQ}, 0", "s_cbranch_scc0 L_t1r1"]
        V = Rd + Add
        for n in range(5):
            V.append(f"s_add_u32 s31, s30, {n*4096}")
            for jl in range(2):
                a = keep + ((2*jl)*5+n)*4; b = keep + ((2*jl+1)*5+n)*4
                V += [f"v_cvt_pk_bf16_f32 v{a}, v{a}, v{a+1}", f"v_cvt_pk_bf16_f32 v{a+1}, v{a+2}, v{a+3}",
                      f"v_cvt_pk_bf16_f32 v{a+2}, v{b}, v{b+1}", f"v_cvt_pk_bf16_f32 v{a+3}, v{b+2}, v{b+3}",
                      f"buffer_store_dwordx4 v[{a}:{a+3}], v{V_L16}, s[{S_WS}:{S_WS+3}], s31 offen offset:{jl*1024} sc1",
                      f"ds_write_b128 v44, v[{a}:{a+3}] offset:{n*4096+jl*1024}"]
        L += V
        L += ["s_branch L_t1r_done", "L_t1r1:"] if kq == 0 else ["L_t1r_done:", "s_waitcnt lgkmcnt(0)"]
    for n in range(5): L.append(f"v_add_f32 v{34+n}, v{34+n}, v{39+n}")
    L += [f"s_lshl_b32 s28, s{S_B}, 3", f"s_add_u32 s28, s28, s{S_G}", "s_lshl_b32 s28, s28, 12", f"s_add_u32 s28, s28, {WS_LP}", "s_lshl_b32 s29, s67, 2", "s_add_u32 s28, s28, s29",
          "v_lshlrev_b32 v4, 5, v2"]
    for n in range(5): L.append(f"buffer_store_dword v{34+n}, v4, s[{S_WS}:{S_WS+3}], s28 offen offset:{n*512} sc1")
    L += ["s_mov_b32 s29, 0x21800000", "s_mov_b32 s30, 0x5d800000", "s_mov_b64 s[90:91], 0"]
    for n in range(5):
        L += [f"v_cmp_nge_f32 vcc, v{34+n}, s29", "s_or_b64 s[90:91], s[90:91], vcc", f"v_cmp_nle_f32 vcc, v{34+n}, s30", "s_or_b64 s[90:91], s[90:91], vcc"]
    L += ["s_cmp_lg_u64 s[90:91], 0", "s_cselect_b32 s28, 1, 0", f"s_cmp_eq_u32 s{S_MODE}, 0", "s_cselect_b32 s28, s28, 0",
          "v_mov_b32 v5, s28", f"s_lshl_b32 s29, s{S_W}, 2", f"s_add_u32 s29, s29, {UNS}", "v_mov_b32 v4, s29", "ds_write_b32 v4, v5", "s_waitcnt lgkmcnt(0)"]
    return L

def flag_t2():
    u = uid()
    L = [f"s_lshl_b32 s28, s{S_B}, 3", f"s_add_u32 s28, s28, s{S_G}", "s_lshl_b32 s28, s28, 7", f"s_add_u32 s28, s28, {WS_FLAG}",
         f"s_cmp_eq_u32 s{S_MODE}, 0", f"s_cselect_b32 s29, {FL2}, {FL2B}", "s_add_u32 s31, s28, s29",
         f"s_lshl_b32 s29, s{S_C}, 3", "s_add_u32 s30, s31, s29",
         "s_waitcnt vmcnt(0) lgkmcnt(0)", "s_barrier", f"s_cmp_eq_u32 s{S_W}, 0", f"s_cbranch_scc0 L_sf{u}",
         "v_and_b32 v4, 3, v0", "v_lshlrev_b32 v4, 2, v4", f"v_add_u32 v4, {UNS}, v4", "ds_read_b32 v5, v4", "s_waitcnt lgkmcnt(0)",
         "v_cmp_ne_u32 vcc, 0, v5", "s_cmp_lg_u64 vcc, 0", "s_cselect_b32 s29, 1, 0",
         "v_mov_b32 v4, s30", f"v_mov_b32 v6, s{S_NONCE}", "v_mov_b32 v7, s29", "s_mov_b64 exec, 1",
         f"buffer_store_dwordx2 v[6:7], v4, s[{S_WS}:{S_WS+3}], 0 offen sc1", "s_mov_b64 exec, -1", f"L_sf{u}:"]
    P2 = poll_flags(31, 4) + ["v_cmp_ne_u32 vcc, 0, v7", "s_cmp_lg_u64 vcc, 0", "s_cbranch_scc1 L_fallback"]
    return L, P2

def t2_chunk_mfmas(ck, nbase):
    hr = ck >> 1; first = (ck & 1) == 0
    reads = []; mfs = []
    for j in range(4):
        for n in range(5):
            addr = CLOC[ck] + (n*4+j)*1024
            breg = 28 + ((nbase + j*5 + n) % 12)*4
            reads.append(P(f"ds_read_b128 v[{breg}:{breg+3}], v{248 + (addr >> 16)} offset:{addr & 0xffff}"))
            for ep in range(2):
                d = R('v', V_O + ((hr*2+ep)*5+n)*4, 4)
                c = "0" if (first and j == 0) else d
                ks = hr*4 + j
                mfs.append(P(f"v_mfma_f32_16x16x32_bf16 {d}, a[{(ks*2+ep)*4}:{(ks*2+ep)*4+3}], v[{breg}:{breg+3}], {c}"))
    return reads, mfs

def t2_dma(ck):
    hr = ck >> 1; khr = ck & 1
    base = 92 if hr < 2 else 93
    L = [f"s_xor_b32 s29, s97, {khr}", "s_mul_i32 s29, s29, 20480", f"s_add_u32 s29, s29, s{base}"]
    if hr & 1: L.append(f"s_add_u32 s29, s29, {2*20480}")
    L += [f"s_add_u32 m0, s31, {CLOC[ck]}"]
    L = PL(L)
    for i in range(4): L.append(dma(f"v{V_L16}", f"s[{S_WS}:{S_WS+3}]", "s29", i*1024, ("P", ck), "sc1"))
    L += PL(["s_add_u32 s29, s29, 4096", f"s_add_u32 m0, s31, {CLOC[ck]+4096}"])
    L.append(dma(f"v{V_L16}", f"s[{S_WS}:{S_WS+3}]", "s29", 0, ("P", ck), "sc1"))
    return L

def t2_own(opt):
    L = PL([f"v_mov_b32 v248, v{V_L16}", f"v_add_u32 v249, 0x10000, v{V_L16}", f"v_add_u32 v250, 0x20000, v{V_L16}"])
    r0, m0 = t2_chunk_mfmas(0, 0); r2, m2 = t2_chunk_mfmas(2, 20)
    reads = r0 + r2; mf = m0 + m2
    AH = 6
    L += reads[:AH]
    ch = [F(reads[i], 2*(i-AH), 2*i - 4) for i in range(AH, 40)]
    return L + place(mf, [ch], 8)

def t2_gemm(opt):
    L = []
    L += [f"s_lshl_b32 s28, s{S_B}, 3", f"s_add_u32 s28, s28, s{S_G}", "s_mul_i32 s30, s28, 163840", f"s_mul_i32 s31, s{S_W}, 5120", "s_add_u32 s30, s30, s31"]
    if WS_PART: L.append(f"s_add_u32 s30, s30, {WS_PART}")
    L += [f"s_and_b32 s29, s{S_C}, 2", "s_mul_i32 s92, s29, 40960", "s_add_u32 s92, s92, s30", "s_xor_b32 s29, s29, 2", "s_mul_i32 s93, s29, 40960", "s_add_u32 s93, s93, s30",
          f"s_and_b32 s97, s{S_C}, 1"]
    L += [f"s_lshl_b32 s28, s28, 12", f"s_add_u32 s28, s28, {WS_LP}", "v_lshlrev_b32 v4, 5, v2", f"s_and_b32 s29, s{S_C}, 2", "s_lshl_b32 s29, s29, 3", "s_add_u32 s98, s28, s29",
          "s_xor_b32 s29, s29, 16", "s_add_u32 s99, s28, s29"]
    rem = CORD[2:]
    L = PL(L) + t2_dma(rem[0]) + t2_dma(rem[1])
    ll = []
    for n in range(5):
        ll += PL([f"buffer_load_dwordx4 a[{128+n*8}:{131+n*8}], v4, s[{S_WS}:{S_WS+3}], s98 offen offset:{n*512} sc1",
                  f"buffer_load_dwordx4 a[{132+n*8}:{135+n*8}], v4, s[{S_WS}:{S_WS+3}], s99 offen offset:{n*512} sc1"])
    mf = []; idx = {}; rdch = []; dm = []; fixed = {}; va = []
    nb = 0
    for ck in rem:
        idx[ck] = len(mf)
        r, m = t2_chunk_mfmas(ck, nb); nb += 20
        AH = 6
        fixed[idx[ck]] = [P("s_barrier", need_vm=[("P", ck)])] + r[:AH]
        for i in range(AH, 20): rdch.append(F(r[i], idx[ck] + 2*(i-AH), idx[ck] + 2*i - 4))
        mf += m
    for k, ck in enumerate(rem):
        if k + 2 < len(rem):
            items = t2_dma(rem[k+2]); kk = 0
            for ins in items:
                lo = idx[ck] + 2 + kk*6
                dm.append(F(ins, lo, lo + 6))
                if ins.kind == "dma": kk += 1
        if k == 0:
            pass
    for i, ins in enumerate(ll): dm.insert(0, None)
    dm = [x for x in dm if x is not None]
    extra = [F(ins, idx[rem[4]] + 2 + 3*i, idx[rem[4]] + 38) for i, ins in enumerate(ll)]
    S = L + place(mf, [rdch, dm, extra], 8, fixed)
    T = []
    for n in range(5):
        for hr in range(4):
            T += [f"v_accvgpr_read_b32 v4, a{128+n*8+2*hr}", f"v_accvgpr_read_b32 v5, a{128+n*8+2*hr+1}", "v_add_f32 v4, v4, v5", f"v_rcp_f32 v{8+hr*5+n}, v4"]
    ACC = V_O
    for n in range(5):
        for ep in range(2):
            a0 = ACC + ((0*2+ep)*5+n)*4
            for r in range(4): T.append(f"v_mul_f32 v{a0+r}, v{a0+r}, v{8+n}")
            for hr in range(1, 4):
                a = ACC + ((hr*2+ep)*5+n)*4
                for r in range(4): T.append(f"v_fmac_f32 v{a0+r}, v{a+r}, v{8+hr*5+n}")
    T += [f"s_lshl_b32 s28, s{S_B}, 2", f"s_add_u32 s28, s28, s{S_C}", "s_mul_i32 s28, s28, 20", f"s_mul_i32 s29, s{S_W}, 5", "s_add_u32 s28, s28, s29",
          "s_lshl_b32 s28, s28, 3", f"s_add_u32 s28, s28, s{S_G}", "s_lshl_b32 s28, s28, 10", f"s_add_u32 s28, s28, {WS_OUTP}"]
    for n in range(5):
        a = ACC + ((0*2+0)*5+n)*4; b = ACC + ((0*2+1)*5+n)*4
        t = 28 + n*4
        T += [f"v_cvt_pk_bf16_f32 v{t}, v{a}, v{a+1}", f"v_cvt_pk_bf16_f32 v{t+1}, v{a+2}, v{a+3}",
              f"v_cvt_pk_bf16_f32 v{t+2}, v{b}, v{b+1}", f"v_cvt_pk_bf16_f32 v{t+3}, v{b+2}, v{b+3}",
              f"s_add_u32 s29, s28, {n*8192}", f"buffer_store_dwordx4 v[{t}:{t+3}], v{V_L16}, s[{S_WS}:{S_WS+3}], s29 offen sc1"]
    return S + PL(T)

def t3(opt):
    L = []
    L += [f"s_lshl_b32 s28, s{S_B}, 2", f"s_add_u32 s28, s28, s{S_C}", "s_mov_b32 s67, s28", "s_lshl_b32 s28, s28, 7", f"s_add_u32 s31, s28, {WS_FLAG+FL3}",
          f"s_lshl_b32 s29, s{S_G}, 3", "s_add_u32 s30, s31, s29"]
    L += ["v_lshrrev_b32 v4, 2, v2", "v_cmp_eq_u32 vcc, v4, v3", "v_and_b32 v5, 1, v0", "v_lshlrev_b32 v5, 4, v5", "v_mov_b32 v6, 0x3f80", "v_lshlrev_b32 v6, v5, v6",
          "v_cndmask_b32 v6, 0, v6, vcc",
          "v_and_b32 v5, 2, v0", "v_cmp_eq_u32 vcc, 0, v5", "v_cndmask_b32 v48, 0, v6, vcc", "v_cndmask_b32 v49, v6, 0, vcc" ]
    L += ["v_mov_b32 v50, 0", "v_mov_b32 v51, 0", "v_mov_b32 v52, 0", "v_mov_b32 v53, 0", "v_mov_b32 v54, v48", "v_mov_b32 v55, v49"]
    L += set_flag(30, 0)
    L += [f"s_lshl_b32 s28, s{S_G}, 2", f"s_add_u32 s28, s28, s{S_W}", "s_cmp_lt_u32 s28, 20", "s_cbranch_scc0 L_done", "s_mov_b32 s65, s28"]
    L += poll_flags(31, 8)
    L += ["s_mul_i32 s29, s67, 20", "s_add_u32 s29, s29, s65", "s_lshl_b32 s29, s29, 13", f"s_add_u32 s29, s29, {WS_OUTP}", "s_add_u32 s30, s29, 4096"]
    for gp in range(8):
        L.append(f"buffer_load_dwordx4 v[{84+4*gp}:{87+4*gp}], v{V_L16}, s[{S_WS}:{S_WS+3}], s{29 if gp < 4 else 30} offen offset:{(gp&3)*1024} sc1")
    for gp in range(8):
        L += [f"v_mfma_f32_16x16x32_bf16 v[60:63], v[48:51], v[{84+4*gp}:{87+4*gp}], {'0' if gp == 0 else 'v[60:63]'}",
              f"v_mfma_f32_16x16x32_bf16 v[64:67], v[52:55], v[{84+4*gp}:{87+4*gp}], {'0' if gp == 0 else 'v[64:67]'}"]
    L += ["s_mul_i32 s28, s65, 52", "s_lshr_b32 s28, s28, 8", "s_mul_i32 s29, s28, 5", "s_sub_u32 s29, s65, s29",
          "s_lshl_b32 s29, s29, 14", "s_lshl_b32 s28, s28, 6", "s_add_u32 s28, s28, s29", f"s_lshl_b32 s29, s{S_C}, 8", "s_add_u32 s28, s28, s29",
          f"s_mul_i32 s29, s{S_B}, 81920", "s_add_u32 s28, s28, s29", "v_lshlrev_b32 v4, 10, v2", "v_lshl_add_u32 v4, v3, 3, v4"]
    L += ["v_cvt_pk_bf16_f32 v68, v60, v61", "v_cvt_pk_bf16_f32 v69, v62, v63", "v_cvt_pk_bf16_f32 v70, v64, v65", "v_cvt_pk_bf16_f32 v71, v66, v67",
          f"buffer_store_dwordx2 v[68:69], v4, s[{S_OUT}:{S_OUT+3}], s28 offen", f"buffer_store_dwordx2 v[70:71], v4, s[{S_OUT}:{S_OUT+3}], s28 offen offset:32"]
    L += ["L_done:"]
    return L

def fallback():
    return ["L_fallback:", f"s_mov_b32 s{S_MODE}, 1", "s_barrier", "s_branch L_restart"]

def maxpass():
    L = ["s_waitcnt vmcnt(0) lgkmcnt(0)", "s_barrier"]
    MX = 244 + 6
    MXR = [76, 77, 78, 79, 80]
    for n in range(5): L.append(f"v_mov_b32 v{MXR[n]}, 0xff800000")
    L += ["s_mov_b32 s92, 0", "L_maxloop:", f"s_lshl_b32 s{S_TOFF}, s92, 13", f"s_add_u32 m0, s{S_M0K}, {3*16384}"]
    for i in range(4): L.append(dma(f"v{V_KD+i}", f"s[{S_KSRD}:{S_KSRD+3}]", f"s{S_TOFF}", i*1024, ("X", 0)))
    L += ["s_waitcnt vmcnt(0)", "s_barrier"]
    L += k_reads(3)
    L += ["s_waitcnt lgkmcnt(0)"]
    for n in range(5):
        for s in range(2):
            for j in range(4):
                d = R("v", V_S + s*4, 4)
                L.append(mfma16(d, Kf(s, j), Qf(n, j), "0" if j == 0 else d))
        m = MXR[n]
        L += [f"v_max3_f32 v{m}, v{V_S}, v{V_S+1}, v{m}", f"v_max3_f32 v{m}, v{V_S+2}, v{V_S+3}, v{m}",
              f"v_max3_f32 v{m}, v{V_S+4}, v{V_S+5}, v{m}", f"v_max3_f32 v{m}, v{V_S+6}, v{V_S+7}, v{m}"]
    L += ["s_barrier", "s_add_u32 s92, s92, 1", "s_cmp_lt_u32 s92, 16", "s_cbranch_scc1 L_maxloop"]
    for n in range(5):
        m = MXR[n]
        L += [f"v_mov_b32 v4, v{m}", f"v_permlane16_swap_b32 v4, v{m}", f"v_max_f32 v{m}, v4, v{m}",
              f"v_mov_b32 v4, v{m}", f"v_permlane32_swap_b32 v4, v{m}", f"v_max_f32 v{m}, v4, v{m}"]
    L += [f"s_lshl_b32 s28, s{S_B}, 3", f"s_add_u32 s28, s28, s{S_G}", "s_lshl_b32 s28, s28, 2", f"s_and_b32 s29, s{S_C}, 2", f"s_add_u32 s29, s29, s{S_E}", "s_add_u32 s28, s28, s29",
          "s_mul_i32 s93, s28, 5120", f"s_add_u32 s93, s93, {WS_MX}",
          f"s_and_b32 s29, s{S_C}, 1", "s_lshl_b32 s29, s29, 1", f"s_add_u32 s29, s29, s{S_KQ}", "s_mul_i32 s29, s29, 1280", "s_add_u32 s29, s29, s93", "v_lshlrev_b32 v5, 2, v0"]
    for n in range(5): L.append(f"buffer_store_dword v{MXR[n]}, v5, s[{S_WS}:{S_WS+3}], s29 offen offset:{n*256} sc1")
    L += [f"s_lshl_b32 s28, s{S_B}, 3", f"s_add_u32 s28, s28, s{S_G}", "s_lshl_b32 s28, s28, 7", f"s_add_u32 s31, s28, {WS_FLAG+FLF}", f"s_lshl_b32 s29, s{S_C}, 3", "s_add_u32 s30, s31, s29"]
    L += set_flag(30, 0) + poll_flags(31, 4)
    L += ["v_lshlrev_b32 v5, 2, v0"]
    for n in range(5):
        for k in range(4):
            L.append(f"s_add_u32 s29, s93, {k*1280}")
            L.append(f"buffer_load_dword v{V_S+k}, v5, s[{S_WS}:{S_WS+3}], s29 offen offset:{n*256} sc1")
        L += ["s_waitcnt vmcnt(0)", f"v_max3_f32 v4, v{V_S}, v{V_S+1}, v{V_S+2}", f"v_max_f32 v4, v4, v{V_S+3}"]
        for r in range(4): L.append(f"v_sub_f32 v{V_NEGM+n*4+r}, 0, v4")
    for t in range(3): L += tile_dma(t)
    return L

def kernel(opt):
    st = opt.get("stamps")
    L = setup0(opt)
    L += stamp(0, st) + (["s_waitcnt lgkmcnt(0)"] if st else [])
    L += nonce_publish()
    L += ["L_restart:"]
    L += setup1(opt)
    L += qp_dma(0)
    L += qp_lanebases()
    L += qp_dma(1)
    L += ring_addrs()
    for i in range(4): L += ["v_mov_b32 v1, 0x3f803f80", f"v_accvgpr_write_b32 a{A_ONE+i}, v1"]
    for i in range(20): L.append(f"v_mov_b32 v{V_NEGM+i}, 0")
    L += stamp(1, st)
    L += qproj(opt)
    L += ["s_waitcnt lgkmcnt(0)", "s_barrier"]
    L += stamp(2, st)
    L += tile_dma(2)
    L += q_finish()
    S1, n1 = finalize(L)
    M = [f"s_cmp_eq_u32 s{S_MODE}, 0", "s_cbranch_scc1 L_attn"] + maxpass() + ["L_attn:"]
    S1b, n1b = finalize(M)
    vmq = [("T", 0)]*8 + [("T", 1)]*8 + [("T", 2)]*8
    body = PL(stamp(3, st) + (["s_waitcnt lgkmcnt(0)"] if st else [])) + [P("s_barrier", need_vm=[("T", 0)])] + k_reads(0) + build(opt)
    S2, _, _ = insert_waits(body, vm_outstanding=vmq)
    S2, n2 = check_hazards(S2)
    T = ["s_nop 7"] + stamp(4, st) + (["s_waitcnt lgkmcnt(0)"] if st else [])
    T += nonce_code()
    T += tail_t1(opt)
    T += stamp(5, st) + (["s_waitcnt lgkmcnt(0)"] if st else [])
    fa, fb = flag_t2()
    T += fa + t2_own(opt) + fb
    T += stamp(6, st) + (["s_waitcnt lgkmcnt(0)"] if st else [])
    T += t2_gemm(opt)
    T += stamp(7, st) + (["s_waitcnt lgkmcnt(0)"] if st else [])
    T += t3(opt)
    if st:
        T += ["s_memtime s[86:87]", "s_memrealtime s[88:89]", "s_waitcnt lgkmcnt(0)",
              "s_lshl_b32 s28, s2, 2", f"s_add_u32 s28, s28, s{S_W}", "s_lshl_b32 s28, s28, 6", f"s_add_u32 s28, s28, {WS_STAMP}", "v_mov_b32 v2, s28"]
        for k in range(8):
            T += [f"s_sub_u32 s29, s{72+2*k}, s{70+2*k}", "v_mov_b32 v3, s29", f"buffer_store_dword v3, v2, s[{S_WS}:{S_WS+3}], 0 offen offset:{4*k}", "s_nop 1"]
        for k, s in ((8, "s68"), (9, "s88")):
            T += [f"v_mov_b32 v3, {s}", f"buffer_store_dword v3, v2, s[{S_WS}:{S_WS+3}], 0 offen offset:{4*k}", "s_nop 1"]
    T += ["s_waitcnt vmcnt(0)", "s_endpgm"] + fallback() + ["L_end:", "s_endpgm"]
    S3, n3 = finalize(T)
    print(f"; nops inserted {n1} {n1b} {n2} {n3}", file=sys.stderr)
    return emit(S1) + "\n" + emit(S1b) + "\n" + emit(S2) + "\n" + emit(S3) + "\n"

def gen(opt):
    mc.OPT["flags"] = opt.get("flags", "nt"); mc.OPT["rot"] = opt.get("rot")
    hdr = open("standalone__gqa_block_cached__near_ridge.s.ref").read().split("; Override")[0]
    s = hdr + "; @launch grid=(256,1,1) block=(256,1,1) lds=163840\n"
    s += f'.amdgcn_target "amdgcn-amd-amdhsa--gfx950"\n.text\n.globl {KN}\n.p2align 8\n.type {KN},@function\n{KN}:\n'
    s += kernel(opt)
    s += footer(vgpr=512, accum=256, name=KN)
    return s

if __name__ == "__main__":
    open("c1.s", "w").write(gen({}))
    open("c1_st.s", "w").write(gen({"stamps": True}))
    open("c1r2nt_st.s", "w").write(gen({"stamps": True, "flags": "nt", "rot": 2}))
    open("c1r4_st.s", "w").write(gen({"stamps": True, "flags": "", "rot": 4}))
    open("c1r4nt_st.s", "w").write(gen({"stamps": True, "flags": "nt", "rot": 4}))
    open("c1sc_st.s", "w").write(gen({"stamps": True, "flags": "sc1"}))
    open("c1scnt_st.s", "w").write(gen({"stamps": True, "flags": "sc1 nt"}))
```

```python
from sched import *

V_KA = 8
V_VA = 12
V_KD = 20
V_VD = 24
V_WAX = 26
V_L16 = 252
V_WD = 244
V_NEGM = 28
V_S = 48
V_P = 72
V_O = 84
A_Q = 0; A_K = 80; A_V = 112; A_L = 144; A_ONE = 164
S_KSRD = 12; S_VSRD = 16; S_WOSRD = 52
S_M0K = 24
S_KOFF = 25; S_VOFF = 26
S_KOFF2 = 98; S_VOFF2 = 99
S_WOB = [94, 95, 96, 97]
S_WOFF = 100
NT = 16
OPT = {"flags": ""}
KSLOT = [0, 32768]; VSLOT = [65536, 98304]
WO_REG = [131072, 98304, 0, 32768]
A_WO = [0, 32, 64, 96]

def Sreg(G, s, r=None):
    b = V_S + (G % 3)*8 + s*4
    return R("v", b, 4) if r is None else f"v{b+r}"
def Preg(G, i=None):
    b = V_P + (G % 3)*4
    return R("v", b, 4) if i is None else f"v{b+i}"
def Kf(s, j): return R("a", A_K + (s*4+j)*4, 4)
def Vf(dt, h=None):
    b = A_V + dt*4
    return R("a", b, 4) if h is None else R("a", b+2*h, 2)
def Qf(n, j): return R("a", A_Q + (n*4+j)*4, 4)
def Of(dt, n): return R("v", V_O + (dt*5+n)*4, 4)
def Lf(n): return R("a", A_L + n*4, 4)

def qk_mfmas(G):
    n = G % 5
    L = []
    for s in range(2):
        for j in range(4):
            c = R("v", V_NEGM + n*4, 4) if j == 0 else Sreg(G, s)
            L.append(mfma16(Sreg(G, s), Kf(s, j), Qf(n, j), c, tag=("qk", G, s, j)))
    return L
def pv_mfmas(G):
    n = G % 5
    first = G < 5
    L = [mfma16(Of(dt, n), Vf(dt), Preg(G), "0" if first else Of(dt, n), tag=("pv", G, dt)) for dt in range(8)]
    L.append(mfma16(Lf(n), R("a", A_ONE, 4), Preg(G), "0" if first else Lf(n), tag=("l", G)))
    return L
def softmax_fillers(G):
    e = [vexp(Sreg(G, s, r), Sreg(G, s, r)) for s in range(2) for r in range(4)]
    c = [vcvtpk(Preg(G, i), Sreg(G, i//2, (i%2)*2), Sreg(G, i//2, (i%2)*2+1)) for i in range(4)]
    return [e[0], e[1], e[2], c[0], e[3], e[4], c[1], e[5], e[6], c[2], e[7], c[3]]
def k_reads(t):
    sl = (t % 2)*32768
    return [ds_read128(Kf(s, j), f"v{V_KA+j}", sl + s*4096) for s in range(2) for j in range(4)]
def v_reads(t):
    sl = (t % 2)*32768
    return [ds_read_tr(Vf(dt, h), f"v{V_VA+dt}", sl + h*4096) for dt in range(8) for h in range(2)]
S_TAB = 92
def toff(reg, reg2, t):
    if not OPT.get("rot"):
        return [salu(f"s_mov_b32 s{reg}, {t*8192}"), salu(f"s_mov_b32 s{reg2}, {t*8192+4096}")]
    src = S_TAB + (t >> 3)
    return [salu(f"s_bfe_u32 s{reg}, s{src}, {hex((4*(t % 8)) | (4 << 16))}"), salu(f"s_lshl_b32 s{reg}, s{reg}, 13"), salu(f"s_add_u32 s{reg2}, s{reg}, 4096")]
def k_dma(t):
    sl = KSLOT[t % 2]
    L = toff(S_KOFF, S_KOFF2, t)
    for half in range(2):
        L.append(salu(f"s_add_u32 m0, s{S_M0K}, {sl + half*4096}"))
        for i in range(4):
            L.append(dma(f"v{V_KD+i}", f"s[{S_KSRD}:{S_KSRD+3}]", f"s{S_KOFF if half == 0 else S_KOFF2}", i*1024, ("K", t), OPT["flags"]))
    return L
def v_dma(t):
    sl = VSLOT[t % 2]
    L = toff(S_VOFF, S_VOFF2, t)
    for half in range(2):
        L.append(salu(f"s_add_u32 m0, s{S_M0K}, {sl + half*4096}"))
        for i in range(4):
            L.append(dma(f"v{V_VD+(i&1)}", f"s[{S_VSRD}:{S_VSRD+3}]", f"s{S_VOFF if half == 0 else S_VOFF2}", i*1024, ("V", t), OPT["flags"]))
    return L
def wo_dma(hr):
    L = []
    for half in range(2):
        L += [salu(f"s_add_u32 s{S_WOFF}, s{S_WOB[hr]}, {half*16384}"), salu(f"s_add_u32 m0, s{S_M0K}, {WO_REG[hr] + half*4096}")]
        for i in range(4): L.append(dma(f"v{V_WD+i}", f"s[{S_WOSRD}:{S_WOSRD+3}]", f"s{S_WOFF}", i*1024, ("W", hr)))
    return L
def wo_frag_reads(hr, regs_):
    L = []
    for j in range(4):
        for ep in range(2):
            for hh in range(2):
                addr = WO_REG[hr] + (32*j + 16*hh)*256
                base = addr & ~0xffff
                r = A_WO[hr] + (j*2+ep)*4 + 2*hh
                L.append(P(f"ds_read_b64_tr_b16 a[{r}:{r+1}], v{regs_[base]+ep} offset:{addr - base}"))
    return L

class F:
    def __init__(s, ins, lo, hi): s.ins = ins; s.lo = lo; s.hi = hi

def place(mf, chains, cap=8, fixed=None):
    stream = []
    ptr = [0]*len(chains)
    for m, ins in enumerate(mf):
        if fixed and m in fixed: stream += fixed[m]
        stream.append(ins)
        used = 0
        while True:
            cand = []
            for c, ch in enumerate(chains):
                if ptr[c] < len(ch) and ch[ptr[c]].lo <= m:
                    cand.append((ch[ptr[c]].hi, c))
            if not cand: break
            cand.sort()
            placed = False
            for hi, c in cand:
                f = chains[c][ptr[c]]
                if used + f.ins.cost <= cap or hi <= m:
                    stream.append(f.ins); used += f.ins.cost; ptr[c] += 1; placed = True
                    break
            if not placed: break
    for c, ch in enumerate(chains):
        assert ptr[c] == len(ch), (c, ptr[c], len(ch))
    return stream

def spaced(instrs, start, sp, win):
    out = []; k = 0
    for ins in instrs:
        lo = start + k*sp
        out.append(F(ins, lo, lo + win))
        if ins.kind == "dma": k += 1
    return out

def build(opt):
    nt = NT; nG = 5*nt
    mf = []; qk_idx = {}; pv_idx = {}
    for X in range(nG + 2):
        if X < nG:
            qk_idx[X] = len(mf); mf += qk_mfmas(X)
        if 0 <= X-2 < nG:
            pv_idx[X-2] = len(mf); mf += pv_mfmas(X-2)
    allf = []
    for G in range(nG):
        fl = softmax_fillers(G)
        lo0 = qk_idx[G] + 3 + 5; lo1 = qk_idx[G] + 7 + 5
        hi = pv_idx[G] - 2
        for k, ins in enumerate(fl):
            allf.append(F(ins, min(lo1 if k >= 5 else lo0, hi), hi))
    kr = []; vr_ = []; dm = []
    sp = opt.get("space", 4); win = opt.get("dwin", 4)
    for idx, ins in enumerate(v_reads(0)):
        if idx == 0: ins.need_vm = [("V", 0)]
        vr_.append(F(ins, 2 + idx//2, pv_idx[0] - 4))
    for t in range(1, nt):
        G = 5*t - 1
        for idx, ins in enumerate(k_reads(t)):
            if idx == 0: ins.need_vm = [("K", t)]
            kr.append(F(ins, qk_idx[G] + idx, qk_idx[G+1] + idx - 4))
        for idx, ins in enumerate(v_reads(t)):
            dt = idx // 2
            if idx == 0: ins.need_vm = [("V", t)]
            vr_.append(F(ins, pv_idx[G] + dt, pv_idx[G+1] + dt - 4))
    for t in range(nt):
        lok = qk_idx[5*t] + 8
        lov = pv_idx[5*t] + 9
        if t + 2 < nt:
            dm += spaced(k_dma(t+2), lok, sp, win)
            dm += spaced(v_dma(t+2), lov, sp, win)
        elif opt.get("wo_in_loop_end"):
            if t == 15: dm += spaced(wo_dma(0), lok, sp, win)
    dm.sort(key=lambda f: 0)
    return place(mf, [allf, kr, vr_, dm], opt.get("cap", 8))
```

```python
import sys, struct, math
from asmlib import *
from sched import *
import maina2 as mb
from maina2 import *

KN = "standalone__gqa_block_cached__near_ridge_kernel"
CSCALE = struct.unpack("<I", struct.pack("<f", math.log2(math.e)/math.sqrt(128.0)))[0]

WS_QX   = 0x0000000
WS_PART = 0x0600000
WS_LP   = 0x1B00000
WS_OF   = 0x1C00000
WS_OUTP = 0x2200000
WS_FLAG = 0x2800000
WS_MX   = 0x2900000
WS_STAMP= 0x1400000 + 0x1800000
WS_SIZE = 0x4000000
FQ, FQB, F1, F1B, F2, FM, F3 = 0, 0x4000, 0x8000, 0xC000, 0x10000, 0x14000, 0x18000
S_W, S_B, S_C, S_G = 20, 21, 22, 23
S_MODE = 27
S_X, S_WQ, S_WS, S_OUT, S_DBG = 32, 36, 40, 56, 60
S_NONCE = 64
S_GRP = 65
S_ROT = 67
QP_W = [32768, 98304, 131072]
QP_X = [49152, 114688, 147456]
QBUF = 131072
V_XD = 236; V_WQD = 239; V_WB = 243; V_XB = (248, 249)
V_QD = 84
QA = [164, 200]; QB = [172, 208]
V_QWA = (250, 251); V_QXA = ((48, 49), (50, 51))
V_NONCE = 253

MS = [None]
def stamp(i, on):
    if MS[0]:
        if i == MS[0][0]: return ['s_memtime s[70:71]']
        if i == MS[0][1]: return ['s_memtime s[86:87]']
        return []
    return [f"s_memtime s[{70+2*i}:{71+2*i}]"] if on else []
def stampw(i, on):
    if MS[0]:
        r = stamp(i, on)
        return r + ["s_waitcnt lgkmcnt(0)"] if r else []
    return [f"s_memtime s[{70+2*i}:{71+2*i}]", "s_waitcnt lgkmcnt(0)"] if on else []

_uid = [0]
def uid():
    _uid[0] += 1; return _uid[0]

def setup0(opt):
    L = ["s_cmp_ge_u32 s2, 256", "s_cbranch_scc1 L_end",
         "s_load_dwordx8 s[4:11], s[0:1], 0", "s_load_dwordx4 s[44:47], s[0:1], 32", "s_load_dwordx4 s[48:51], s[0:1], 48"]
    if opt.get("stamps"): L += ["s_memrealtime s[68:69]"]
    L += ["v_lshrrev_b32 v1, 6, v0", "v_and_b32 v0, 63, v0", f"v_readfirstlane_b32 s{S_W}, v1",
          f"s_and_b32 s{S_G}, s2, 7", f"s_lshr_b32 s{S_C}, s2, 3", f"s_and_b32 s{S_C}, s{S_C}, 3", f"s_lshr_b32 s{S_B}, s2, 5",
          f"s_lshl_b32 s{S_GRP}, s{S_B}, 3", f"s_add_u32 s{S_GRP}, s{S_GRP}, s{S_G}",
          f"s_mov_b32 s{S_MODE}, 0", f"s_mov_b32 s{S_NONCE}, 0", "s_waitcnt lgkmcnt(0)"]
    L += [f"s_mul_i32 s28, s{S_B}, 81920", f"s_add_u32 s{S_X}, s4, s28", f"s_addc_u32 s{S_X+1}, s5, 0", f"s_and_b32 s{S_X+1}, s{S_X+1}, 0xffff",
          f"s_mov_b32 s{S_X+2}, 81920", f"s_mov_b32 s{S_X+3}, 0x20000"]
    L += srd(S_WQ, 10, 512*4096*2)
    L += [f"s_lshl_b32 s28, s{S_GRP}, 19", f"s_lshl_b32 s29, s{S_W}, 17", "s_add_u32 s28, s28, s29"]
    L += ["s_add_u32 s12, s6, s28", "s_addc_u32 s13, s7, 0", "s_and_b32 s13, s13, 0xffff", "s_mov_b32 s14, 0x20000", "s_mov_b32 s15, 0x20000"]
    L += ["s_add_u32 s16, s8, s28", "s_addc_u32 s17, s9, 0", "s_and_b32 s17, s17, 0xffff", "s_mov_b32 s18, 0x20000", "s_mov_b32 s19, 0x20000"]
    L += srd(S_WS, 50, WS_SIZE) + srd(S_WOSRD, 44, 4096*512*2) + srd(S_OUT, 46, 8*80*512*2) + srd(S_DBG, 48, 256)
    return L

def setup1():
    L = ["v_and_b32 v2, 15, v0", "v_lshrrev_b32 v3, 4, v0", f"v_lshlrev_b32 v{V_L16}, 4, v0"]
    L += ["v_lshrrev_b32 v4, 3, v0", f"s_mul_i32 s28, s{S_W}, 24", "v_add_u32 v4, s28, v4", "v_and_b32 v5, 7, v0"]
    for m in range(3):
        L += [f"v_add_u32 v6, {8*m}, v4", "v_lshrrev_b32 v7, 1, v6", "v_and_b32 v7, 7, v7", "v_xor_b32 v7, v7, v5", "v_lshlrev_b32 v7, 4, v7",
              "v_lshl_add_u32 v7, v6, 10, v7", f"v_subrev_u32 v{V_XD+m}, {m*1024}, v7"]
    L += [f"s_lshl_b32 s28, s{S_W}, 4", "v_add_u32 v4, s28, v3", "v_lshlrev_b32 v5, 2, v3", "v_xor_b32 v5, v5, v2", "v_lshlrev_b32 v5, 4, v5", "v_lshl_add_u32 v5, v4, 13, v5"]
    for i in range(4): L.append(f"v_add_u32 v{V_WQD+i}, {i*31744}, v5")
    L += [f"s_add_u32 s28, s{S_C}, s{S_B}", "s_and_b32 s28, s28, 3", "s_lshl_b32 s28, s28, 1", f"s_lshr_b32 s29, s{S_B}, 2", f"s_add_u32 s{S_ROT}, s28, s29"]
    L += [f"s_lshl_b32 s28, s{S_G}, 2", f"s_add_u32 s28, s28, s{S_C}", "s_lshl_b32 s31, s28, 8"]
    return L

def qp_dma(hc):
    buf = hc % 3; tag = ("C", hc)
    L = [f"s_add_u32 s28, s{S_ROT}, {hc}", "s_and_b32 s28, s28, 7", "s_lshl_b32 s29, s28, 7",
         f"s_mul_i32 s30, s{S_W}, 3072", f"s_add_u32 m0, s30, {QP_X[buf]}"]
    for m in range(3): L.append(dma(f"v{V_XD+m}", f"s[{S_X}:{S_X+3}]", "s29", m*1024, tag))
    L += ["s_lshl_b32 s29, s28, 19", "s_add_u32 s29, s29, s31", f"s_lshl_b32 s30, s{S_W}, 12", f"s_add_u32 m0, s30, {QP_W[buf]}"]
    for i in range(4): L.append(dma(f"v{V_WQD+i}", f"s[{S_WQ}:{S_WQ+3}]", "s29", i*1024, tag))
    return L

def qp_lanebases():
    L = ["v_lshrrev_b32 v4, 2, v2", f"v_xor_b32 v5, s{S_W}, v4", "v_lshlrev_b32 v5, 6, v5", "v_lshl_add_u32 v6, v3, 3, v4", "v_lshl_add_u32 v5, v6, 8, v5",
         "v_and_b32 v6, 3, v0", f"v_lshl_add_u32 v{V_WB}, v6, 4, v5"]
    for ks in range(2):
        L += [f"v_add_u32 v5, {4*ks}, v3", "v_lshrrev_b32 v6, 1, v2", "v_xor_b32 v5, v5, v6", "v_lshlrev_b32 v5, 4, v5", f"v_lshl_add_u32 v{V_XB[ks]}, v2, 7, v5"]
    return L

def ring_addrs():
    L = [f"s_lshl_b32 s{S_M0K}, s{S_W}, 13"]
    L += ["v_xor_b32 v6, v2, v3"]
    for i in range(4):
        L += [f"v_xor_b32 v5, {4*i}, v6", "v_lshlrev_b32 v5, 4, v5", f"v_lshl_add_u32 v{V_KD+i}, v3, 8, v5"]
    for i in range(2):
        L += [f"v_add_u32 v5, {4*i}, v3", "v_lshlrev_b32 v5, 1, v5", "v_xor_b32 v5, v5, v2", "v_lshlrev_b32 v5, 4, v5", f"v_lshl_add_u32 v{V_VD+i}, v3, 8, v5"]
    for j in range(4):
        L += [f"v_add_u32 v5, {4*j}, v3", "v_xor_b32 v5, v5, v2", "v_lshlrev_b32 v5, 4, v5", "v_lshl_add_u32 v5, v2, 8, v5", f"v_add_u32 v{V_KA+j}, s{S_M0K}, v5"]
    L += ["v_lshrrev_b32 v4, 2, v2", "v_lshl_add_u32 v4, v3, 2, v4", "v_and_b32 v5, 7, v4", "v_lshlrev_b32 v5, 1, v5",
          "v_and_b32 v6, 3, v0", "v_lshrrev_b32 v6, 1, v6", "v_and_b32 v7, 1, v0", "v_lshlrev_b32 v7, 3, v7",
          "v_lshl_add_u32 v7, v4, 8, v7"]
    L += [f"s_lshl_b32 s28, s{S_W}, 2"]
    for ep in range(2):
        L += [f"s_add_u32 s29, s28, {2*ep}", "v_add_u32 v1, s29, v6", "v_xor_b32 v1, v1, v5", f"v_lshl_add_u32 v{V_WAX+ep}, v1, 4, v7"]
    L += [f"s_add_u32 s28, s{S_M0K}, 65536", "v_add_u32 v7, s28, v7"]
    for dt in range(8):
        L += [f"v_add_u32 v1, {2*dt}, v6", "v_xor_b32 v1, v1, v5", f"v_lshl_add_u32 v{V_VA+dt}, v1, 4, v7"]
    for i in range(4):
        L += [f"v_add_u32 v5, {4*(i&1)}, v3", "v_lshlrev_b32 v5, 1, v5", "v_xor_b32 v5, v5, v2", "v_lshlrev_b32 v5, 4, v5",
              f"v_add_u32 v6, {4*i}, v3", "v_lshl_add_u32 v5, v6, 10, v5", f"v_subrev_u32 v{V_WD+i}, {i*1024}, v5"]
    if mb.OPT.get("rot"):
        def order(j, ph):
            o = []; bounds = [0] + [x for x in range(ph, 16, 4) if x > 0] + [16]
            for a_, b_ in zip(bounds[:-1], bounds[1:]):
                n_ = b_ - a_
                o += [a_ + ((i + j) % n_) for i in range(n_)]
            return o
        L += [f"s_and_b32 s28, s{S_B}, 3", "s_lshl_b32 s28, s28, 2", f"s_add_u32 s28, s28, s{S_C}", f"s_mov_b32 s{S_TAB}, 0", f"s_mov_b32 s{S_TAB+1}, 0"]
        for ph in range(4):
            for j in range(4):
                o = order(j, ph); assert sorted(o) == list(range(16))
                lo = sum(v << (4*i) for i, v in enumerate(o[:8])); hi = sum(v << (4*i) for i, v in enumerate(o[8:]))
                L += [f"s_cmp_eq_u32 s28, {ph*4+j}", f"s_cselect_b32 s{S_TAB}, {hex(lo)}, s{S_TAB}", f"s_cselect_b32 s{S_TAB+1}, {hex(hi)}, s{S_TAB+1}"]
    for hr in range(4):
        L += [f"s_add_u32 s28, s{S_C}, {hr}", "s_and_b32 s28, s28, 3", "s_lshl_b32 s28, s28, 17", f"s_lshl_b32 s29, s{S_G}, 19", "s_add_u32 s28, s28, s29",
              f"s_lshl_b32 s29, s{S_C}, 8", "s_add_u32 s28, s28, s29", f"s_lshl_b32 s29, s{S_W}, 15", f"s_add_u32 s{S_WOB[hr]}, s28, s29"]
    return L

def qp_reads(hc, ks):
    st = ks; xa = V_QXA[hc % 2][ks]; wa = V_QWA[hc % 2]
    r = [P(f"ds_read_b128 {R('v', QB[st]+4*n, 4)}, v{xa} offset:{n*2048}") for n in range(5)]
    for e in range(2):
        for hh in range(2):
            r.append(P(f"ds_read_b64_tr_b16 {R('v', QA[st]+e*4+2*hh, 2)}, v{wa} offset:{ks*8192+hh*1024+e*8}"))
    return [r[5], r[6], r[0], r[7], r[8], r[1], r[2], r[3], r[4]]
def qp_addr(hc):
    buf = hc % 3
    return PL([f"v_add_u32 v{V_QWA[hc%2]}, {QP_W[buf]}, v{V_WB}", f"v_add_u32 v{V_QXA[hc%2][0]}, {QP_X[buf]}, v{V_XB[0]}",
               f"v_add_u32 v{V_QXA[hc%2][1]}, {QP_X[buf]}, v{V_XB[1]}"])
def qp_mfmas(hc, ks):
    r = []
    for n in range(5):
        for e in range(2):
            d = R('v', V_QD+(e*5+n)*4, 4)
            c = "0" if (hc == 0 and ks == 0) else d
            r.append(P(f"v_mfma_f32_16x16x32_bf16 {d}, {R('v', QA[ks]+e*4, 4)}, {R('v', QB[ks]+4*n, 4)}, {c}"))
    return r

def qproj(opt):
    mf = []; idx = {}
    for hc in range(8):
        for ks in range(2):
            idx[(hc, ks)] = len(mf); mf += qp_mfmas(hc, ks)
    fixed = {}; rd = []; dm = []
    pre = [P("s_barrier", need_vm=[("C", 0)])] + qp_addr(0) + qp_reads(0, 0)
    for k, ins in enumerate(qp_reads(0, 1)): rd.append(F(ins, idx[(0, 0)] + k, idx[(0, 1)] - 1))
    for hc in range(1, 8):
        bpos = idx[(hc-1, 1)]
        fixed[bpos] = [P("s_waitcnt lgkmcnt(0)"), P("s_barrier", need_vm=[("C", hc)])] + qp_addr(hc)
        for k, ins in enumerate(qp_reads(hc, 0)): rd.append(F(ins, bpos + k, idx[(hc, 0)] - 1))
        for k, ins in enumerate(qp_reads(hc, 1)): rd.append(F(ins, idx[(hc, 0)] + k, idx[(hc, 1)] - 1))
    def sched(items, start, end):
        n = sum(1 for i in items if i.kind in ("dma", "vmem"))
        step = max(1, (end - start) // max(n, 1))
        out = []; k = 0
        for ins in items:
            lo = min(start + k*step, end - 1)
            out.append(F(ins, lo, lo + step))
            if ins.kind in ("dma", "vmem"): k += 1
        return out
    dm += sched(PL(qp_dma(2)), idx[(0, 0)], idx[(0, 1)])
    for hc in range(1, 6):
        dm += sched(PL(qp_dma(hc+2)), idx[(hc-1, 1)] + 1, idx[(hc, 1)])
    nl = PL([f"s_lshl_b32 s28, s{S_B}, 5", "v_mov_b32 v254, s28", f"buffer_load_dword v{V_NONCE}, v254, s[{S_DBG}:{S_DBG+3}], 0 offen sc1"])
    dm += sched(nl + k_dma(0) + v_dma(0), idx[(5, 1)] + 1, idx[(7, 1)] + 8)
    return pre + place(mf, [rd, dm], 8, fixed)

def nonce_publish():
    return [f"s_or_b32 s28, s{S_G}, s{S_C}", f"s_or_b32 s28, s28, s{S_W}", "s_cmp_eq_u32 s28, 0", "s_cbranch_scc0 L_not_leader",
            "s_memrealtime s[28:29]", "s_waitcnt lgkmcnt(0)", "s_or_b32 s28, s28, 1", "v_mov_b32 v5, s28", f"s_lshl_b32 s29, s{S_B}, 5", "v_mov_b32 v4, s29",
            f"buffer_store_dword v5, v4, s[{S_DBG}:{S_DBG+3}], 0 offen sc1", "L_not_leader:"]
def nonce_code():
    return [f"s_cmp_lg_u32 s{S_NONCE}, 0", "s_cbranch_scc1 L_have_nonce", f"v_readfirstlane_b32 s{S_NONCE}, v{V_NONCE}",
            f"s_cmp_lg_u32 s{S_NONCE}, 0", "s_cbranch_scc1 L_have_nonce",
            f"s_lshl_b32 s28, s{S_B}, 5", "v_mov_b32 v4, s28", "s_mov_b32 s29, 0", "L_nonce_poll:",
            f"buffer_load_dword v5, v4, s[{S_DBG}:{S_DBG+3}], 0 offen sc1", "s_waitcnt vmcnt(0)", f"v_readfirstlane_b32 s{S_NONCE}, v5",
            f"s_cmp_lg_u32 s{S_NONCE}, 0", "s_cbranch_scc1 L_have_nonce", "s_add_u32 s29, s29, 1", "s_cmp_lt_u32 s29, 0x40000", "s_cbranch_scc0 L_have_nonce",
            "s_sleep 2", "s_branch L_nonce_poll", "L_have_nonce:"]

def wave_flag(addr_s, payload):
    return [f"v_mov_b32 v4, s{addr_s}", f"v_mov_b32 v6, s{S_NONCE}", f"v_mov_b32 v7, {payload}", "s_mov_b64 exec, 1",
            f"buffer_store_dwordx2 v[6:7], v4, s[{S_WS}:{S_WS+3}], 0 offen sc1", "s_mov_b64 exec, -1"]
def poll(base_s, mask, shift=3, lane_off=0):
    u = uid()
    return [f"v_and_b32 v4, {mask}, v0", f"v_lshlrev_b32 v4, {shift}, v4", f"v_add_u32 v4, s{base_s}, v4", "s_mov_b32 s29, 0", f"L_pf{u}:",
            f"buffer_load_dwordx2 v[6:7], v4, s[{S_WS}:{S_WS+3}], 0 offen sc1", "s_waitcnt vmcnt(0)",
            f"v_cmp_ne_u32 vcc, s{S_NONCE}, v6", f"s_cbranch_vccz L_pf{u}_ok", "s_add_u32 s29, s29, 1", "s_cmp_lt_u32 s29, 0x40000",
            f"s_cbranch_scc1 L_pf{u}", f"L_pf{u}_ok:"]
def flagline(area_a, area_b=None):
    L = [f"s_lshl_b32 s30, s{S_GRP}, 7", f"s_add_u32 s30, s30, {WS_FLAG}"]
    if area_b is None: L += [f"s_add_u32 s30, s30, {area_a}"] if area_a else []
    else: L += [f"s_mul_i32 s29, s{S_MODE}, {area_b - area_a}", "s_add_u32 s30, s30, s29"] + ([f"s_add_u32 s30, s30, {area_a}"] if area_a else [])
    return L

def q_exchange(opt):
    st = opt.get("stamps")
    L = ["s_waitcnt lgkmcnt(0)", "s_barrier"]
    L += k_dma(1)
    L += [f"s_mov_b32 s29, {hex(CSCALE)}", f"s_lshl_b32 s28, s{S_W}, 10", f"v_add_u32 v4, s28, v{V_L16}", f"v_add_u32 v4, {QBUF}, v4"]
    for n in range(5):
        d0 = V_QD + n*4; d1 = V_QD + (5+n)*4
        for r in range(4): L += [f"v_mul_f32 v{d0+r}, s29, v{d0+r}", f"v_mul_f32 v{d1+r}, s29, v{d1+r}"]
        t = 164 + n*4
        L += [f"v_cvt_pk_bf16_f32 v{t}, v{d0}, v{d0+1}", f"v_cvt_pk_bf16_f32 v{t+1}, v{d0+2}, v{d0+3}",
              f"v_cvt_pk_bf16_f32 v{t+2}, v{d1}, v{d1+1}", f"v_cvt_pk_bf16_f32 v{t+3}, v{d1+2}, v{d1+3}",
              f"ds_write_b128 v4, v[{t}:{t+3}] offset:{n*4096}"]
    L += v_dma(1)
    L += ["s_waitcnt lgkmcnt(0)", "s_barrier"]
    L += stamp(3, st)
    L += [f"v_add_u32 v4, {QBUF}, v{V_L16}"]
    for n in range(5):
        for j in range(4): L.append(f"ds_read_b128 {Qf(n, j)}, v4 offset:{(n*4+j)*1024}")
    return L

def selector(base):
    return ["v_lshrrev_b32 v4, 2, v2", "v_cmp_eq_u32 vcc, v4, v3", "v_and_b32 v5, 1, v0", "v_lshlrev_b32 v5, 4, v5", "v_mov_b32 v6, 0x3f80", "v_lshlrev_b32 v6, v5, v6",
            "v_cndmask_b32 v6, 0, v6, vcc", "v_and_b32 v5, 2, v0", "v_cmp_eq_u32 vcc, 0, v5",
            f"v_cndmask_b32 v{base}, 0, v6, vcc", f"v_cndmask_b32 v{base+1}, v6, 0, vcc",
            f"v_mov_b32 v{base+2}, 0", f"v_mov_b32 v{base+3}, 0", f"v_mov_b32 v{base+4}, 0", f"v_mov_b32 v{base+5}, 0",
            f"v_mov_b32 v{base+6}, v{base}", f"v_mov_b32 v{base+7}, v{base+1}"]

CBUF = 0
CL = 81920
OLOC = [65536, 86016, 106496, 126976]
def stage1(opt):
    st = opt.get("stamps")
    L = nonce_code()
    L += ["s_waitcnt lgkmcnt(0)"]
    w01 = wo_dma(0) + wo_dma(1)
    cv = []
    for n in range(5):
        for j in range(4):
            a = V_O + ((2*j)*5+n)*4; b = V_O + ((2*j+1)*5+n)*4
            cv += [f"v_cvt_pk_bf16_f32 v{a}, v{a}, v{a+1}", f"v_cvt_pk_bf16_f32 v{a+1}, v{a+2}, v{a+3}",
                   f"v_cvt_pk_bf16_f32 v{a+2}, v{b}, v{b+1}", f"v_cvt_pk_bf16_f32 v{a+3}, v{b+2}, v{b+3}"]
    for n in range(5): L.append(f"v_accvgpr_read_b32 v{34+n}, a{A_L+4*n}")
    L += [f"s_mul_i32 s28, s{S_W}, 20480", f"v_add_u32 v4, s28, v{V_L16}", "v_lshlrev_b32 v6, 2, v0", f"v_add_u32 v6, {CL}, v6", f"s_mul_i32 s28, s{S_W}, 1280", "v_add_u32 v7, s28, v6"]
    L += ["s_barrier"]
    for n in range(5): L.append(f"ds_write_b32 v7, v{34+n} offset:{n*256}")
    k = 0
    for n in range(5):
        for j in range(4):
            i = n*4 + j
            L += cv[4*i:4*i+4]
            a = V_O + ((2*j)*5+n)*4
            L.append(f"ds_write_b128 v4, v[{a}:{a+3}] offset:{CBUF + (n*4+j)*1024}")
            while k < len(w01):
                ins = w01[k]; k += 1; L.append(ins)
                if ins.kind == "dma": break
    L += w01[k:]
    L += selector(48)
    L += ["v_lshlrev_b32 v6, 2, v0", f"v_add_u32 v6, {CL}, v6"]
    L += [f"s_lshl_b32 s28, s{S_W}, 10", f"v_add_u32 v5, s28, v{V_L16}", f"v_add_u32 v45, 0x10000, v5"]
    L += ["s_waitcnt lgkmcnt(0)", "s_barrier"]
    L += stamp(6, st)
    for n in range(5):
        for s_ in range(4): L.append(f"ds_read_b32 v{56+4*n+s_}, v6 offset:{s_*1280+n*256}")
    PB = V_O
    for n in range(5):
        for s_ in range(4):
            addr = CBUF + s_*20480 + n*4096
            L.append(f"ds_read_b128 v[{PB+(n*4+s_)*4}:{PB+(n*4+s_)*4+3}], v{5 if addr < 65536 else 45} offset:{addr & 0xffff}")
    for n in range(5):
        l = 56 + 4*n
        L += [f"v_add_f32 v{l}, v{l}, v{l+1}", f"v_add_f32 v{l+2}, v{l+2}, v{l+3}", f"v_add_f32 v{l}, v{l}, v{l+2}"]
    L += ["s_mov_b32 s29, 0x21800000", "s_mov_b32 s30, 0x5d800000", "s_mov_b64 s[90:91], 0"]
    for n in range(5):
        L += [f"v_cmp_nge_f32 vcc, v{56+4*n}, s29", "s_or_b64 s[90:91], s[90:91], vcc", f"v_cmp_nle_f32 vcc, v{56+4*n}, s30", "s_or_b64 s[90:91], s[90:91], vcc"]
    L += ["s_cmp_lg_u64 s[90:91], 0", "s_cselect_b32 s31, 1, 0", f"s_cmp_eq_u32 s{S_MODE}, 0", "s_cselect_b32 s31, s31, 0", "s_cmp_lg_u32 s31, 0", "s_cbranch_scc1 L_fallback"]
    for n in range(5): L.append(f"v_rcp_f32 v{56+4*n}, v{56+4*n}")
    DB = 164
    L += [f"s_lshl_b32 s28, s{S_W}, 10", f"v_add_u32 v44, s28, v{V_L16}", f"v_add_u32 v44, {OLOC[0]}, v44", f"s_lshl_b32 s29, s{S_GRP}, 2", f"s_add_u32 s29, s29, s{S_C}", "s_mul_i32 s29, s29, 20480",
          "s_add_u32 s93, s29, s28", f"s_add_u32 s93, s93, {WS_OF}"]
    for n in range(5):
        for s_ in range(4):
            q = f"v[{PB+(n*4+s_)*4}:{PB+(n*4+s_)*4+3}]"
            L += [f"v_mfma_f32_16x16x32_bf16 v[{DB+n*8}:{DB+n*8+3}], v[48:51], {q}, {'0' if s_ == 0 else f'v[{DB+n*8}:{DB+n*8+3}]'}",
                  f"v_mfma_f32_16x16x32_bf16 v[{DB+n*8+4}:{DB+n*8+7}], v[52:55], {q}, {'0' if s_ == 0 else f'v[{DB+n*8+4}:{DB+n*8+7}]'}"]
    L += ["s_barrier"]
    L += stamp(7, st)
    st_ = []; dw = []
    for n in range(5):
        l = 56 + 4*n; d = DB + n*8
        for r in range(8): L.append(f"v_mul_f32 v{d+r}, v{d+r}, v{l}")
        L += [f"v_cvt_pk_bf16_f32 v{d}, v{d}, v{d+1}", f"v_cvt_pk_bf16_f32 v{d+1}, v{d+2}, v{d+3}",
              f"v_cvt_pk_bf16_f32 v{d+2}, v{d+4}, v{d+5}", f"v_cvt_pk_bf16_f32 v{d+3}, v{d+6}, v{d+7}",
              f"s_add_u32 s30, s93, {n*4096}", f"buffer_store_dwordx4 v[{d}:{d+3}], v{V_L16}, s[{S_WS}:{S_WS+3}], s30 offen sc1"]
        dw.append(f"ds_write_b128 v44, v[{d}:{d+3}] offset:{n*4096}")
    L += dw
    L += wo_dma(2) + wo_dma(3)
    return L

def s2_chunk(hr, nbase):
    reads = []; mfs = []
    for j in range(4):
        for n in range(5):
            addr = OLOC[hr] + (n*4+j)*1024
            breg = 28 + ((nbase + j*5 + n) % 12)*4
            reads.append(P(f"ds_read_b128 v[{breg}:{breg+3}], v{248 + (addr >> 16)} offset:{addr & 0xffff}"))
            for ep in range(2):
                d = R('v', V_O + (ep*5+n)*4, 4)
                c = "0" if (hr == 0 and j == 0) else d
                a = A_WO[hr] + (j*2+ep)*4
                mfs.append(P(f"v_mfma_f32_16x16x32_bf16 {d}, a[{a}:{a+3}], v[{breg}:{breg+3}], {c}"))
    return reads, mfs
def s2_dma(hr):
    L = PL([f"s_add_u32 s29, s{S_C}, {hr}", "s_and_b32 s29, s29, 3", "s_mul_i32 s29, s29, 20480", "s_add_u32 s29, s29, s93", f"s_add_u32 m0, s31, {OLOC[hr]}"])
    for i in range(4): L.append(dma(f"v{V_L16}", f"s[{S_WS}:{S_WS+3}]", "s29", i*1024, ("P", hr), "sc1"))
    L += PL(["s_add_u32 s29, s29, 4096", f"s_add_u32 m0, s31, {OLOC[hr]+4096}"])
    L.append(dma(f"v{V_L16}", f"s[{S_WS}:{S_WS+3}]", "s29", 0, ("P", hr), "sc1"))
    return L

def stage2(opt):
    st = opt.get("stamps")
    L = flagline(F2)
    L += [f"s_lshl_b32 s28, s{S_C}, 2", f"s_add_u32 s28, s28, s{S_W}", "s_lshl_b32 s28, s28, 3", "s_add_u32 s31, s30, s28"]
    L += [f"v_add_u32 v76, 0x10000, v{V_WAX}", f"v_add_u32 v77, 0x10000, v{V_WAX+1}", f"v_add_u32 v78, 0x20000, v{V_WAX}", f"v_add_u32 v79, 0x20000, v{V_WAX+1}"]
    L += ["s_waitcnt vmcnt(16)"] + wave_flag(31, 0)
    L += ["s_waitcnt lgkmcnt(0)", "s_barrier"]
    L += [f"v_mov_b32 v248, v{V_L16}", f"v_add_u32 v249, 0x10000, v{V_L16}", f"v_add_u32 v250, 0x20000, v{V_L16}"]
    L = PL(L)
    regs_ = {0: V_WAX, 0x10000: 76, 0x20000: 78}
    L += wo_frag_reads(0, regs_) + wo_frag_reads(1, regs_)
    r0, m0 = s2_chunk(0, 0)
    AH = 6
    L += r0[:AH] + place(m0, [[F(r0[i], 2*(i-AH), 2*i - 4) for i in range(AH, 20)]], 8)
    L += PL(stamp(8, st))
    L += PL(poll(30, 15))
    L += PL(["s_waitcnt lgkmcnt(0)", "s_barrier"])
    L += PL([f"s_mul_i32 s31, s{S_W}, 5120", f"s_mul_i32 s93, s{S_GRP}, 81920", "s_add_u32 s93, s93, s31", f"s_add_u32 s93, s93, {WS_OF}"])
    L += s2_dma(1) + s2_dma(2)
    L += wo_frag_reads(2, regs_) + wo_frag_reads(3, regs_)
    mf = []; idx = {}; rdch = []; dm = []; fixed = {}
    nb = 20
    for hr in (1, 2, 3):
        idx[hr] = len(mf)
        r, m = s2_chunk(hr, nb); nb += 20
        fixed[idx[hr]] = [P("s_barrier", need_vm=[("P", hr)])] + r[:AH]
        for i in range(AH, 20): rdch.append(F(r[i], idx[hr] + 2*(i-AH), idx[hr] + 2*i - 4))
        mf += m
    kk = 0
    for ins in s2_dma(3):
        lo = idx[1] + 2 + kk*6
        dm.append(F(ins, lo, lo + 6))
        if ins.kind == "dma": kk += 1
    L += place(mf, [rdch, dm], 8, fixed)
    T = [f"s_lshl_b32 s28, s{S_B}, 2", f"s_add_u32 s28, s28, s{S_C}", "s_mul_i32 s28, s28, 20", f"s_mul_i32 s29, s{S_W}, 5", "s_add_u32 s28, s28, s29",
         "s_lshl_b32 s28, s28, 3", f"s_add_u32 s28, s28, s{S_G}", "s_lshl_b32 s28, s28, 10", f"s_add_u32 s28, s28, {WS_OUTP}"]
    for n in range(5):
        a = V_O + n*4; b = V_O + (5+n)*4
        t = 28 + n*4
        T += [f"v_cvt_pk_bf16_f32 v{t}, v{a}, v{a+1}", f"v_cvt_pk_bf16_f32 v{t+1}, v{a+2}, v{a+3}",
              f"v_cvt_pk_bf16_f32 v{t+2}, v{b}, v{b+1}", f"v_cvt_pk_bf16_f32 v{t+3}, v{b+2}, v{b+3}",
              f"s_add_u32 s29, s28, {n*8192}", f"buffer_store_dwordx4 v[{t}:{t+3}], v{V_L16}, s[{S_WS}:{S_WS+3}], s29 offen sc1"]
    return L + PL(T)

def stage3(opt):
    L = [f"s_lshl_b32 s28, s{S_B}, 2", f"s_add_u32 s28, s28, s{S_C}", "s_mov_b32 s67, s28", "s_lshl_b32 s28, s28, 2", f"s_add_u32 s29, s28, s{S_W}", "s_lshl_b32 s29, s29, 6",
         f"s_add_u32 s29, s29, {WS_FLAG+F3}", f"s_lshl_b32 s30, s{S_G}, 3", "s_add_u32 s31, s29, s30"]
    L += selector(48)
    L += ["s_waitcnt vmcnt(0)"] + wave_flag(31, 0)
    L += [f"s_lshl_b32 s28, s{S_G}, 2", f"s_add_u32 s28, s28, s{S_W}", "s_cmp_lt_u32 s28, 20", "s_cbranch_scc0 L_done", "s_mov_b32 s65, s28",
          "s_mul_i32 s28, s65, 52", "s_lshr_b32 s92, s28, 8",
          "s_lshl_b32 s28, s67, 2", "s_add_u32 s28, s28, s92", "s_lshl_b32 s28, s28, 6", f"s_add_u32 s31, s28, {WS_FLAG+F3}"]
    L += poll(31, 7)
    L += ["s_mul_i32 s29, s67, 20", "s_add_u32 s29, s29, s65", "s_lshl_b32 s29, s29, 13", f"s_add_u32 s29, s29, {WS_OUTP}", "s_add_u32 s30, s29, 4096"]
    for gp in range(8):
        L.append(f"buffer_load_dwordx4 v[{84+4*gp}:{87+4*gp}], v{V_L16}, s[{S_WS}:{S_WS+3}], s{29 if gp < 4 else 30} offen offset:{(gp&3)*1024} sc1")
    for gp in range(8):
        L += [f"v_mfma_f32_16x16x32_bf16 v[60:63], v[48:51], v[{84+4*gp}:{87+4*gp}], {'0' if gp == 0 else 'v[60:63]'}",
              f"v_mfma_f32_16x16x32_bf16 v[64:67], v[52:55], v[{84+4*gp}:{87+4*gp}], {'0' if gp == 0 else 'v[64:67]'}"]
    L += ["s_mul_i32 s29, s92, 5", "s_sub_u32 s29, s65, s29",
          "s_lshl_b32 s29, s29, 14", "s_lshl_b32 s28, s92, 6", "s_add_u32 s28, s28, s29", f"s_lshl_b32 s29, s{S_C}, 8", "s_add_u32 s28, s28, s29",
          f"s_mul_i32 s29, s{S_B}, 81920", "s_add_u32 s28, s28, s29", "v_lshlrev_b32 v4, 10, v2", "v_lshl_add_u32 v4, v3, 3, v4"]
    L += ["v_cvt_pk_bf16_f32 v68, v60, v61", "v_cvt_pk_bf16_f32 v69, v62, v63", "v_cvt_pk_bf16_f32 v70, v64, v65", "v_cvt_pk_bf16_f32 v71, v66, v67",
          f"buffer_store_dwordx2 v[68:69], v4, s[{S_OUT}:{S_OUT+3}], s28 offen", f"buffer_store_dwordx2 v[70:71], v4, s[{S_OUT}:{S_OUT+3}], s28 offen offset:32"]
    L += ["L_done:"]
    return L

def maxpass():
    L = ["s_waitcnt vmcnt(0) lgkmcnt(0)", "s_barrier"]
    MXR = [76, 77, 78, 79, 80]
    for n in range(5): L.append(f"v_mov_b32 v{MXR[n]}, 0xff800000")
    L += ["s_mov_b32 s90, 0", "L_maxloop:", f"s_lshl_b32 s{S_KOFF}, s90, 13", f"s_add_u32 s{S_KOFF2}, s{S_KOFF}, 4096"]
    for half in range(2):
        L.append(f"s_add_u32 m0, s{S_M0K}, {half*4096}")
        for i in range(4): L.append(dma(f"v{V_KD+i}", f"s[{S_KSRD}:{S_KSRD+3}]", f"s{S_KOFF if half == 0 else S_KOFF2}", i*1024, ("X", 0)))
    L += ["s_waitcnt vmcnt(0)"]
    L += k_reads(0)
    L += ["s_waitcnt lgkmcnt(0)"]
    for n in range(5):
        for s in range(2):
            for j in range(4):
                d = R("v", V_S + s*4, 4)
                L.append(mfma16(d, Kf(s, j), Qf(n, j), "0" if j == 0 else d))
        m = MXR[n]
        L += [f"v_max3_f32 v{m}, v{V_S}, v{V_S+1}, v{m}", f"v_max3_f32 v{m}, v{V_S+2}, v{V_S+3}, v{m}",
              f"v_max3_f32 v{m}, v{V_S+4}, v{V_S+5}, v{m}", f"v_max3_f32 v{m}, v{V_S+6}, v{V_S+7}, v{m}"]
    L += ["s_add_u32 s90, s90, 1", "s_cmp_lt_u32 s90, 16", "s_cbranch_scc1 L_maxloop"]
    for n in range(5):
        m = MXR[n]
        L += [f"v_mov_b32 v4, v{m}", f"v_permlane16_swap_b32 v4, v{m}", f"v_max_f32 v{m}, v4, v{m}",
              f"v_mov_b32 v4, v{m}", f"v_permlane32_swap_b32 v4, v{m}", f"v_max_f32 v{m}, v4, v{m}"]
    MB = 155648
    L += ["v_lshlrev_b32 v4, 2, v0", f"s_mul_i32 s29, s{S_W}, 1280", "v_add_u32 v5, s29, v4", f"v_add_u32 v5, {MB}, v5", f"v_add_u32 v4, {MB}, v4"]
    for n in range(5): L.append(f"ds_write_b32 v5, v{MXR[n]} offset:{n*256}")
    L += ["s_waitcnt lgkmcnt(0)", "s_barrier"]
    for n in range(5):
        for w in range(4): L.append(f"ds_read_b32 v{V_S+w}, v4 offset:{w*1280+n*256}")
        L += ["s_waitcnt lgkmcnt(0)", f"v_max3_f32 v5, v{V_S}, v{V_S+1}, v{V_S+2}", f"v_max_f32 v5, v5, v{V_S+3}"]
        for r in range(4): L.append(f"v_sub_f32 v{V_NEGM+n*4+r}, 0, v5")
    L += k_dma(0) + v_dma(0) + k_dma(1) + v_dma(1)
    return L

def kernel(opt):
    st = opt.get("stamps")
    L = setup0(opt)
    L += stampw(0, st)
    L += nonce_publish()
    L += ["L_restart:"]
    L += setup1()
    L += qp_dma(0)
    L += qp_lanebases()
    L += qp_dma(1)
    L += ring_addrs()
    for i in range(4): L += ["v_mov_b32 v1, 0x3f803f80", f"v_accvgpr_write_b32 a{A_ONE+i}, v1"]
    for i in range(20): L.append(f"v_mov_b32 v{V_NEGM+i}, 0")
    L += stamp(1, st)
    L += qproj(opt)
    L += stamp(2, st)
    L += q_exchange(opt)
    S1, n1 = finalize(L)
    M = [f"s_cmp_eq_u32 s{S_MODE}, 0", "s_cbranch_scc1 L_attn"] + maxpass() + ["L_attn:"]
    S1b, n1b = finalize(M)
    vmq = [("K", 0)]*8 + [("V", 0)]*8 + [("K", 1)]*8 + [("V", 1)]*8
    kr0 = k_reads(0); kr0[0].need_vm = [("K", 0)]
    body = PL(stampw(4, st)) + kr0 + build(opt)
    S2, _, _ = insert_waits(body, vm_outstanding=vmq)
    S2, n2 = check_hazards(S2)
    T = ["s_nop 7"] + stampw(5, st)
    T = PL(T) + PL(stage1(opt)) + stage2(opt) + PL(stage3(opt))
    E = []
    if st:
        E += ["s_memtime s[88:89]", "s_memrealtime s[90:91]", "s_waitcnt lgkmcnt(0)",
              "s_lshl_b32 s28, s2, 2", f"s_add_u32 s28, s28, s{S_W}", "s_lshl_b32 s28, s28, 6", f"s_add_u32 s28, s28, {WS_STAMP}", "v_mov_b32 v2, s28"]
        if MS[0]: E += ["s_mov_b32 s88, s86"]
        for k in range(9):
            E += [f"s_sub_u32 s29, s{72+2*k}, s{70+2*k}", "v_mov_b32 v3, s29", f"buffer_store_dword v3, v2, s[{S_WS}:{S_WS+3}], 0 offen offset:{4*k}", "s_nop 1"]
        for k, s in ((12, "s68"), (13, "s90")):
            E += [f"v_mov_b32 v3, {s}", f"buffer_store_dword v3, v2, s[{S_WS}:{S_WS+3}], 0 offen offset:{4*k}", "s_nop 1"]
    E += ["s_waitcnt vmcnt(0)", "s_endpgm", "L_fallback:", f"s_mov_b32 s{S_MODE}, 1", "s_waitcnt vmcnt(0) lgkmcnt(0)", "s_barrier", "s_branch L_restart", "L_end:", "s_endpgm"]
    S3, n3 = finalize(T + PL(E))
    print(f"; nops inserted {n1} {n1b} {n2} {n3}", file=sys.stderr)
    return emit(S1) + "\n" + emit(S1b) + "\n" + emit(S2) + "\n" + emit(S3) + "\n"

def gen(opt):
    mb.OPT["flags"] = opt.get("flags", ""); mb.OPT["rot"] = opt.get("rot", True)
    MS[0] = (4, 5) if opt.get("mainstamps") else None
    hdr = open("standalone__gqa_block_cached__near_ridge.s.ref").read().split("; Override")[0]
    s = hdr + "; @launch grid=(256,1,1) block=(256,1,1) lds=163840\n"
    s += f'.amdgcn_target "amdgcn-amd-amdhsa--gfx950"\n.text\n.globl {KN}\n.p2align 8\n.type {KN},@function\n{KN}:\n'
    s += kernel(opt)
    s += footer(vgpr=512, accum=256, name=KN)
    return s

if __name__ == "__main__":
    open("a2.s", "w").write(gen({}))
    open("a2_st.s", "w").write(gen({"stamps": True}))
    open("a2norot_st.s", "w").write(gen({"stamps": True, "rot": False}))
```

```python
from sched import *

V_KA = 8
V_VA = 12
V_KD = 20
V_VD = 24
V_WAX = 26
V_L16 = 252
V_WD = 244
V_NEGM = 28
V_S = 48
V_P = 72
V_O = 84
A_Q = 0; A_K = 80; A_V = 112; A_L = 144; A_ONE = 164
S_KSRD = 12; S_VSRD = 16; S_WOSRD = 52
S_M0K = 24
S_KOFF = 25; S_VOFF = 26
S_KOFF2 = 98; S_VOFF2 = 99
S_WOB = [94, 95, 96, 97]
S_WOFF = 100
S_PLM0 = 101; S_PLOFF = 66
NT = 16
OPT = {"flags": ""}
KSLOT = [0, 32768]; VSLOT = [65536, 98304]
WO_REG = [131072, 98304, 0, 32768]
A_WO = [0, 32, 64, 96]

def Sreg(G, s, r=None):
    b = V_S + (G % 3)*8 + s*4
    return R("v", b, 4) if r is None else f"v{b+r}"
def Preg(G, i=None):
    b = V_P + (G % 3)*4
    return R("v", b, 4) if i is None else f"v{b+i}"
def Kf(s, j): return R("a", A_K + (s*4+j)*4, 4)
def Vf(dt, h=None):
    b = A_V + dt*4
    return R("a", b, 4) if h is None else R("a", b+2*h, 2)
def Qf(n, j): return R("a", A_Q + (n*4+j)*4, 4)
def Of(dt, n): return R("v", V_O + (dt*5+n)*4, 4)
def Lf(n): return R("a", A_L + n*4, 4)

def qk_mfmas(G):
    n = G % 5
    L = []
    for s in range(2):
        for j in range(4):
            c = R("v", V_NEGM + n*4, 4) if j == 0 else Sreg(G, s)
            L.append(mfma16(Sreg(G, s), Kf(s, j), Qf(n, j), c, tag=("qk", G, s, j)))
    return L
def pv_mfmas(G):
    n = G % 5
    first = G < 5
    L = [mfma16(Of(dt, n), Vf(dt), Preg(G), "0" if first else Of(dt, n), tag=("pv", G, dt)) for dt in range(8)]
    L.append(mfma16(Lf(n), R("a", A_ONE, 4), Preg(G), "0" if first else Lf(n), tag=("l", G)))
    return L
def softmax_fillers(G):
    e = [vexp(Sreg(G, s, r), Sreg(G, s, r)) for s in range(2) for r in range(4)]
    c = [vcvtpk(Preg(G, i), Sreg(G, i//2, (i%2)*2), Sreg(G, i//2, (i%2)*2+1)) for i in range(4)]
    return [e[0], e[1], e[2], c[0], e[3], e[4], c[1], e[5], e[6], c[2], e[7], c[3]]
def k_reads(t):
    sl = (t % 2)*32768
    return [ds_read128(Kf(s, j), f"v{V_KA+j}", sl + s*4096) for s in range(2) for j in range(4)]
def v_reads(t):
    sl = (t % 2)*32768
    return [ds_read_tr(Vf(dt, h), f"v{V_VA+dt}", sl + h*4096) for dt in range(8) for h in range(2)]
S_TAB = 92
def toff(reg, reg2, t):
    if not OPT.get("rot"):
        return [salu(f"s_mov_b32 s{reg}, {t*8192}"), salu(f"s_mov_b32 s{reg2}, {t*8192+4096}")]
    src = S_TAB + (t >> 3)
    return [salu(f"s_bfe_u32 s{reg}, s{src}, {hex((4*(t % 8)) | (4 << 16))}"), salu(f"s_lshl_b32 s{reg}, s{reg}, 13"), salu(f"s_add_u32 s{reg2}, s{reg}, 4096")]
def k_dma(t):
    sl = KSLOT[t % 2]
    L = toff(S_KOFF, S_KOFF2, t)
    for half in range(2):
        L.append(salu(f"s_add_u32 m0, s{S_M0K}, {sl + half*4096}"))
        for i in range(4):
            L.append(dma(f"v{V_KD+i}", f"s[{S_KSRD}:{S_KSRD+3}]", f"s{S_KOFF if half == 0 else S_KOFF2}", i*1024, ("K", t), OPT["flags"]))
    return L
def v_dma(t):
    sl = VSLOT[t % 2]
    L = toff(S_VOFF, S_VOFF2, t)
    for half in range(2):
        L.append(salu(f"s_add_u32 m0, s{S_M0K}, {sl + half*4096}"))
        for i in range(4):
            L.append(dma(f"v{V_VD+(i&1)}", f"s[{S_VSRD}:{S_VSRD+3}]", f"s{S_VOFF if half == 0 else S_VOFF2}", i*1024, ("V", t), OPT["flags"]))
    return L
def wo_dma(hr):
    L = []
    for half in range(2):
        L += [salu(f"s_add_u32 s{S_WOFF}, s{S_WOB[hr]}, {half*16384}"), salu(f"s_add_u32 m0, s{S_M0K}, {WO_REG[hr] + half*4096}")]
        for i in range(4): L.append(dma(f"v{V_WD+i}", f"s[{S_WOSRD}:{S_WOSRD+3}]", f"s{S_WOFF}", i*1024, ("W", hr)))
    return L
def wo_frag_reads(hr, regs_):
    L = []
    for j in range(4):
        for ep in range(2):
            for hh in range(2):
                addr = WO_REG[hr] + (32*j + 16*hh)*256
                base = addr & ~0xffff
                r = A_WO[hr] + (j*2+ep)*4 + 2*hh
                L.append(P(f"ds_read_b64_tr_b16 a[{r}:{r+1}], v{regs_[base]+ep} offset:{addr - base}"))
    return L

V_CW = 253; V_CLW = 254; V_LT = 255
CREG = [0, 32768, 65536]
def combine_writes(n):
    L = []
    for j in range(4):
        a = V_O + ((2*j)*5+n)*4; b = V_O + ((2*j+1)*5+n)*4
        q = n*4 + j
        reg, off = (V_CW, CREG[q >> 3] + (q & 7)*1024) if q < 16 else (44, (q & 7)*1024)
        L += [P(f"v_cvt_pk_bf16_f32 v{a}, v{a}, v{a+1}"), P(f"v_cvt_pk_bf16_f32 v{a+1}, v{a+2}, v{a+3}"),
              P(f"v_cvt_pk_bf16_f32 v{a+2}, v{b}, v{b+1}"), P(f"v_cvt_pk_bf16_f32 v{a+3}, v{b+2}, v{b+3}"),
              P(f"ds_write_b128 v{reg}, v[{a}:{a+3}] offset:{off}")]
    L += [P(f"v_accvgpr_read_b32 v{V_LT}, a{A_L+4*n}"), P(f"ds_write_b32 v{V_CLW}, v{V_LT} offset:{n*256}")]
    return L

class F:
    def __init__(s, ins, lo, hi): s.ins = ins; s.lo = lo; s.hi = hi

def place(mf, chains, cap=8, fixed=None):
    stream = []
    ptr = [0]*len(chains)
    for m, ins in enumerate(mf):
        if fixed and m in fixed: stream += fixed[m]
        stream.append(ins)
        used = 0
        while True:
            cand = []
            for c, ch in enumerate(chains):
                if ptr[c] < len(ch) and ch[ptr[c]].lo <= m:
                    cand.append((ch[ptr[c]].hi, c))
            if not cand: break
            cand.sort()
            placed = False
            for hi, c in cand:
                f = chains[c][ptr[c]]
                if used + f.ins.cost <= cap or hi <= m:
                    stream.append(f.ins); used += f.ins.cost; ptr[c] += 1; placed = True
                    break
            if not placed: break
    for c, ch in enumerate(chains):
        assert ptr[c] == len(ch), (c, ptr[c], len(ch))
    return stream

def spaced(instrs, start, sp, win):
    out = []; k = 0
    for ins in instrs:
        lo = start + k*sp
        out.append(F(ins, lo, lo + win))
        if ins.kind == "dma": k += 1
    return out

def build(opt):
    nt = NT; nG = 5*nt
    mf = []; qk_idx = {}; pv_idx = {}
    for X in range(nG + 2):
        if X < nG:
            qk_idx[X] = len(mf); mf += qk_mfmas(X)
        if 0 <= X-2 < nG:
            pv_idx[X-2] = len(mf); mf += pv_mfmas(X-2)
    allf = []
    for G in range(nG):
        fl = softmax_fillers(G)
        lo0 = qk_idx[G] + 3 + 5; lo1 = qk_idx[G] + 7 + 5
        hi = pv_idx[G] - 2
        for k, ins in enumerate(fl):
            allf.append(F(ins, min(lo1 if k >= 5 else lo0, hi), hi))
    kr = []; vr_ = []; dm = []
    sp = opt.get("space", 4); win = opt.get("dwin", 4)
    for idx, ins in enumerate(v_reads(0)):
        if idx == 0: ins.need_vm = [("V", 0)]
        vr_.append(F(ins, 2 + idx//2, pv_idx[0] - 4))
    for t in range(1, nt):
        G = 5*t - 1
        for idx, ins in enumerate(k_reads(t)):
            if idx == 0: ins.need_vm = [("K", t)]
            kr.append(F(ins, qk_idx[G] + idx, qk_idx[G+1] + idx - 4))
        for idx, ins in enumerate(v_reads(t)):
            dt = idx // 2
            if idx == 0: ins.need_vm = [("V", t)]
            vr_.append(F(ins, pv_idx[G] + dt, pv_idx[G+1] + dt - 4))
    for t in range(nt):
        lok = qk_idx[5*t] + 8
        lov = pv_idx[5*t] + 9
        if t + 2 < nt:
            dm += spaced(k_dma(t+2), lok, sp, win)
            dm += spaced(v_dma(t+2), lov, sp, win)
            if t == opt.get("prelead_t", 11) and opt.get("prelead", True):
                pl = [salu(f"s_add_u32 m0, s{S_PLM0}, 0")]
                for i in range(4): pl.append(dma(f"v{V_WD+i}", f"s[{S_WOSRD}:{S_WOSRD+3}]", f"s{S_PLOFF}", i*1024, ("PL", 0)))
                dm += spaced(pl, lov + 8*sp, 2, win)
        elif opt.get("wo_in_loop_end"):
            if t == 15: dm += spaced(wo_dma(0), lok, sp, win)
    dm.sort(key=lambda f: 0)
    tf = []
    if opt.get("early", True):
        last = len(mf) - 1
        for n in range(4):
            lo = pv_idx[75+n] + 12
            items = combine_writes(n)
            for k, ins in enumerate(items):
                l2 = min(lo + k//2, last)
                tf.append(F(ins, l2, min(l2 + 10, last)))
    return place(mf, [allf, kr, vr_, dm, tf], opt.get("cap", 8))
```

```python
import sys, struct, math
from asmlib import *
from sched import *
import maina2 as mb
from maina2 import *

KN = "standalone__gqa_block_cached__near_ridge_kernel"
CSCALE = struct.unpack("<I", struct.pack("<f", math.log2(math.e)/math.sqrt(128.0)))[0]

WS_QX   = 0x0000000
WS_PART = 0x0600000
WS_LP   = 0x1B00000
WS_OF   = 0x1C00000
WS_OUTP = 0x2200000
WS_FLAG = 0x2800000
WS_MX   = 0x2900000
WS_STAMP= 0x1400000 + 0x1800000
WS_SIZE = 0x4000000
FQ, FQB, F1, F1B, F2, FM, F3 = 0, 0x4000, 0x8000, 0xC000, 0x10000, 0x14000, 0x18000
S_W, S_B, S_C, S_G = 20, 21, 22, 23
S_MODE = 27
S_X, S_WQ, S_WS, S_OUT, S_DBG = 32, 36, 40, 56, 60
S_NONCE = 64
S_GRP = 65
S_ROT = 67
QP_W = [32768, 98304, 131072]
QP_X = [49152, 114688, 147456]
QBUF = 131072
V_XD = 236; V_WQD = 239; V_WB = 243; V_XB = (248, 249)
V_QD = 84
QA = [164, 200]; QB = [172, 208]
V_QWA = (250, 251); V_QXA = ((48, 49), (50, 51))
V_NONCE = 253

STP = [None]
def nst(name):
    if STP[0] and name in STP[0]:
        i = STP[0].index(name); return [f"s_memtime s[{70+2*i}:{71+2*i}]"]
    return []
MS = [None]
def stamp(i, on):
    if STP[0] is not None: return nst({0:'start',1:'setup',2:'qproj',3:'qx',4:'main0',5:'main1',6:'cw',7:'cr',8:'own'}[i])
    if MS[0]:
        if i == MS[0][0]: return ['s_memtime s[70:71]']
        if i == MS[0][1]: return ['s_memtime s[86:87]']
        return []
    return [f"s_memtime s[{70+2*i}:{71+2*i}]"] if on else []
def stampw(i, on):
    if STP[0] is not None:
        r = stamp(i, on)
        return r + ['s_waitcnt lgkmcnt(0)'] if r else []
    if MS[0]:
        r = stamp(i, on)
        return r + ["s_waitcnt lgkmcnt(0)"] if r else []
    return [f"s_memtime s[{70+2*i}:{71+2*i}]", "s_waitcnt lgkmcnt(0)"] if on else []

_uid = [0]
def uid():
    _uid[0] += 1; return _uid[0]

def setup0(opt):
    L = ["s_cmp_ge_u32 s2, 256", "s_cbranch_scc1 L_end",
         "s_load_dwordx8 s[4:11], s[0:1], 0", "s_load_dwordx4 s[44:47], s[0:1], 32", "s_load_dwordx4 s[48:51], s[0:1], 48"]
    if opt.get("stamps"): L += ["s_memrealtime s[68:69]"]
    L += ["v_lshrrev_b32 v1, 6, v0", "v_and_b32 v0, 63, v0", f"v_readfirstlane_b32 s{S_W}, v1",
          f"s_and_b32 s{S_G}, s2, 7", f"s_lshr_b32 s{S_C}, s2, 3", f"s_and_b32 s{S_C}, s{S_C}, 3", f"s_lshr_b32 s{S_B}, s2, 5",
          f"s_lshl_b32 s{S_GRP}, s{S_B}, 3", f"s_add_u32 s{S_GRP}, s{S_GRP}, s{S_G}",
          f"s_mov_b32 s{S_MODE}, 0", f"s_mov_b32 s{S_NONCE}, 0", "s_waitcnt lgkmcnt(0)"]
    L += [f"s_mul_i32 s28, s{S_B}, 81920", f"s_add_u32 s{S_X}, s4, s28", f"s_addc_u32 s{S_X+1}, s5, 0", f"s_and_b32 s{S_X+1}, s{S_X+1}, 0xffff",
          f"s_mov_b32 s{S_X+2}, 81920", f"s_mov_b32 s{S_X+3}, 0x20000"]
    L += srd(S_WQ, 10, 512*4096*2)
    L += [f"s_lshl_b32 s28, s{S_GRP}, 19", f"s_lshl_b32 s29, s{S_W}, 17", "s_add_u32 s28, s28, s29"]
    L += ["s_add_u32 s12, s6, s28", "s_addc_u32 s13, s7, 0", "s_and_b32 s13, s13, 0xffff", "s_mov_b32 s14, 0x20000", "s_mov_b32 s15, 0x20000"]
    L += ["s_add_u32 s16, s8, s28", "s_addc_u32 s17, s9, 0", "s_and_b32 s17, s17, 0xffff", "s_mov_b32 s18, 0x20000", "s_mov_b32 s19, 0x20000"]
    L += srd(S_WS, 50, WS_SIZE) + srd(S_WOSRD, 44, 4096*512*2) + srd(S_OUT, 46, 8*80*512*2) + srd(S_DBG, 48, 256)
    return L

def setup1():
    L = ["v_and_b32 v2, 15, v0", "v_lshrrev_b32 v3, 4, v0", f"v_lshlrev_b32 v{V_L16}, 4, v0"]
    L += ["v_lshrrev_b32 v4, 3, v0", f"s_mul_i32 s28, s{S_W}, 24", "v_add_u32 v4, s28, v4", "v_and_b32 v5, 7, v0"]
    for m in range(3):
        L += [f"v_add_u32 v6, {8*m}, v4", "v_lshrrev_b32 v7, 1, v6", "v_and_b32 v7, 7, v7", "v_xor_b32 v7, v7, v5", "v_lshlrev_b32 v7, 4, v7",
              "v_lshl_add_u32 v7, v6, 10, v7", f"v_subrev_u32 v{V_XD+m}, {m*1024}, v7"]
    L += [f"s_lshl_b32 s28, s{S_W}, 4", "v_add_u32 v4, s28, v3", "v_lshlrev_b32 v5, 2, v3", "v_xor_b32 v5, v5, v2", "v_lshlrev_b32 v5, 4, v5", "v_lshl_add_u32 v5, v4, 13, v5"]
    for i in range(4): L.append(f"v_add_u32 v{V_WQD+i}, {i*31744}, v5")
    L += [f"s_add_u32 s28, s{S_C}, s{S_B}", "s_and_b32 s28, s28, 3", "s_lshl_b32 s28, s28, 1", f"s_lshr_b32 s29, s{S_B}, 2", f"s_add_u32 s{S_ROT}, s28, s29"]
    L += [f"s_lshl_b32 s28, s{S_G}, 2", f"s_add_u32 s28, s28, s{S_C}", "s_lshl_b32 s31, s28, 8"]
    return L

def qp_dma(hc):
    buf = hc % 3; tag = ("C", hc)
    L = [f"s_add_u32 s28, s{S_ROT}, {hc}", "s_and_b32 s28, s28, 7", "s_lshl_b32 s29, s28, 7",
         f"s_mul_i32 s30, s{S_W}, 3072", f"s_add_u32 m0, s30, {QP_X[buf]}"]
    for m in range(3): L.append(dma(f"v{V_XD+m}", f"s[{S_X}:{S_X+3}]", "s29", m*1024, tag))
    L += ["s_lshl_b32 s29, s28, 19", "s_add_u32 s29, s29, s31", f"s_lshl_b32 s30, s{S_W}, 12", f"s_add_u32 m0, s30, {QP_W[buf]}"]
    for i in range(4): L.append(dma(f"v{V_WQD+i}", f"s[{S_WQ}:{S_WQ+3}]", "s29", i*1024, tag))
    return L

def qp_lanebases():
    L = ["v_lshrrev_b32 v4, 2, v2", f"v_xor_b32 v5, s{S_W}, v4", "v_lshlrev_b32 v5, 6, v5", "v_lshl_add_u32 v6, v3, 3, v4", "v_lshl_add_u32 v5, v6, 8, v5",
         "v_and_b32 v6, 3, v0", f"v_lshl_add_u32 v{V_WB}, v6, 4, v5"]
    for ks in range(2):
        L += [f"v_add_u32 v5, {4*ks}, v3", "v_lshrrev_b32 v6, 1, v2", "v_xor_b32 v5, v5, v6", "v_lshlrev_b32 v5, 4, v5", f"v_lshl_add_u32 v{V_XB[ks]}, v2, 7, v5"]
    return L

def ring_addrs():
    L = [f"s_lshl_b32 s{S_M0K}, s{S_W}, 13"]
    L += ["v_xor_b32 v6, v2, v3"]
    for i in range(4):
        L += [f"v_xor_b32 v5, {4*i}, v6", "v_lshlrev_b32 v5, 4, v5", f"v_lshl_add_u32 v{V_KD+i}, v3, 8, v5"]
    for i in range(2):
        L += [f"v_add_u32 v5, {4*i}, v3", "v_lshlrev_b32 v5, 1, v5", "v_xor_b32 v5, v5, v2", "v_lshlrev_b32 v5, 4, v5", f"v_lshl_add_u32 v{V_VD+i}, v3, 8, v5"]
    for j in range(4):
        L += [f"v_add_u32 v5, {4*j}, v3", "v_xor_b32 v5, v5, v2", "v_lshlrev_b32 v5, 4, v5", "v_lshl_add_u32 v5, v2, 8, v5", f"v_add_u32 v{V_KA+j}, s{S_M0K}, v5"]
    L += ["v_lshrrev_b32 v4, 2, v2", "v_lshl_add_u32 v4, v3, 2, v4", "v_and_b32 v5, 7, v4", "v_lshlrev_b32 v5, 1, v5",
          "v_and_b32 v6, 3, v0", "v_lshrrev_b32 v6, 1, v6", "v_and_b32 v7, 1, v0", "v_lshlrev_b32 v7, 3, v7",
          "v_lshl_add_u32 v7, v4, 8, v7"]
    L += [f"s_lshl_b32 s28, s{S_W}, 2"]
    for ep in range(2):
        L += [f"s_add_u32 s29, s28, {2*ep}", "v_add_u32 v1, s29, v6", "v_xor_b32 v1, v1, v5", f"v_lshl_add_u32 v{V_WAX+ep}, v1, 4, v7"]
    L += [f"s_add_u32 s28, s{S_M0K}, 65536", "v_add_u32 v7, s28, v7"]
    for dt in range(8):
        L += [f"v_add_u32 v1, {2*dt}, v6", "v_xor_b32 v1, v1, v5", f"v_lshl_add_u32 v{V_VA+dt}, v1, 4, v7"]
    for i in range(4):
        L += [f"v_add_u32 v5, {4*(i&1)}, v3", "v_lshlrev_b32 v5, 1, v5", "v_xor_b32 v5, v5, v2", "v_lshlrev_b32 v5, 4, v5",
              f"v_add_u32 v6, {4*i}, v3", "v_lshl_add_u32 v5, v6, 10, v5", f"v_subrev_u32 v{V_WD+i}, {i*1024}, v5"]
    if mb.OPT.get("rot"):
        def order(j, ph):
            o = []; bounds = [0] + [x for x in range(ph, 16, 4) if x > 0] + [16]
            for a_, b_ in zip(bounds[:-1], bounds[1:]):
                n_ = b_ - a_
                o += [a_ + ((i + j) % n_) for i in range(n_)]
            return o
        L += [f"s_and_b32 s28, s{S_B}, 3", "s_lshl_b32 s28, s28, 2", f"s_add_u32 s28, s28, s{S_C}", f"s_mov_b32 s{S_TAB}, 0", f"s_mov_b32 s{S_TAB+1}, 0"]
        for ph in range(4):
            for j in range(4):
                o = order(j, ph); assert sorted(o) == list(range(16))
                lo = sum(v << (4*i) for i, v in enumerate(o[:8])); hi = sum(v << (4*i) for i, v in enumerate(o[8:]))
                L += [f"s_cmp_eq_u32 s28, {ph*4+j}", f"s_cselect_b32 s{S_TAB}, {hex(lo)}, s{S_TAB}", f"s_cselect_b32 s{S_TAB+1}, {hex(hi)}, s{S_TAB+1}"]
    L += [f"s_lshl_b32 s28, s{S_B}, 16", f"s_lshl_b32 s29, s{S_W}, 14", "s_add_u32 s28, s28, s29", f"s_lshl_b32 s29, s{S_G}, 19", "s_add_u32 s28, s28, s29",
          f"s_lshl_b32 s29, s{S_C}, 8", f"s_add_u32 s{S_PLOFF}, s28, s29", f"s_lshl_b32 s28, s{S_W}, 13", f"s_add_u32 s{S_PLM0}, s28, 131072"]
    for hr in range(4):
        L += [f"s_add_u32 s28, s{S_C}, {hr}", "s_and_b32 s28, s28, 3", "s_lshl_b32 s28, s28, 17", f"s_lshl_b32 s29, s{S_G}, 19", "s_add_u32 s28, s28, s29",
              f"s_lshl_b32 s29, s{S_C}, 8", "s_add_u32 s28, s28, s29", f"s_lshl_b32 s29, s{S_W}, 15", f"s_add_u32 s{S_WOB[hr]}, s28, s29"]
    return L

def qp_reads(hc, ks):
    st = ks; xa = V_QXA[hc % 2][ks]; wa = V_QWA[hc % 2]
    r = [P(f"ds_read_b128 {R('v', QB[st]+4*n, 4)}, v{xa} offset:{n*2048}") for n in range(5)]
    for e in range(2):
        for hh in range(2):
            r.append(P(f"ds_read_b64_tr_b16 {R('v', QA[st]+e*4+2*hh, 2)}, v{wa} offset:{ks*8192+hh*1024+e*8}"))
    return [r[5], r[6], r[0], r[7], r[8], r[1], r[2], r[3], r[4]]
def qp_addr(hc):
    buf = hc % 3
    return PL([f"v_add_u32 v{V_QWA[hc%2]}, {QP_W[buf]}, v{V_WB}", f"v_add_u32 v{V_QXA[hc%2][0]}, {QP_X[buf]}, v{V_XB[0]}",
               f"v_add_u32 v{V_QXA[hc%2][1]}, {QP_X[buf]}, v{V_XB[1]}"])
def qp_mfmas(hc, ks):
    r = []
    for n in range(5):
        for e in range(2):
            d = R('v', V_QD+(e*5+n)*4, 4)
            c = "0" if (hc == 0 and ks == 0) else d
            r.append(P(f"v_mfma_f32_16x16x32_bf16 {d}, {R('v', QA[ks]+e*4, 4)}, {R('v', QB[ks]+4*n, 4)}, {c}"))
    return r

def qproj(opt):
    mf = []; idx = {}
    for hc in range(8):
        for ks in range(2):
            idx[(hc, ks)] = len(mf); mf += qp_mfmas(hc, ks)
    fixed = {}; rd = []; dm = []
    pre = [P("s_barrier", need_vm=[("C", 0)])] + qp_addr(0) + qp_reads(0, 0)
    for k, ins in enumerate(qp_reads(0, 1)): rd.append(F(ins, idx[(0, 0)] + k, idx[(0, 1)] - 1))
    for hc in range(1, 8):
        bpos = idx[(hc-1, 1)]
        fixed[bpos] = [P("s_waitcnt lgkmcnt(0)"), P("s_barrier", need_vm=[("C", hc)])] + qp_addr(hc)
        for k, ins in enumerate(qp_reads(hc, 0)): rd.append(F(ins, bpos + k, idx[(hc, 0)] - 1))
        for k, ins in enumerate(qp_reads(hc, 1)): rd.append(F(ins, idx[(hc, 0)] + k, idx[(hc, 1)] - 1))
    def sched(items, start, end):
        n = sum(1 for i in items if i.kind in ("dma", "vmem"))
        step = max(1, (end - start) // max(n, 1))
        out = []; k = 0
        for ins in items:
            lo = min(start + k*step, end - 1)
            out.append(F(ins, lo, lo + step))
            if ins.kind in ("dma", "vmem"): k += 1
        return out
    dm += sched(PL(qp_dma(2)), idx[(0, 0)], idx[(0, 1)])
    for hc in range(1, 6):
        dm += sched(PL(qp_dma(hc+2)), idx[(hc-1, 1)] + 1, idx[(hc, 1)])
    nl = PL([f"s_lshl_b32 s28, s{S_B}, 5", "v_mov_b32 v254, s28", f"buffer_load_dword v{V_NONCE}, v254, s[{S_DBG}:{S_DBG+3}], 0 offen sc1"])
    dm += sched(nl + k_dma(0) + v_dma(0), idx[(5, 1)] + 1, idx[(7, 1)] + 8)
    return pre + place(mf, [rd, dm], 8, fixed)

def nonce_publish():
    return [f"s_or_b32 s28, s{S_G}, s{S_C}", f"s_or_b32 s28, s28, s{S_W}", "s_cmp_eq_u32 s28, 0", "s_cbranch_scc0 L_not_leader",
            "s_memrealtime s[28:29]", "s_waitcnt lgkmcnt(0)", "s_or_b32 s28, s28, 1", "v_mov_b32 v5, s28", f"s_lshl_b32 s29, s{S_B}, 5", "v_mov_b32 v4, s29",
            f"buffer_store_dword v5, v4, s[{S_DBG}:{S_DBG+3}], 0 offen sc1", "L_not_leader:"]
def nonce_code():
    return [f"s_cmp_lg_u32 s{S_NONCE}, 0", "s_cbranch_scc1 L_have_nonce", f"v_readfirstlane_b32 s{S_NONCE}, v{V_NONCE}",
            f"s_cmp_lg_u32 s{S_NONCE}, 0", "s_cbranch_scc1 L_have_nonce",
            f"s_lshl_b32 s28, s{S_B}, 5", "v_mov_b32 v4, s28", "s_mov_b32 s29, 0", "L_nonce_poll:",
            f"buffer_load_dword v5, v4, s[{S_DBG}:{S_DBG+3}], 0 offen sc1", "s_waitcnt vmcnt(0)", f"v_readfirstlane_b32 s{S_NONCE}, v5",
            f"s_cmp_lg_u32 s{S_NONCE}, 0", "s_cbranch_scc1 L_have_nonce", "s_add_u32 s29, s29, 1", "s_cmp_lt_u32 s29, 0x40000", "s_cbranch_scc0 L_have_nonce",
            "s_sleep 2", "s_branch L_nonce_poll", "L_have_nonce:"]

def wave_flag(addr_s, payload):
    return [f"v_mov_b32 v4, s{addr_s}", f"v_mov_b32 v6, s{S_NONCE}", f"v_mov_b32 v7, {payload}", "s_mov_b64 exec, 1",
            f"buffer_store_dwordx2 v[6:7], v4, s[{S_WS}:{S_WS+3}], 0 offen sc1", "s_mov_b64 exec, -1"]
def poll(base_s, mask, shift=3, lane_off=0):
    u = uid()
    return [f"v_and_b32 v4, {mask}, v0", f"v_lshlrev_b32 v4, {shift}, v4", f"v_add_u32 v4, s{base_s}, v4", "s_mov_b32 s29, 0", f"L_pf{u}:",
            f"buffer_load_dwordx2 v[6:7], v4, s[{S_WS}:{S_WS+3}], 0 offen sc1", "s_waitcnt vmcnt(0)",
            f"v_cmp_ne_u32 vcc, s{S_NONCE}, v6", f"s_cbranch_vccz L_pf{u}_ok", "s_add_u32 s29, s29, 1", "s_cmp_lt_u32 s29, 0x40000",
            f"s_cbranch_scc1 L_pf{u}", f"L_pf{u}_ok:"]
def flagline(area_a, area_b=None):
    L = [f"s_lshl_b32 s30, s{S_GRP}, 7", f"s_add_u32 s30, s30, {WS_FLAG}"]
    if area_b is None: L += [f"s_add_u32 s30, s30, {area_a}"] if area_a else []
    else: L += [f"s_mul_i32 s29, s{S_MODE}, {area_b - area_a}", "s_add_u32 s30, s30, s29"] + ([f"s_add_u32 s30, s30, {area_a}"] if area_a else [])
    return L

def q_exchange(opt):
    st = opt.get("stamps")
    L = ["s_waitcnt lgkmcnt(0)", "s_barrier"]
    L += k_dma(1)
    L += [f"s_mov_b32 s29, {hex(CSCALE)}", f"s_lshl_b32 s28, s{S_W}, 10", f"v_add_u32 v4, s28, v{V_L16}", f"v_add_u32 v4, {QBUF}, v4"]
    for n in range(5):
        d0 = V_QD + n*4; d1 = V_QD + (5+n)*4
        for r in range(4): L += [f"v_mul_f32 v{d0+r}, s29, v{d0+r}", f"v_mul_f32 v{d1+r}, s29, v{d1+r}"]
        t = 164 + n*4
        L += [f"v_cvt_pk_bf16_f32 v{t}, v{d0}, v{d0+1}", f"v_cvt_pk_bf16_f32 v{t+1}, v{d0+2}, v{d0+3}",
              f"v_cvt_pk_bf16_f32 v{t+2}, v{d1}, v{d1+1}", f"v_cvt_pk_bf16_f32 v{t+3}, v{d1+2}, v{d1+3}",
              f"ds_write_b128 v4, v[{t}:{t+3}] offset:{n*4096}"]
    L += v_dma(1)
    L += ["s_waitcnt lgkmcnt(0)", "s_barrier"]
    L += stamp(3, st)
    L += [f"v_add_u32 v4, {QBUF}, v{V_L16}"]
    for n in range(5):
        for j in range(4): L.append(f"ds_read_b128 {Qf(n, j)}, v4 offset:{(n*4+j)*1024}")
    return L

def selector(base):
    return ["v_lshrrev_b32 v4, 2, v2", "v_cmp_eq_u32 vcc, v4, v3", "v_and_b32 v5, 1, v0", "v_lshlrev_b32 v5, 4, v5", "v_mov_b32 v6, 0x3f80", "v_lshlrev_b32 v6, v5, v6",
            "v_cndmask_b32 v6, 0, v6, vcc", "v_and_b32 v5, 2, v0", "v_cmp_eq_u32 vcc, 0, v5",
            f"v_cndmask_b32 v{base}, 0, v6, vcc", f"v_cndmask_b32 v{base+1}, v6, 0, vcc",
            f"v_mov_b32 v{base+2}, 0", f"v_mov_b32 v{base+3}, 0", f"v_mov_b32 v{base+4}, 0", f"v_mov_b32 v{base+5}, 0",
            f"v_mov_b32 v{base+6}, v{base}", f"v_mov_b32 v{base+7}, v{base+1}"]

CBUF = 0
CL = 81920
OLOC = [65536, 86016, 106496, 126976]
def pre_attn():
    L = ["s_waitcnt vmcnt(32)"] + nonce_code()
    L += [f"v_add_u32 v{V_CW}, s{S_M0K}, v{V_L16}", "v_lshlrev_b32 v4, 2, v0", f"s_add_u32 s28, s{S_M0K}, {65536+4096}", f"v_add_u32 v{V_CLW}, s28, v4"]
    return L

def stage1(opt):
    st = opt.get("stamps")
    L = [f"v_add_u32 v44, 0x10000, v{V_CW}"]
    L += combine_writes(4)
    if not opt.get("early", True):
        for n in range(4): L += combine_writes(n)
    L += wo_dma(0)
    L += selector(48)
    L += [f"s_lshl_b32 s28, s{S_W}, 10", f"v_add_u32 v5, s28, v{V_L16}", f"v_add_u32 v45, 0x10000, v5", "v_lshlrev_b32 v6, 2, v0", f"v_add_u32 v6, {65536+4096}, v6"]
    L += ["s_waitcnt lgkmcnt(0)", "s_barrier"]
    L += stamp(6, st)
    PB = V_O
    DB = 164
    rd = []
    for n in range(5):
        for s_ in range(4):
            q0 = n*4
            addr = CREG[n >> 1] + s_*8192 + (n & 1)*4096
            rd.append(P(f"ds_read_b128 v[{PB+(n*4+s_)*4}:{PB+(n*4+s_)*4+3}], v{5 if addr < 65536 else 45} offset:{addr & 0xffff}"))
    lr = [P(f"ds_read_b32 v{56+4*n+s_}, v6 offset:{s_*8192+n*256}") for n in range(5) for s_ in range(4)]
    mf = []
    for n in range(5):
        for s_ in range(4):
            q = f"v[{PB+(n*4+s_)*4}:{PB+(n*4+s_)*4+3}]"
            mf += [P(f"v_mfma_f32_16x16x32_bf16 v[{DB+n*8}:{DB+n*8+3}], v[48:51], {q}, {'0' if s_ == 0 else f'v[{DB+n*8}:{DB+n*8+3}]'}"),
                   P(f"v_mfma_f32_16x16x32_bf16 v[{DB+n*8+4}:{DB+n*8+7}], v[52:55], {q}, {'0' if s_ == 0 else f'v[{DB+n*8+4}:{DB+n*8+7}]'}")]
    va = []
    for n in range(5):
        l = 56 + 4*n
        va += PL([f"v_add_f32 v{l}, v{l}, v{l+1}", f"v_add_f32 v{l+2}, v{l+2}, v{l+3}", f"v_add_f32 v{l}, v{l}, v{l+2}"])
    L += rd[:8]
    ch_rd = [F(rd[i], max(0, 2*(i-8)), 2*i - 6) for i in range(8, 20)]
    ch_lr = [F(x, 4 + i//2, 16) for i, x in enumerate(lr)]
    ch_va = [F(x, 18 + i, 38) for i, x in enumerate(va)]
    w1 = wo_dma(1)
    ch_w = []; kk = 0
    for ins in w1:
        ch_w.append(F(ins, 2 + kk*4, 39))
        if ins.kind == "dma": kk += 1
    L += place(mf, [ch_rd, ch_lr, ch_va, ch_w], 8)
    L += ["s_mov_b32 s29, 0x21800000", "s_mov_b32 s30, 0x5d800000", "s_mov_b64 s[90:91], 0"]
    for n in range(5):
        L += [f"v_cmp_nge_f32 vcc, v{56+4*n}, s29", "s_or_b64 s[90:91], s[90:91], vcc", f"v_cmp_nle_f32 vcc, v{56+4*n}, s30", "s_or_b64 s[90:91], s[90:91], vcc"]
    L += ["s_cmp_lg_u64 s[90:91], 0", "s_cselect_b32 s31, 1, 0", f"s_cmp_eq_u32 s{S_MODE}, 0", "s_cselect_b32 s31, s31, 0", "s_cmp_lg_u32 s31, 0", "s_cbranch_scc1 L_fallback"]
    for n in range(5): L.append(f"v_rcp_f32 v{56+4*n}, v{56+4*n}")
    DB = 164
    L += [f"s_lshl_b32 s28, s{S_W}, 10", f"v_add_u32 v44, s28, v{V_L16}", f"v_add_u32 v44, {OLOC[0]}, v44", f"s_lshl_b32 s29, s{S_GRP}, 2", f"s_add_u32 s29, s29, s{S_C}", "s_mul_i32 s29, s29, 20480",
          "s_add_u32 s93, s29, s28", f"s_add_u32 s93, s93, {WS_OF}"]
    L += ["s_barrier"]
    L += stamp(7, st)
    st_ = []; dw = []
    for n in range(5):
        l = 56 + 4*n; d = DB + n*8
        for r in range(8): L.append(f"v_mul_f32 v{d+r}, v{d+r}, v{l}")
        L += [f"v_cvt_pk_bf16_f32 v{d}, v{d}, v{d+1}", f"v_cvt_pk_bf16_f32 v{d+1}, v{d+2}, v{d+3}",
              f"v_cvt_pk_bf16_f32 v{d+2}, v{d+4}, v{d+5}", f"v_cvt_pk_bf16_f32 v{d+3}, v{d+6}, v{d+7}",
              f"s_add_u32 s30, s93, {n*4096}", f"buffer_store_dwordx4 v[{d}:{d+3}], v{V_L16}, s[{S_WS}:{S_WS+3}], s30 offen sc1"]
        dw.append(f"ds_write_b128 v44, v[{d}:{d+3}] offset:{n*4096}")
    L += dw
    L += wo_dma(2) + wo_dma(3)
    return L

def s2_chunk(hr, nbase):
    reads = []; mfs = []
    for j in range(4):
        for n in range(5):
            addr = OLOC[hr] + (n*4+j)*1024
            breg = 28 + ((nbase + j*5 + n) % 12)*4
            reads.append(P(f"ds_read_b128 v[{breg}:{breg+3}], v{248 + (addr >> 16)} offset:{addr & 0xffff}"))
            for ep in range(2):
                d = R('v', V_O + (ep*5+n)*4, 4)
                c = "0" if (hr == 0 and j == 0) else d
                a = A_WO[hr] + (j*2+ep)*4
                mfs.append(P(f"v_mfma_f32_16x16x32_bf16 {d}, a[{a}:{a+3}], v[{breg}:{breg+3}], {c}"))
    return reads, mfs
def s2_dma(hr):
    L = PL([f"s_add_u32 s29, s{S_C}, {hr}", "s_and_b32 s29, s29, 3", "s_mul_i32 s29, s29, 20480", "s_add_u32 s29, s29, s93", f"s_add_u32 m0, s31, {OLOC[hr]}"])
    for i in range(4): L.append(dma(f"v{V_L16}", f"s[{S_WS}:{S_WS+3}]", "s29", i*1024, ("P", hr), "sc1"))
    L += PL(["s_add_u32 s29, s29, 4096", f"s_add_u32 m0, s31, {OLOC[hr]+4096}"])
    L.append(dma(f"v{V_L16}", f"s[{S_WS}:{S_WS+3}]", "s29", 0, ("P", hr), "sc1"))
    return L

def stage2(opt):
    st = opt.get("stamps")
    L = flagline(F2)
    L += [f"s_lshl_b32 s28, s{S_C}, 2", f"s_add_u32 s28, s28, s{S_W}", "s_lshl_b32 s28, s28, 3", "s_add_u32 s31, s30, s28"]
    L += [f"v_add_u32 v76, 0x10000, v{V_WAX}", f"v_add_u32 v77, 0x10000, v{V_WAX+1}", f"v_add_u32 v78, 0x20000, v{V_WAX}", f"v_add_u32 v79, 0x20000, v{V_WAX+1}"]
    L += ["s_waitcnt vmcnt(16)"] + wave_flag(31, 0)
    L += ["s_waitcnt lgkmcnt(0)", "s_barrier"]
    L += [f"v_mov_b32 v248, v{V_L16}", f"v_add_u32 v249, 0x10000, v{V_L16}", f"v_add_u32 v250, 0x20000, v{V_L16}"]
    L = PL(L)
    regs_ = {0: V_WAX, 0x10000: 76, 0x20000: 78}
    L += wo_frag_reads(0, regs_) + wo_frag_reads(1, regs_)
    r0, m0 = s2_chunk(0, 0)
    AH = 6
    L += r0[:AH] + place(m0, [[F(r0[i], 2*(i-AH), 2*i - 4) for i in range(AH, 20)]], 8)
    L += PL(stamp(8, st))
    L += PL(poll(30, 15))
    L += PL(nst("poll2"))
    L += PL(["s_waitcnt lgkmcnt(0)", "s_barrier"])
    L += PL([f"s_mul_i32 s31, s{S_W}, 5120", f"s_mul_i32 s93, s{S_GRP}, 81920", "s_add_u32 s93, s93, s31", f"s_add_u32 s93, s93, {WS_OF}"])
    L += s2_dma(1) + s2_dma(2)
    w23 = wo_frag_reads(2, regs_) + wo_frag_reads(3, regs_)
    L += w23[:16]
    mf = []; idx = {}; rdch = []; dm = []; fixed = {}
    nb = 20
    for hr in (1, 2, 3):
        idx[hr] = len(mf)
        r, m = s2_chunk(hr, nb); nb += 20
        fixed[idx[hr]] = [P("s_barrier", need_vm=[("P", hr)])] + r[:AH]
        for i in range(AH, 20): rdch.append(F(r[i], idx[hr] + 2*(i-AH), idx[hr] + 2*i - 4))
        mf += m
    kk = 0
    for ins in s2_dma(3):
        lo = idx[1] + 2 + kk*6
        dm.append(F(ins, lo, lo + 6))
        if ins.kind == "dma": kk += 1
    wch = [F(x, idx[1] + 4 + 2*i, idx[2] + 20) for i, x in enumerate(w23[16:])]
    L += place(mf, [rdch, dm, wch], 8, fixed)
    L += PL(nst("gemm2"))
    T = [f"s_lshl_b32 s28, s{S_B}, 2", f"s_add_u32 s28, s28, s{S_C}", "s_mul_i32 s28, s28, 20", f"s_mul_i32 s29, s{S_W}, 5", "s_add_u32 s28, s28, s29",
         "s_lshl_b32 s28, s28, 3", f"s_add_u32 s28, s28, s{S_G}", "s_lshl_b32 s28, s28, 10", f"s_add_u32 s28, s28, {WS_OUTP}"]
    for n in range(5):
        a = V_O + n*4; b = V_O + (5+n)*4
        t = 28 + n*4
        T += [f"v_cvt_pk_bf16_f32 v{t}, v{a}, v{a+1}", f"v_cvt_pk_bf16_f32 v{t+1}, v{a+2}, v{a+3}",
              f"v_cvt_pk_bf16_f32 v{t+2}, v{b}, v{b+1}", f"v_cvt_pk_bf16_f32 v{t+3}, v{b+2}, v{b+3}",
              f"s_add_u32 s29, s28, {n*8192}", f"buffer_store_dwordx4 v[{t}:{t+3}], v{V_L16}, s[{S_WS}:{S_WS+3}], s29 offen sc1"]
    return L + PL(T)

def stage3(opt):
    L = [f"s_lshl_b32 s28, s{S_B}, 2", f"s_add_u32 s28, s28, s{S_C}", "s_mov_b32 s67, s28", "s_lshl_b32 s28, s28, 2", f"s_add_u32 s29, s28, s{S_W}", "s_lshl_b32 s29, s29, 6",
         f"s_add_u32 s29, s29, {WS_FLAG+F3}", f"s_lshl_b32 s30, s{S_G}, 3", "s_add_u32 s31, s29, s30"]
    L += selector(48)
    L += ["s_waitcnt vmcnt(0)"] + wave_flag(31, 0) + nst("flag3")
    L += [f"s_lshl_b32 s28, s{S_G}, 2", f"s_add_u32 s28, s28, s{S_W}", "s_cmp_lt_u32 s28, 20", "s_cbranch_scc0 L_done", "s_mov_b32 s65, s28",
          "s_mul_i32 s28, s65, 52", "s_lshr_b32 s92, s28, 8",
          "s_lshl_b32 s28, s67, 2", "s_add_u32 s28, s28, s92", "s_lshl_b32 s28, s28, 6", f"s_add_u32 s31, s28, {WS_FLAG+F3}"]
    L += poll(31, 7) + nst("poll3")
    L += ["s_mul_i32 s29, s67, 20", "s_add_u32 s29, s29, s65", "s_lshl_b32 s29, s29, 13", f"s_add_u32 s29, s29, {WS_OUTP}", "s_add_u32 s30, s29, 4096"]
    for gp in range(8):
        L.append(f"buffer_load_dwordx4 v[{84+4*gp}:{87+4*gp}], v{V_L16}, s[{S_WS}:{S_WS+3}], s{29 if gp < 4 else 30} offen offset:{(gp&3)*1024} sc1")
    for gp in range(8):
        L += [f"v_mfma_f32_16x16x32_bf16 v[60:63], v[48:51], v[{84+4*gp}:{87+4*gp}], {'0' if gp == 0 else 'v[60:63]'}",
              f"v_mfma_f32_16x16x32_bf16 v[64:67], v[52:55], v[{84+4*gp}:{87+4*gp}], {'0' if gp == 0 else 'v[64:67]'}"]
    L += ["s_mul_i32 s29, s92, 5", "s_sub_u32 s29, s65, s29",
          "s_lshl_b32 s29, s29, 14", "s_lshl_b32 s28, s92, 6", "s_add_u32 s28, s28, s29", f"s_lshl_b32 s29, s{S_C}, 8", "s_add_u32 s28, s28, s29",
          f"s_mul_i32 s29, s{S_B}, 81920", "s_add_u32 s28, s28, s29", "v_lshlrev_b32 v4, 10, v2", "v_lshl_add_u32 v4, v3, 3, v4"]
    L += ["v_cvt_pk_bf16_f32 v68, v60, v61", "v_cvt_pk_bf16_f32 v69, v62, v63", "v_cvt_pk_bf16_f32 v70, v64, v65", "v_cvt_pk_bf16_f32 v71, v66, v67",
          f"buffer_store_dwordx2 v[68:69], v4, s[{S_OUT}:{S_OUT+3}], s28 offen", f"buffer_store_dwordx2 v[70:71], v4, s[{S_OUT}:{S_OUT+3}], s28 offen offset:32"]
    L += ["L_done:"]
    return L

def maxpass():
    L = ["s_waitcnt vmcnt(0) lgkmcnt(0)", "s_barrier"]
    MXR = [76, 77, 78, 79, 80]
    for n in range(5): L.append(f"v_mov_b32 v{MXR[n]}, 0xff800000")
    L += ["s_mov_b32 s90, 0", "L_maxloop:", f"s_lshl_b32 s{S_KOFF}, s90, 13", f"s_add_u32 s{S_KOFF2}, s{S_KOFF}, 4096"]
    for half in range(2):
        L.append(f"s_add_u32 m0, s{S_M0K}, {half*4096}")
        for i in range(4): L.append(dma(f"v{V_KD+i}", f"s[{S_KSRD}:{S_KSRD+3}]", f"s{S_KOFF if half == 0 else S_KOFF2}", i*1024, ("X", 0)))
    L += ["s_waitcnt vmcnt(0)"]
    L += k_reads(0)
    L += ["s_waitcnt lgkmcnt(0)"]
    for n in range(5):
        for s in range(2):
            for j in range(4):
                d = R("v", V_S + s*4, 4)
                L.append(mfma16(d, Kf(s, j), Qf(n, j), "0" if j == 0 else d))
        m = MXR[n]
        L += [f"v_max3_f32 v{m}, v{V_S}, v{V_S+1}, v{m}", f"v_max3_f32 v{m}, v{V_S+2}, v{V_S+3}, v{m}",
              f"v_max3_f32 v{m}, v{V_S+4}, v{V_S+5}, v{m}", f"v_max3_f32 v{m}, v{V_S+6}, v{V_S+7}, v{m}"]
    L += ["s_add_u32 s90, s90, 1", "s_cmp_lt_u32 s90, 16", "s_cbranch_scc1 L_maxloop"]
    for n in range(5):
        m = MXR[n]
        L += [f"v_mov_b32 v4, v{m}", f"v_permlane16_swap_b32 v4, v{m}", f"v_max_f32 v{m}, v4, v{m}",
              f"v_mov_b32 v4, v{m}", f"v_permlane32_swap_b32 v4, v{m}", f"v_max_f32 v{m}, v4, v{m}"]
    MB = 155648
    L += ["v_lshlrev_b32 v4, 2, v0", f"s_mul_i32 s29, s{S_W}, 1280", "v_add_u32 v5, s29, v4", f"v_add_u32 v5, {MB}, v5", f"v_add_u32 v4, {MB}, v4"]
    for n in range(5): L.append(f"ds_write_b32 v5, v{MXR[n]} offset:{n*256}")
    L += ["s_waitcnt lgkmcnt(0)", "s_barrier"]
    for n in range(5):
        for w in range(4): L.append(f"ds_read_b32 v{V_S+w}, v4 offset:{w*1280+n*256}")
        L += ["s_waitcnt lgkmcnt(0)", f"v_max3_f32 v5, v{V_S}, v{V_S+1}, v{V_S+2}", f"v_max_f32 v5, v5, v{V_S+3}"]
        for r in range(4): L.append(f"v_sub_f32 v{V_NEGM+n*4+r}, 0, v5")
    L += k_dma(0) + v_dma(0) + k_dma(1) + v_dma(1)
    return L

def kernel(opt):
    st = opt.get("stamps")
    L = setup0(opt)
    if opt.get("stp"):
        L += [f"s_mov_b32 s{70+i}, 0" for i in range(20)]
    L += stampw(0, st)
    L += nonce_publish()
    L += ["L_restart:"]
    L += setup1()
    L += qp_dma(0)
    L += qp_lanebases()
    L += qp_dma(1)
    L += ring_addrs()
    for i in range(4): L += ["v_mov_b32 v1, 0x3f803f80", f"v_accvgpr_write_b32 a{A_ONE+i}, v1"]
    for i in range(20): L.append(f"v_mov_b32 v{V_NEGM+i}, 0")
    L += stamp(1, st)
    L += qproj(opt)
    L += stamp(2, st)
    L += q_exchange(opt)
    S1, n1 = finalize(L)
    M = [f"s_cmp_eq_u32 s{S_MODE}, 0", "s_cbranch_scc1 L_attn"] + maxpass() + ["L_attn:"] + pre_attn()
    S1b, n1b = finalize(M)
    vmq = [("K", 0)]*8 + [("V", 0)]*8 + [("K", 1)]*8 + [("V", 1)]*8
    kr0 = k_reads(0); kr0[0].need_vm = [("K", 0)]
    body = PL(stampw(4, st)) + kr0 + build(opt)
    S2, _, _ = insert_waits(body, vm_outstanding=vmq)
    S2, n2 = check_hazards(S2)
    T = ["s_nop 7"] + stampw(5, st)
    T = PL(T) + PL(stage1(opt)) + stage2(opt) + PL(stage3(opt))
    E = []
    if st:
        E += ["s_memtime s[88:89]", "s_memrealtime s[90:91]", "s_waitcnt lgkmcnt(0)",
              "s_lshl_b32 s28, s2, 2", f"s_add_u32 s28, s28, s{S_W}", "s_lshl_b32 s28, s28, 6", f"s_add_u32 s28, s28, {WS_STAMP}", "v_mov_b32 v2, s28"]
        if MS[0]: E += ["s_mov_b32 s88, s86"]
        if STP[0]: E += ["s_mov_b32 s86, s88"]
        for k in range(9):
            E += [f"s_sub_u32 s29, s{72+2*k}, s{70+2*k}", "v_mov_b32 v3, s29", f"buffer_store_dword v3, v2, s[{S_WS}:{S_WS+3}], 0 offen offset:{4*k}", "s_nop 1"]
        for k, s in ((12, "s68"), (13, "s90")):
            E += [f"v_mov_b32 v3, {s}", f"buffer_store_dword v3, v2, s[{S_WS}:{S_WS+3}], 0 offen offset:{4*k}", "s_nop 1"]
    E += ["s_waitcnt vmcnt(0)", "s_endpgm", "L_fallback:", f"s_mov_b32 s{S_MODE}, 1", "s_waitcnt vmcnt(0) lgkmcnt(0)", "s_barrier", "s_branch L_restart", "L_end:", "s_endpgm"]
    S3, n3 = finalize(T + PL(E))
    print(f"; nops inserted {n1} {n1b} {n2} {n3}", file=sys.stderr)
    return emit(S1) + "\n" + emit(S1b) + "\n" + emit(S2) + "\n" + emit(S3) + "\n"

def gen(opt):
    mb.OPT["flags"] = opt.get("flags", ""); mb.OPT["rot"] = opt.get("rot", True)
    MS[0] = (4, 5) if opt.get("mainstamps") else None
    STP[0] = opt.get("stp")
    hdr = open("standalone__gqa_block_cached__near_ridge.s.ref").read().split("; Override")[0]
    s = hdr + "; @launch grid=(256,1,1) block=(256,1,1) lds=163840\n"
    s += f'.amdgcn_target "amdgcn-amd-amdhsa--gfx950"\n.text\n.globl {KN}\n.p2align 8\n.type {KN},@function\n{KN}:\n'
    s += kernel(opt)
    s += footer(vgpr=512, accum=256, name=KN)
    return s

if __name__ == "__main__":
    open("a4.s", "w").write(gen({}))
    open("a4_st.s", "w").write(gen({"stamps": True}))
    open("a4t_st.s", "w").write(gen({"stamps": True, "stp": ["main1", "cw", "cr", "own", "poll2", "gemm2", "flag3", "poll3", "x"]}))
```

```python
from sched import *

V_KA = 8
V_VA = 12
V_KD = 20
V_VD = 24
V_WAX = 26
V_L16 = 252
V_WD = 244
V_NEGM = 28
V_S = 48
V_P = 72
V_O = 84
A_Q = 0; A_K = 80; A_V = 112; A_L = 144; A_ONE = 164
S_KSRD = 12; S_VSRD = 16; S_WOSRD = 52
S_M0K = 24
S_KOFF = 25; S_VOFF = 26
S_KOFF2 = 98; S_VOFF2 = 99
S_WOB = [94, 95, 96, 97]
S_WOFF = 100
S_PLM0 = 101; S_PLOFF = 66
NT = 16
OPT = {"flags": ""}
KSLOT = [0, 32768]; VSLOT = [65536, 98304]
WO_REG = [131072, 98304, 0, 32768]
A_WO = [0, 32, 64, 96]

def Sreg(G, s, r=None):
    b = V_S + (G % 3)*8 + s*4
    return R("v", b, 4) if r is None else f"v{b+r}"
def Preg(G, i=None):
    b = V_P + (G % 3)*4
    return R("v", b, 4) if i is None else f"v{b+i}"
def Kf(s, j): return R("a", A_K + (s*4+j)*4, 4)
def Vf(dt, h=None):
    b = A_V + dt*4
    return R("a", b, 4) if h is None else R("a", b+2*h, 2)
def Qf(n, j): return R("a", A_Q + (n*4+j)*4, 4)
def Of(dt, n): return R("v", V_O + (dt*5+n)*4, 4)
def Lf(n): return R("a", A_L + n*4, 4)

def qk_mfmas(G):
    n = G % 5
    L = []
    for s in range(2):
        for j in range(4):
            c = R("v", V_NEGM + n*4, 4) if j == 0 else Sreg(G, s)
            L.append(mfma16(Sreg(G, s), Kf(s, j), Qf(n, j), c, tag=("qk", G, s, j)))
    return L
def pv_mfmas(G):
    n = G % 5
    first = G < 5
    L = [mfma16(Of(dt, n), Vf(dt), Preg(G), "0" if first else Of(dt, n), tag=("pv", G, dt)) for dt in range(8)]
    L.append(mfma16(Lf(n), R("a", A_ONE, 4), Preg(G), "0" if first else Lf(n), tag=("l", G)))
    return L
def softmax_fillers(G):
    e = [vexp(Sreg(G, s, r), Sreg(G, s, r)) for s in range(2) for r in range(4)]
    c = [vcvtpk(Preg(G, i), Sreg(G, i//2, (i%2)*2), Sreg(G, i//2, (i%2)*2+1)) for i in range(4)]
    return [e[0], e[1], e[2], c[0], e[3], e[4], c[1], e[5], e[6], c[2], e[7], c[3]]
def k_reads(t):
    sl = (t % 2)*32768
    return [ds_read128(Kf(s, j), f"v{V_KA+j}", sl + s*4096) for s in range(2) for j in range(4)]
def v_reads(t):
    sl = (t % 2)*32768
    return [ds_read_tr(Vf(dt, h), f"v{V_VA+dt}", sl + h*4096) for dt in range(8) for h in range(2)]
S_TAB = 92
def toff(reg, reg2, t):
    if not OPT.get("rot"):
        return [salu(f"s_mov_b32 s{reg}, {t*8192}"), salu(f"s_mov_b32 s{reg2}, {t*8192+4096}")]
    src = S_TAB + (t >> 3)
    return [salu(f"s_bfe_u32 s{reg}, s{src}, {hex((4*(t % 8)) | (4 << 16))}"), salu(f"s_lshl_b32 s{reg}, s{reg}, 13"), salu(f"s_add_u32 s{reg2}, s{reg}, 4096")]
def k_dma(t):
    sl = KSLOT[t % 2]
    L = toff(S_KOFF, S_KOFF2, t)
    for half in range(2):
        L.append(salu(f"s_add_u32 m0, s{S_M0K}, {sl + half*4096}"))
        for i in range(4):
            L.append(dma(f"v{V_KD+i}", f"s[{S_KSRD}:{S_KSRD+3}]", f"s{S_KOFF if half == 0 else S_KOFF2}", i*1024, ("K", t), OPT["flags"]))
    return L
def v_dma(t):
    sl = VSLOT[t % 2]
    share = OPT.get("share_off")
    L = [] if share else toff(S_VOFF, S_VOFF2, t)
    r0, r1 = (S_KOFF, S_KOFF2) if share else (S_VOFF, S_VOFF2)
    for half in range(2):
        L.append(salu(f"s_add_u32 m0, s{S_M0K}, {sl + half*4096}"))
        for i in range(4):
            L.append(dma(f"v{V_VD+(i&1)}", f"s[{S_VSRD}:{S_VSRD+3}]", f"s{r0 if half == 0 else r1}", i*1024, ("V", t), OPT["flags"]))
    return L
def wo_dma(hr):
    L = []
    for half in range(2):
        L += [salu(f"s_add_u32 s{S_WOFF}, s{S_WOB[hr]}, {half*16384}"), salu(f"s_add_u32 m0, s{S_M0K}, {WO_REG[hr] + half*4096}")]
        for i in range(4): L.append(dma(f"v{V_WD+i}", f"s[{S_WOSRD}:{S_WOSRD+3}]", f"s{S_WOFF}", i*1024, ("W", hr)))
    return L
def wo_frag_reads(hr, regs_):
    L = []
    for j in range(4):
        for ep in range(2):
            for hh in range(2):
                addr = WO_REG[hr] + (32*j + 16*hh)*256
                base = addr & ~0xffff
                r = A_WO[hr] + (j*2+ep)*4 + 2*hh
                L.append(P(f"ds_read_b64_tr_b16 a[{r}:{r+1}], v{regs_[base]+ep} offset:{addr - base}"))
    return L

V_CW = 253; V_CLW = 254; V_LT = 255
CREG = [0, 32768, 65536]
def combine_writes(n):
    L = []
    for j in range(4):
        a = V_O + ((2*j)*5+n)*4; b = V_O + ((2*j+1)*5+n)*4
        q = n*4 + j
        reg, off = (V_CW, CREG[q >> 3] + (q & 7)*1024) if q < 16 else (44, (q & 7)*1024)
        L += [P(f"v_cvt_pk_bf16_f32 v{a}, v{a}, v{a+1}"), P(f"v_cvt_pk_bf16_f32 v{a+1}, v{a+2}, v{a+3}"),
              P(f"v_cvt_pk_bf16_f32 v{a+2}, v{b}, v{b+1}"), P(f"v_cvt_pk_bf16_f32 v{a+3}, v{b+2}, v{b+3}"),
              P(f"ds_write_b128 v{reg}, v[{a}:{a+3}] offset:{off}")]
    L += [P(f"v_accvgpr_read_b32 v{V_LT}, a{A_L+4*n}"), P(f"ds_write_b32 v{V_CLW}, v{V_LT} offset:{n*256}")]
    return L

class F:
    def __init__(s, ins, lo, hi): s.ins = ins; s.lo = lo; s.hi = hi

def place(mf, chains, cap=8, fixed=None):
    stream = []
    ptr = [0]*len(chains)
    for m, ins in enumerate(mf):
        if fixed and m in fixed: stream += fixed[m]
        stream.append(ins)
        used = 0
        while True:
            cand = []
            for c, ch in enumerate(chains):
                if ptr[c] < len(ch) and ch[ptr[c]].lo <= m:
                    cand.append((ch[ptr[c]].hi, c))
            if not cand: break
            cand.sort()
            placed = False
            for hi, c in cand:
                f = chains[c][ptr[c]]
                if used + f.ins.cost <= cap or hi <= m:
                    stream.append(f.ins); used += f.ins.cost; ptr[c] += 1; placed = True
                    break
            if not placed: break
    for c, ch in enumerate(chains):
        assert ptr[c] == len(ch), (c, ptr[c], len(ch))
    return stream

def spaced(instrs, start, sp, win):
    out = []; k = 0
    for ins in instrs:
        lo = start + k*sp
        out.append(F(ins, lo, lo + win))
        if ins.kind == "dma": k += 1
    return out

def build(opt):
    nt = NT; nG = 5*nt
    mf = []; qk_idx = {}; pv_idx = {}
    for X in range(nG + 2):
        if X < nG:
            qk_idx[X] = len(mf); mf += qk_mfmas(X)
        if 0 <= X-2 < nG:
            pv_idx[X-2] = len(mf); mf += pv_mfmas(X-2)
    allf = []
    for G in range(nG):
        fl = softmax_fillers(G)
        lo0 = qk_idx[G] + 3 + 5; lo1 = qk_idx[G] + 7 + 5
        hi = pv_idx[G] - 2
        for k, ins in enumerate(fl):
            allf.append(F(ins, min(lo1 if k >= 5 else lo0, hi), hi))
    kr = []; vr_ = []; dm = []
    sp = opt.get("space", 4); win = opt.get("dwin", 4)
    for idx, ins in enumerate(v_reads(0)):
        if idx == 0: ins.need_vm = [("V", 0)]
        vr_.append(F(ins, 2 + idx//2, pv_idx[0] - 4))
    for t in range(1, nt):
        G = 5*t - 1
        for idx, ins in enumerate(k_reads(t)):
            if idx == 0: ins.need_vm = [("K", t)]
            kr.append(F(ins, qk_idx[G] + idx, qk_idx[G+1] + idx - 4))
        for idx, ins in enumerate(v_reads(t)):
            dt = idx // 2
            if idx == 0: ins.need_vm = [("V", t)]
            vr_.append(F(ins, pv_idx[G] + dt, pv_idx[G+1] + dt - 4))
    for t in range(nt):
        lok = qk_idx[5*t] + 8
        lov = pv_idx[5*t] + 9
        if t + 2 < nt:
            dm += spaced(k_dma(t+2), lok, sp, win)
            dm += spaced(v_dma(t+2), lov, sp, win)
            if t == opt.get("prelead_t", 11) and opt.get("prelead", True):
                pl = [salu(f"s_add_u32 m0, s{S_PLM0}, 0")]
                for i in range(4): pl.append(dma(f"v{V_WD+i}", f"s[{S_WOSRD}:{S_WOSRD+3}]", f"s{S_PLOFF}", i*1024, ("PL", 0)))
                dm += spaced(pl, lov + 8*sp, 2, win)
        elif opt.get("wo_in_loop_end"):
            if t == 15: dm += spaced(wo_dma(0), lok, sp, win)
    dm.sort(key=lambda f: 0)
    tf = []
    if opt.get("early", True):
        last = len(mf) - 1
        for n in range(4):
            lo = pv_idx[75+n] + 12
            items = combine_writes(n)
            for k, ins in enumerate(items):
                l2 = min(lo + k//2, last)
                tf.append(F(ins, l2, min(l2 + 10, last)))
    return place(mf, [allf, kr, vr_, dm, tf], opt.get("cap", 8))
```

```python
import re

def regs(spec):
    m = re.fullmatch(r"([vas])\[(\d+):(\d+)\]", spec)
    if m: return [f"{m.group(1)}{i}" for i in range(int(m.group(2)), int(m.group(3))+1)]
    if re.fullmatch(r"[vas]\d+", spec): return [spec]
    if spec == "vcc": return ["vcc"]
    if spec == "m0": return ["m0"]
    if spec == "exec": return ["exec"]
    return []

def R(f, i, n=1):
    return f"{f}{i}" if n == 1 else f"{f}[{i}:{i+n-1}]"

TRANS = ("v_exp_f32", "v_log_f32", "v_rcp_f32", "v_rsq_f32", "v_sqrt_f32", "v_sin_f32", "v_cos_f32")

class I:
    def __init__(s, text, kind, rd=(), wr=(), cost=4, tag=None, srcc=(), need_vm=None, vm_tag=None):
        s.text = text; s.kind = kind
        s.rd = [r for x in rd for r in regs(x)]
        s.wr = [r for x in wr for r in regs(x)]
        s.srcc = [r for x in srcc for r in regs(x)]
        s.cost = cost; s.tag = tag
        s.need_vm = need_vm
        s.vm_tag = vm_tag
    def __repr__(s): return s.text

def split_ops(rest):
    ops = []; depth = 0; cur = ""
    for ch in rest:
        if ch == "[": depth += 1
        if ch == "]": depth -= 1
        if ch == "," and depth == 0:
            ops.append(cur.strip()); cur = ""
        else: cur += ch
    if cur.strip(): ops.append(cur.strip())
    return ops

def P(text, tag=None, need_vm=None, vm_tag=None):
    text = text.strip()
    if text.endswith(":"): return I(text, "label", cost=0)
    if text.startswith(";"): return I(text, "comment", cost=0)
    parts = text.split(None, 1)
    mn = parts[0]; rest = parts[1] if len(parts) > 1 else ""
    ops = split_ops(rest)
    first = lambda o: o.split()[0] if o else ""
    ops1 = [first(o) for o in ops]
    kw = dict(tag=tag, need_vm=need_vm, vm_tag=vm_tag)
    if mn.startswith("v_mfma"):
        d, a, b, c = ops1[:4]
        cost = 8
        return I(text, "mfma", rd=[a, b] + ([c] if regs(c) else []), wr=[d], cost=cost, srcc=([c] if regs(c) else []), **kw)
    if mn.startswith("v_cmp"):
        return I(text, "valu", rd=ops1[1:], wr=[ops1[0]], **kw)
    if mn.startswith("v_permlane"):
        return I(text, "valu", rd=ops1[:2], wr=ops1[:2], **kw)
    if mn.startswith("v_fmac") or mn.startswith("v_dot2c"):
        return I(text, "valu", rd=ops1, wr=[ops1[0]], **kw)
    if mn.startswith("v_cndmask") and len(ops1) == 4:
        return I(text, "valu", rd=ops1[1:], wr=[ops1[0]], **kw)
    if mn.startswith("v_"):
        kind = "trans" if mn in TRANS else "valu"
        return I(text, kind, rd=ops1[1:], wr=[ops1[0]], cost=8 if kind == "trans" else 4, **kw)
    if mn.startswith("ds_read"):
        return I(text, "ds", rd=[ops1[1]], wr=[ops1[0]], **kw)
    if mn.startswith("ds_write") or mn.startswith("ds_add"):
        return I(text, "dsw", rd=ops1, **kw)
    if mn.startswith("buffer_load") or mn.startswith("global_load"):
        if re.search(r"\blds\b", rest):
            return I(text, "dma", rd=[ops1[0]], **kw)
        return I(text, "vmem", rd=[ops1[1]], wr=[ops1[0]], **kw)
    if mn.startswith("buffer_atomic") or mn.startswith("global_atomic"):
        ret = " sc0" in text
        return I(text, "vmem", rd=ops1[:3], wr=([ops1[0]] if ret else []), tag=tag, need_vm=need_vm, vm_tag=vm_tag or "atomic")
    if mn.startswith("buffer_store") or mn.startswith("global_store"):
        return I(text, "vmem", rd=ops1[:2], tag=tag, need_vm=need_vm, vm_tag=vm_tag or "store")
    if mn.startswith("buffer_wbl2") or mn.startswith("buffer_inv"):
        return I(text, "vmem", tag=tag, vm_tag="cache")
    if mn == "s_waitcnt": return I(text, "wait", **kw)
    if mn == "s_nop": return I(text, "nop", cost=4*(int(ops1[0])+1), **kw)
    if mn == "s_barrier": return I(text, "barrier", **kw)
    if mn.startswith("s_cbranch") or mn == "s_branch" or mn == "s_endpgm": return I(text, "branch", **kw)
    if mn.startswith("s_cmp") or mn.startswith("s_bitcmp"): return I(text, "salu", rd=ops1, **kw)
    if mn.startswith("s_"):
        return I(text, "salu", rd=ops1[1:], wr=[ops1[0]] if ops1 else [], **kw)
    raise ValueError(text)

def PL(lines):
    return [P(l) if isinstance(l, str) else l for l in lines]

def mfma16(d, a, b, c, tag=None): return P(f"v_mfma_f32_16x16x32_bf16 {d}, {a}, {b}, {c}", tag=tag)
def vexp(d, s): return P(f"v_exp_f32 {d}, {s}")
def vcvtpk(d, a, b): return P(f"v_cvt_pk_bf16_f32 {d}, {a}, {b}")
def salu(text): return P(text)
def ds_read128(d, addr, off): return P(f"ds_read_b128 {d}, {addr} offset:{off}")
def ds_read_tr(d, addr, off): return P(f"ds_read_b64_tr_b16 {d}, {addr} offset:{off}")
def dma(voff, srd, soff, off, tag, flags=""):
    return P(f"buffer_load_dwordx4 {voff}, {srd}, {soff} offen offset:{off} {flags + ' ' if flags else ''}lds", vm_tag=tag)

MERGE = [0]
def insert_waits(stream, vm_outstanding=None, lds_outstanding=None):
    out = []
    lds_q = [(w, -10**9) for w in (lds_outstanding or [])]
    vm_q = list(vm_outstanding or [])
    now = 0
    for ins in stream:
        if ins.kind == "wait":
            m = re.search(r"vmcnt\((\d+)\)", ins.text)
            if m:
                n = int(m.group(1)); vm_q = vm_q[len(vm_q)-n:] if n > 0 and len(vm_q) > n else (vm_q if n > 0 else [])
            m = re.search(r"lgkmcnt\((\d+)\)", ins.text)
            if m:
                n = int(m.group(1)); lds_q = lds_q[len(lds_q)-n:] if n > 0 and len(lds_q) > n else (lds_q if n > 0 else [])
            out.append(ins); now += 4; continue
        need_l = None
        touched = set(ins.rd) | set(ins.wr)
        for idx, (w, t) in enumerate(lds_q):
            if w & touched: need_l = idx
        if need_l is not None and MERGE[0] > 0:
            for idx in range(need_l + 1, len(lds_q)):
                if now - lds_q[idx][1] >= MERGE[0]: need_l = idx
                else: break
        need_v = None
        if ins.need_vm:
            for idx, t in enumerate(vm_q):
                if t in ins.need_vm: need_v = idx
        for idx, t in enumerate(vm_q):
            if isinstance(t, tuple) and t[0] == "reg" and (t[1] & touched):
                need_v = idx if need_v is None else max(need_v, idx)
        parts = []
        if need_v is not None:
            n = len(vm_q) - 1 - need_v
            assert n <= 63, n
            parts.append(f"vmcnt({n})"); vm_q = vm_q[need_v+1:]
        if need_l is not None:
            n = len(lds_q) - 1 - need_l
            n = min(n, 15)
            parts.append(f"lgkmcnt({n})"); lds_q = lds_q[len(lds_q)-n:] if n > 0 else []
        if parts:
            out.append(I("s_waitcnt " + " ".join(parts), "wait", cost=4)); now += 4
        out.append(ins)
        now += 16 if ins.kind == "mfma" else max(ins.cost, 4) if ins.kind not in ("label", "comment") else 0
        if ins.kind == "ds": lds_q.append((set(ins.wr), now))
        elif ins.kind == "dsw": lds_q.append((set(), now))
        elif ins.kind == "dma": vm_q.append(ins.vm_tag)
        elif ins.kind == "vmem": vm_q.append(("reg", frozenset(ins.wr)) if ins.wr else ins.vm_tag)
        assert len(vm_q) <= 63, "too many vmem ops outstanding"
    return out, vm_q, [w for w, t in lds_q]

def nop_states(p):
    if p.kind == "nop": return int(p.text.split()[1]) + 1
    if p.kind in ("label", "comment"): return 0
    return 1

def isv(r): return r[0] in "va" and r != "vcc"
def iss(r): return (r[0] == "s") or r == "vcc"

def need_states(ins, hist):
    extra = 0
    rd = set(ins.rd); wr = set(ins.wr)
    dist = 0
    for p in reversed(hist):
        req = 0
        pw = set(p.wr)
        if p.kind == "mfma":
            if ins.kind == "mfma":
                cset = set(ins.srcc)
                absrc = set(ins.rd[:len(ins.rd)-len(ins.srcc)])
                if pw & absrc: req = max(req, 8)
                if pw & cset:
                    req = max(req, 0 if cset == pw else 6)
                if (pw & wr) and not (cset == pw): req = max(req, 8)
            elif ins.kind in ("valu", "trans", "ds", "dsw", "dma", "vmem"):
                if pw & (rd | wr): req = max(req, 8)
            if ins.kind in ("valu", "trans") and (set(p.srcc) & wr): req = max(req, 3)
        elif p.kind in ("valu", "trans"):
            pv = {r for r in pw if isv(r)}; ps = {r for r in pw if iss(r)}
            if ins.kind == "mfma" and (pv & rd): req = max(req, 2)
            if p.kind == "trans" and ins.kind == "valu" and (pv & rd): req = max(req, 1)
            if "permlane" in ins.text and (pv & (rd | wr)): req = max(req, 2)
            if ("dpp" in ins.text or "row_" in ins.text) and (pv & rd): req = max(req, 2)
            if ("readlane" in ins.text or "readfirstlane" in ins.text) and (pv & rd): req = max(req, 1)
            if ps:
                if ins.kind in ("valu", "trans") and (ps & rd): req = max(req, 2)
                if ins.kind in ("vmem", "dma"):
                    allr = set(r for o in split_ops(ins.text.split(None, 1)[1]) for r in regs(o.split()[0]))
                    if ps & allr: req = max(req, 5)
                if ins.kind in ("salu", "branch") and ((ps & rd) or ("vcc" in ps and "vcc" in ins.text)): req = max(req, 4)
            if "exec" in pw and ins.kind == "mfma": req = max(req, 4)
        elif p.kind == "salu":
            if "m0" in pw and ins.kind == "dma": req = max(req, 1)
            if "exec" in pw and ins.kind in ("valu", "trans", "mfma"): req = max(req, 1)
        elif p.kind == "vmem" and ("store_dwordx4" in p.text or "store_dwordx3" in p.text):
            if set(p.rd) & wr: req = max(req, 2)
        if req > dist: extra = max(extra, req - dist)
        dist += nop_states(p)
        if dist > 20: break
    return extra

def check_hazards(stream, fix=True):
    out = []; nfix = 0; hist = []
    for ins in stream:
        e = need_states(ins, hist)
        if e > 0:
            nfix += 1
            n = I(f"s_nop {e-1}", "nop", cost=4*e)
            out.append(n); hist.append(n)
        out.append(ins); hist.append(ins)
        if len(hist) > 48: hist = hist[-48:]
    return out, nfix

def finalize(stream, vm=None):
    stream = PL(stream)
    stream, vmq, ldsq = insert_waits(stream, vm)
    stream, nfix = check_hazards(stream)
    return stream, nfix

def emit(stream):
    return "\n".join(("    " + i.text) if i.kind != "label" else i.text for i in stream)
```

```python
import sys, struct, math
from asmlib import *
from sched import *
import maina2 as mb
from maina2 import *

KN = "standalone__gqa_block_cached__near_ridge_kernel"
CSCALE = struct.unpack("<I", struct.pack("<f", math.log2(math.e)/math.sqrt(128.0)))[0]

WS_QX   = 0x0000000
WS_PART = 0x0600000
WS_LP   = 0x1B00000
WS_OF   = 0x1C00000
WS_OUTP = 0x2200000
WS_FLAG = 0x2800000
WS_MX   = 0x2900000
WS_STAMP= 0x1400000 + 0x1800000
WS_SIZE = 0x4000000
FQ, FQB, F1, F1B, F2, FM, F3 = 0, 0x4000, 0x8000, 0xC000, 0x10000, 0x14000, 0x18000
S_W, S_B, S_C, S_G = 20, 21, 22, 23
S_MODE = 27
S_X, S_WQ, S_WS, S_OUT, S_DBG = 32, 36, 40, 56, 60
S_NONCE = 64
S_GRP = 65
S_ROT = 67
QP_W = [32768, 98304, 131072]
QP_X = [49152, 114688, 147456]
QBUF = 131072
V_XD = 236; V_WQD = 239; V_WB = 243; V_XB = (248, 249)
V_QD = 84
QA = [164, 200]; QB = [172, 208]
V_QWA = (250, 251); V_QXA = ((48, 49), (50, 51))
V_NONCE = 253

STP = [None]
def nst(name):
    if STP[0] and name in STP[0]:
        i = STP[0].index(name); return [f"s_memtime s[{70+2*i}:{71+2*i}]"]
    return []
MS = [None]
def stamp(i, on):
    if STP[0] is not None: return nst({0:'start',1:'setup',2:'qproj',3:'qx',4:'main0',5:'main1',6:'cw',7:'cr',8:'own'}[i])
    if MS[0]:
        if i == MS[0][0]: return ['s_memtime s[70:71]']
        if i == MS[0][1]: return ['s_memtime s[86:87]']
        return []
    return [f"s_memtime s[{70+2*i}:{71+2*i}]"] if on else []
def stampw(i, on):
    if STP[0] is not None:
        r = stamp(i, on)
        return r + ['s_waitcnt lgkmcnt(0)'] if r else []
    if MS[0]:
        r = stamp(i, on)
        return r + ["s_waitcnt lgkmcnt(0)"] if r else []
    return [f"s_memtime s[{70+2*i}:{71+2*i}]", "s_waitcnt lgkmcnt(0)"] if on else []

_uid = [0]
def uid():
    _uid[0] += 1; return _uid[0]

def setup0(opt):
    L = ["s_cmp_ge_u32 s2, 256", "s_cbranch_scc1 L_end",
         "s_load_dwordx8 s[4:11], s[0:1], 0", "s_load_dwordx4 s[44:47], s[0:1], 32", "s_load_dwordx4 s[48:51], s[0:1], 48"]
    if opt.get("stamps"): L += ["s_memrealtime s[68:69]"]
    L += ["v_lshrrev_b32 v1, 6, v0", "v_and_b32 v0, 63, v0", f"v_readfirstlane_b32 s{S_W}, v1",
          f"s_and_b32 s{S_G}, s2, 7", f"s_lshr_b32 s{S_C}, s2, 3", f"s_and_b32 s{S_C}, s{S_C}, 3", f"s_lshr_b32 s{S_B}, s2, 5",
          f"s_lshl_b32 s{S_GRP}, s{S_B}, 3", f"s_add_u32 s{S_GRP}, s{S_GRP}, s{S_G}",
          f"s_mov_b32 s{S_MODE}, 0", f"s_mov_b32 s{S_NONCE}, 0", "s_waitcnt lgkmcnt(0)"]
    L += [f"s_mul_i32 s28, s{S_B}, 81920", f"s_add_u32 s{S_X}, s4, s28", f"s_addc_u32 s{S_X+1}, s5, 0", f"s_and_b32 s{S_X+1}, s{S_X+1}, 0xffff",
          f"s_mov_b32 s{S_X+2}, 81920", f"s_mov_b32 s{S_X+3}, 0x20000"]
    L += srd(S_WQ, 10, 512*4096*2)
    L += [f"s_lshl_b32 s28, s{S_GRP}, 19", f"s_lshl_b32 s29, s{S_W}, 17", "s_add_u32 s28, s28, s29"]
    L += ["s_add_u32 s12, s6, s28", "s_addc_u32 s13, s7, 0", "s_and_b32 s13, s13, 0xffff", "s_mov_b32 s14, 0x20000", "s_mov_b32 s15, 0x20000"]
    L += ["s_add_u32 s16, s8, s28", "s_addc_u32 s17, s9, 0", "s_and_b32 s17, s17, 0xffff", "s_mov_b32 s18, 0x20000", "s_mov_b32 s19, 0x20000"]
    L += srd(S_WS, 50, WS_SIZE) + srd(S_WOSRD, 44, 4096*512*2) + srd(S_OUT, 46, 8*80*512*2) + srd(S_DBG, 48, 256)
    return L

def setup1():
    L = ["v_and_b32 v2, 15, v0", "v_lshrrev_b32 v3, 4, v0", f"v_lshlrev_b32 v{V_L16}, 4, v0"]
    L += ["v_lshrrev_b32 v4, 3, v0", f"s_mul_i32 s28, s{S_W}, 24", "v_add_u32 v4, s28, v4", "v_and_b32 v5, 7, v0"]
    for m in range(3):
        L += [f"v_add_u32 v6, {8*m}, v4", "v_lshrrev_b32 v7, 1, v6", "v_and_b32 v7, 7, v7", "v_xor_b32 v7, v7, v5", "v_lshlrev_b32 v7, 4, v7",
              "v_lshl_add_u32 v7, v6, 10, v7", f"v_subrev_u32 v{V_XD+m}, {m*1024}, v7"]
    L += [f"s_lshl_b32 s28, s{S_W}, 4", "v_add_u32 v4, s28, v3", "v_lshlrev_b32 v5, 2, v3", "v_xor_b32 v5, v5, v2", "v_lshlrev_b32 v5, 4, v5", "v_lshl_add_u32 v5, v4, 13, v5"]
    for i in range(4): L.append(f"v_add_u32 v{V_WQD+i}, {i*31744}, v5")
    L += [f"s_add_u32 s28, s{S_C}, s{S_B}", "s_and_b32 s28, s28, 3", "s_lshl_b32 s28, s28, 1", f"s_lshr_b32 s29, s{S_B}, 2", f"s_add_u32 s{S_ROT}, s28, s29"]
    L += [f"s_lshl_b32 s28, s{S_G}, 2", f"s_add_u32 s28, s28, s{S_C}", "s_lshl_b32 s31, s28, 8"]
    return L

def qp_dma(hc):
    buf = hc % 3; tag = ("C", hc)
    L = [f"s_add_u32 s28, s{S_ROT}, {hc}", "s_and_b32 s28, s28, 7", "s_lshl_b32 s29, s28, 7",
         f"s_mul_i32 s30, s{S_W}, 3072", f"s_add_u32 m0, s30, {QP_X[buf]}"]
    for m in range(3): L.append(dma(f"v{V_XD+m}", f"s[{S_X}:{S_X+3}]", "s29", m*1024, tag))
    L += ["s_lshl_b32 s29, s28, 19", "s_add_u32 s29, s29, s31", f"s_lshl_b32 s30, s{S_W}, 12", f"s_add_u32 m0, s30, {QP_W[buf]}"]
    for i in range(4): L.append(dma(f"v{V_WQD+i}", f"s[{S_WQ}:{S_WQ+3}]", "s29", i*1024, tag))
    return L

def qp_lanebases():
    L = ["v_lshrrev_b32 v4, 2, v2", f"v_xor_b32 v5, s{S_W}, v4", "v_lshlrev_b32 v5, 6, v5", "v_lshl_add_u32 v6, v3, 3, v4", "v_lshl_add_u32 v5, v6, 8, v5",
         "v_and_b32 v6, 3, v0", f"v_lshl_add_u32 v{V_WB}, v6, 4, v5"]
    for ks in range(2):
        L += [f"v_add_u32 v5, {4*ks}, v3", "v_lshrrev_b32 v6, 1, v2", "v_xor_b32 v5, v5, v6", "v_lshlrev_b32 v5, 4, v5", f"v_lshl_add_u32 v{V_XB[ks]}, v2, 7, v5"]
    return L

def ring_addrs():
    L = [f"s_lshl_b32 s{S_M0K}, s{S_W}, 13"]
    L += ["v_xor_b32 v6, v2, v3"]
    for i in range(4):
        L += [f"v_xor_b32 v5, {4*i}, v6", "v_lshlrev_b32 v5, 4, v5", f"v_lshl_add_u32 v{V_KD+i}, v3, 8, v5"]
    for i in range(2):
        L += [f"v_add_u32 v5, {4*i}, v3", "v_lshlrev_b32 v5, 1, v5", "v_xor_b32 v5, v5, v2", "v_lshlrev_b32 v5, 4, v5", f"v_lshl_add_u32 v{V_VD+i}, v3, 8, v5"]
    for j in range(4):
        L += [f"v_add_u32 v5, {4*j}, v3", "v_xor_b32 v5, v5, v2", "v_lshlrev_b32 v5, 4, v5", "v_lshl_add_u32 v5, v2, 8, v5", f"v_add_u32 v{V_KA+j}, s{S_M0K}, v5"]
    L += ["v_lshrrev_b32 v4, 2, v2", "v_lshl_add_u32 v4, v3, 2, v4", "v_and_b32 v5, 7, v4", "v_lshlrev_b32 v5, 1, v5",
          "v_and_b32 v6, 3, v0", "v_lshrrev_b32 v6, 1, v6", "v_and_b32 v7, 1, v0", "v_lshlrev_b32 v7, 3, v7",
          "v_lshl_add_u32 v7, v4, 8, v7"]
    L += [f"s_lshl_b32 s28, s{S_W}, 2"]
    for ep in range(2):
        L += [f"s_add_u32 s29, s28, {2*ep}", "v_add_u32 v1, s29, v6", "v_xor_b32 v1, v1, v5", f"v_lshl_add_u32 v{V_WAX+ep}, v1, 4, v7"]
    L += [f"s_add_u32 s28, s{S_M0K}, 65536", "v_add_u32 v7, s28, v7"]
    for dt in range(8):
        L += [f"v_add_u32 v1, {2*dt}, v6", "v_xor_b32 v1, v1, v5", f"v_lshl_add_u32 v{V_VA+dt}, v1, 4, v7"]
    for i in range(4):
        L += [f"v_add_u32 v5, {4*(i&1)}, v3", "v_lshlrev_b32 v5, 1, v5", "v_xor_b32 v5, v5, v2", "v_lshlrev_b32 v5, 4, v5",
              f"v_add_u32 v6, {4*i}, v3", "v_lshl_add_u32 v5, v6, 10, v5", f"v_subrev_u32 v{V_WD+i}, {i*1024}, v5"]
    if mb.OPT.get("rot"):
        def order(j, ph):
            o = []; bounds = [0] + [x for x in range(ph, 16, 4) if x > 0] + [16]
            for a_, b_ in zip(bounds[:-1], bounds[1:]):
                n_ = b_ - a_
                o += [a_ + ((i + j) % n_) for i in range(n_)]
            return o
        L += [f"s_and_b32 s28, s{S_B}, 3", "s_lshl_b32 s28, s28, 2", f"s_add_u32 s28, s28, s{S_C}", f"s_mov_b32 s{S_TAB}, 0", f"s_mov_b32 s{S_TAB+1}, 0"]
        for ph in range(4):
            for j in range(4):
                o = order(j, ph); assert sorted(o) == list(range(16))
                lo = sum(v << (4*i) for i, v in enumerate(o[:8])); hi = sum(v << (4*i) for i, v in enumerate(o[8:]))
                L += [f"s_cmp_eq_u32 s28, {ph*4+j}", f"s_cselect_b32 s{S_TAB}, {hex(lo)}, s{S_TAB}", f"s_cselect_b32 s{S_TAB+1}, {hex(hi)}, s{S_TAB+1}"]
    L += [f"s_lshl_b32 s28, s{S_B}, 16", f"s_lshl_b32 s29, s{S_W}, 14", "s_add_u32 s28, s28, s29", f"s_lshl_b32 s29, s{S_G}, 19", "s_add_u32 s28, s28, s29",
          f"s_lshl_b32 s29, s{S_C}, 8", f"s_add_u32 s{S_PLOFF}, s28, s29", f"s_lshl_b32 s28, s{S_W}, 13", f"s_add_u32 s{S_PLM0}, s28, 131072"]
    for hr in range(4):
        L += [f"s_add_u32 s28, s{S_C}, {hr}", "s_and_b32 s28, s28, 3", "s_lshl_b32 s28, s28, 17", f"s_lshl_b32 s29, s{S_G}, 19", "s_add_u32 s28, s28, s29",
              f"s_lshl_b32 s29, s{S_C}, 8", "s_add_u32 s28, s28, s29", f"s_lshl_b32 s29, s{S_W}, 15", f"s_add_u32 s{S_WOB[hr]}, s28, s29"]
    return L

def qp_reads(hc, ks):
    st = ks; xa = V_QXA[hc % 2][ks]; wa = V_QWA[hc % 2]
    r = [P(f"ds_read_b128 {R('v', QB[st]+4*n, 4)}, v{xa} offset:{n*2048}") for n in range(5)]
    for e in range(2):
        for hh in range(2):
            r.append(P(f"ds_read_b64_tr_b16 {R('v', QA[st]+e*4+2*hh, 2)}, v{wa} offset:{ks*8192+hh*1024+e*8}"))
    return [r[5], r[6], r[0], r[7], r[8], r[1], r[2], r[3], r[4]]
def qp_addr(hc):
    buf = hc % 3
    return PL([f"v_add_u32 v{V_QWA[hc%2]}, {QP_W[buf]}, v{V_WB}", f"v_add_u32 v{V_QXA[hc%2][0]}, {QP_X[buf]}, v{V_XB[0]}",
               f"v_add_u32 v{V_QXA[hc%2][1]}, {QP_X[buf]}, v{V_XB[1]}"])
def qp_mfmas(hc, ks):
    r = []
    for n in range(5):
        for e in range(2):
            d = R('v', V_QD+(e*5+n)*4, 4)
            c = "0" if (hc == 0 and ks == 0) else d
            r.append(P(f"v_mfma_f32_16x16x32_bf16 {d}, {R('v', QA[ks]+e*4, 4)}, {R('v', QB[ks]+4*n, 4)}, {c}"))
    return r

def qproj(opt):
    mf = []; idx = {}
    for hc in range(8):
        for ks in range(2):
            idx[(hc, ks)] = len(mf); mf += qp_mfmas(hc, ks)
    fixed = {}; rd = []; dm = []
    pre = [P("s_barrier", need_vm=[("C", 0)])] + qp_addr(0) + qp_reads(0, 0)
    for k, ins in enumerate(qp_reads(0, 1)): rd.append(F(ins, idx[(0, 0)] + k, idx[(0, 1)] - 1))
    for hc in range(1, 8):
        bpos = idx[(hc-1, 1)]
        fixed[bpos] = [P("s_waitcnt lgkmcnt(0)"), P("s_barrier", need_vm=[("C", hc)])] + qp_addr(hc)
        for k, ins in enumerate(qp_reads(hc, 0)): rd.append(F(ins, bpos + k, idx[(hc, 0)] - 1))
        for k, ins in enumerate(qp_reads(hc, 1)): rd.append(F(ins, idx[(hc, 0)] + k, idx[(hc, 1)] - 1))
    def sched(items, start, end):
        n = sum(1 for i in items if i.kind in ("dma", "vmem"))
        step = max(1, (end - start) // max(n, 1))
        out = []; k = 0
        for ins in items:
            lo = min(start + k*step, end - 1)
            out.append(F(ins, lo, lo + step))
            if ins.kind in ("dma", "vmem"): k += 1
        return out
    dm += sched(PL(qp_dma(2)), idx[(0, 0)], idx[(0, 1)])
    for hc in range(1, 6):
        dm += sched(PL(qp_dma(hc+2)), idx[(hc-1, 1)] + 1, idx[(hc, 1)])
    nl = PL([f"s_lshl_b32 s28, s{S_B}, 5", "v_mov_b32 v254, s28", f"buffer_load_dword v{V_NONCE}, v254, s[{S_DBG}:{S_DBG+3}], 0 offen sc1"])
    dm += sched(nl + k_dma(0) + v_dma(0), idx[(5, 1)] + 1, idx[(7, 1)] + 8)
    return pre + place(mf, [rd, dm], 8, fixed)

def nonce_publish():
    return [f"s_or_b32 s28, s{S_G}, s{S_C}", f"s_or_b32 s28, s28, s{S_W}", "s_cmp_eq_u32 s28, 0", "s_cbranch_scc0 L_not_leader",
            "s_memrealtime s[28:29]", "s_waitcnt lgkmcnt(0)", "s_or_b32 s28, s28, 1", "v_mov_b32 v5, s28", f"s_lshl_b32 s29, s{S_B}, 5", "v_mov_b32 v4, s29",
            f"buffer_store_dword v5, v4, s[{S_DBG}:{S_DBG+3}], 0 offen sc1", "L_not_leader:"]
def nonce_code():
    return [f"s_cmp_lg_u32 s{S_NONCE}, 0", "s_cbranch_scc1 L_have_nonce", f"v_readfirstlane_b32 s{S_NONCE}, v{V_NONCE}",
            f"s_cmp_lg_u32 s{S_NONCE}, 0", "s_cbranch_scc1 L_have_nonce",
            f"s_lshl_b32 s28, s{S_B}, 5", "v_mov_b32 v4, s28", "s_mov_b32 s29, 0", "L_nonce_poll:",
            f"buffer_load_dword v5, v4, s[{S_DBG}:{S_DBG+3}], 0 offen sc1", "s_waitcnt vmcnt(0)", f"v_readfirstlane_b32 s{S_NONCE}, v5",
            f"s_cmp_lg_u32 s{S_NONCE}, 0", "s_cbranch_scc1 L_have_nonce", "s_add_u32 s29, s29, 1", "s_cmp_lt_u32 s29, 0x40000", "s_cbranch_scc0 L_have_nonce",
            "s_sleep 2", "s_branch L_nonce_poll", "L_have_nonce:"]

def wave_flag(addr_s, payload):
    return [f"v_mov_b32 v4, s{addr_s}", f"v_mov_b32 v6, s{S_NONCE}", f"v_mov_b32 v7, {payload}", "s_mov_b64 exec, 1",
            f"buffer_store_dwordx2 v[6:7], v4, s[{S_WS}:{S_WS+3}], 0 offen sc1", "s_mov_b64 exec, -1"]
def poll(base_s, mask, shift=3, lane_off=0):
    u = uid()
    return [f"v_and_b32 v4, {mask}, v0", f"v_lshlrev_b32 v4, {shift}, v4", f"v_add_u32 v4, s{base_s}, v4", "s_mov_b32 s29, 0", f"L_pf{u}:",
            f"buffer_load_dwordx2 v[6:7], v4, s[{S_WS}:{S_WS+3}], 0 offen sc1", "s_waitcnt vmcnt(0)",
            f"v_cmp_ne_u32 vcc, s{S_NONCE}, v6", f"s_cbranch_vccz L_pf{u}_ok", "s_add_u32 s29, s29, 1", "s_cmp_lt_u32 s29, 0x40000",
            f"s_cbranch_scc1 L_pf{u}", f"L_pf{u}_ok:"]
def flagline(area_a, area_b=None):
    L = [f"s_lshl_b32 s30, s{S_GRP}, 7", f"s_add_u32 s30, s30, {WS_FLAG}"]
    if area_b is None: L += [f"s_add_u32 s30, s30, {area_a}"] if area_a else []
    else: L += [f"s_mul_i32 s29, s{S_MODE}, {area_b - area_a}", "s_add_u32 s30, s30, s29"] + ([f"s_add_u32 s30, s30, {area_a}"] if area_a else [])
    return L

def q_exchange(opt):
    st = opt.get("stamps")
    L = ["s_waitcnt lgkmcnt(0)", "s_barrier"]
    L += k_dma(1)
    L += [f"s_mov_b32 s29, {hex(CSCALE)}", f"s_lshl_b32 s28, s{S_W}, 10", f"v_add_u32 v4, s28, v{V_L16}", f"v_add_u32 v4, {QBUF}, v4"]
    for n in range(5):
        d0 = V_QD + n*4; d1 = V_QD + (5+n)*4
        for r in range(4): L += [f"v_mul_f32 v{d0+r}, s29, v{d0+r}", f"v_mul_f32 v{d1+r}, s29, v{d1+r}"]
        t = 164 + n*4
        L += [f"v_cvt_pk_bf16_f32 v{t}, v{d0}, v{d0+1}", f"v_cvt_pk_bf16_f32 v{t+1}, v{d0+2}, v{d0+3}",
              f"v_cvt_pk_bf16_f32 v{t+2}, v{d1}, v{d1+1}", f"v_cvt_pk_bf16_f32 v{t+3}, v{d1+2}, v{d1+3}",
              f"ds_write_b128 v4, v[{t}:{t+3}] offset:{n*4096}"]
    L += v_dma(1)
    L += ["s_waitcnt lgkmcnt(0)", "s_barrier"]
    L += stamp(3, st)
    L += [f"v_add_u32 v4, {QBUF}, v{V_L16}"]
    for n in range(5):
        for j in range(4): L.append(f"ds_read_b128 {Qf(n, j)}, v4 offset:{(n*4+j)*1024}")
    return L

def selector(base):
    return ["v_lshrrev_b32 v4, 2, v2", "v_cmp_eq_u32 vcc, v4, v3", "v_and_b32 v5, 1, v0", "v_lshlrev_b32 v5, 4, v5", "v_mov_b32 v6, 0x3f80", "v_lshlrev_b32 v6, v5, v6",
            "v_cndmask_b32 v6, 0, v6, vcc", "v_and_b32 v5, 2, v0", "v_cmp_eq_u32 vcc, 0, v5",
            f"v_cndmask_b32 v{base}, 0, v6, vcc", f"v_cndmask_b32 v{base+1}, v6, 0, vcc",
            f"v_mov_b32 v{base+2}, 0", f"v_mov_b32 v{base+3}, 0", f"v_mov_b32 v{base+4}, 0", f"v_mov_b32 v{base+5}, 0",
            f"v_mov_b32 v{base+6}, v{base}", f"v_mov_b32 v{base+7}, v{base+1}"]

CBUF = 0
CL = 81920
OLOC = [65536, 86016, 106496, 126976]
def pre_attn():
    L = ["s_waitcnt vmcnt(32)"] + nonce_code()
    L += [f"v_add_u32 v{V_CW}, s{S_M0K}, v{V_L16}", "v_lshlrev_b32 v4, 2, v0", f"s_add_u32 s28, s{S_M0K}, {65536+4096}", f"v_add_u32 v{V_CLW}, s28, v4"]
    return L

def stage1(opt):
    st = opt.get("stamps")
    L = [f"v_add_u32 v44, 0x10000, v{V_CW}"]
    L += combine_writes(4)
    if not opt.get("early", True):
        for n in range(4): L += combine_writes(n)
    L += wo_dma(0)
    L += selector(48)
    L += [f"s_lshl_b32 s28, s{S_W}, 10", f"v_add_u32 v5, s28, v{V_L16}", f"v_add_u32 v45, 0x10000, v5", "v_lshlrev_b32 v6, 2, v0", f"v_add_u32 v6, {65536+4096}, v6"]
    L += ["s_waitcnt lgkmcnt(0)", "s_barrier"]
    L += stamp(6, st)
    PB = V_O
    DB = 164
    rd = []
    for n in range(5):
        for s_ in range(4):
            q0 = n*4
            addr = CREG[n >> 1] + s_*8192 + (n & 1)*4096
            rd.append(P(f"ds_read_b128 v[{PB+(n*4+s_)*4}:{PB+(n*4+s_)*4+3}], v{5 if addr < 65536 else 45} offset:{addr & 0xffff}"))
    lr = [P(f"ds_read_b32 v{56+4*n+s_}, v6 offset:{s_*8192+n*256}") for n in range(5) for s_ in range(4)]
    mf = []
    for n in range(5):
        for s_ in range(4):
            q = f"v[{PB+(n*4+s_)*4}:{PB+(n*4+s_)*4+3}]"
            mf += [P(f"v_mfma_f32_16x16x32_bf16 v[{DB+n*8}:{DB+n*8+3}], v[48:51], {q}, {'0' if s_ == 0 else f'v[{DB+n*8}:{DB+n*8+3}]'}"),
                   P(f"v_mfma_f32_16x16x32_bf16 v[{DB+n*8+4}:{DB+n*8+7}], v[52:55], {q}, {'0' if s_ == 0 else f'v[{DB+n*8+4}:{DB+n*8+7}]'}")]
    va = []
    for n in range(5):
        l = 56 + 4*n
        va += PL([f"v_add_f32 v{l}, v{l}, v{l+1}", f"v_add_f32 v{l+2}, v{l+2}, v{l+3}", f"v_add_f32 v{l}, v{l}, v{l+2}"])
    L += rd[:8]
    ch_rd = [F(rd[i], max(0, 2*(i-8)), 2*i - 6) for i in range(8, 20)]
    ch_lr = [F(x, 4 + i//2, 16) for i, x in enumerate(lr)]
    ch_va = [F(x, 18 + i, 38) for i, x in enumerate(va)]
    w1 = wo_dma(1)
    ch_w = []; kk = 0
    for ins in w1:
        ch_w.append(F(ins, 2 + kk*4, 39))
        if ins.kind == "dma": kk += 1
    L += place(mf, [ch_rd, ch_lr, ch_va, ch_w], 8)
    L += ["s_mov_b32 s29, 0x21800000", "s_mov_b32 s30, 0x5d800000", "s_mov_b64 s[90:91], 0"]
    for n in range(5):
        L += [f"v_cmp_nge_f32 vcc, v{56+4*n}, s29", "s_or_b64 s[90:91], s[90:91], vcc", f"v_cmp_nle_f32 vcc, v{56+4*n}, s30", "s_or_b64 s[90:91], s[90:91], vcc"]
    L += ["s_cmp_lg_u64 s[90:91], 0", "s_cselect_b32 s31, 1, 0", f"s_cmp_eq_u32 s{S_MODE}, 0", "s_cselect_b32 s31, s31, 0", "s_cmp_lg_u32 s31, 0", "s_cbranch_scc1 L_fallback"]
    for n in range(5): L.append(f"v_rcp_f32 v{56+4*n}, v{56+4*n}")
    DB = 164
    L += [f"s_lshl_b32 s28, s{S_W}, 10", f"v_add_u32 v44, s28, v{V_L16}", f"v_add_u32 v44, {OLOC[0]}, v44", f"s_lshl_b32 s29, s{S_GRP}, 2", f"s_add_u32 s29, s29, s{S_C}", "s_mul_i32 s29, s29, 20480",
          "s_add_u32 s93, s29, s28", f"s_add_u32 s93, s93, {WS_OF}"]
    L += ["s_barrier"]
    L += stamp(7, st)
    st_ = []; dw = []
    for n in range(5):
        l = 56 + 4*n; d = DB + n*8
        for r in range(8): L.append(f"v_mul_f32 v{d+r}, v{d+r}, v{l}")
        L += [f"v_cvt_pk_bf16_f32 v{d}, v{d}, v{d+1}", f"v_cvt_pk_bf16_f32 v{d+1}, v{d+2}, v{d+3}",
              f"v_cvt_pk_bf16_f32 v{d+2}, v{d+4}, v{d+5}", f"v_cvt_pk_bf16_f32 v{d+3}, v{d+6}, v{d+7}",
              f"s_add_u32 s30, s93, {n*4096}", f"buffer_store_dwordx4 v[{d}:{d+3}], v{V_L16}, s[{S_WS}:{S_WS+3}], s30 offen sc1"]
        dw.append(f"ds_write_b128 v44, v[{d}:{d+3}] offset:{n*4096}")
    L += dw
    L += wo_dma(2) + wo_dma(3)
    return L

def s2_chunk(hr, nbase):
    reads = []; mfs = []
    for j in range(4):
        for n in range(5):
            addr = OLOC[hr] + (n*4+j)*1024
            breg = 28 + ((nbase + j*5 + n) % 12)*4
            reads.append(P(f"ds_read_b128 v[{breg}:{breg+3}], v{248 + (addr >> 16)} offset:{addr & 0xffff}"))
            for ep in range(2):
                d = R('v', V_O + (ep*5+n)*4, 4)
                c = "0" if (hr == 0 and j == 0) else d
                a = A_WO[hr] + (j*2+ep)*4
                mfs.append(P(f"v_mfma_f32_16x16x32_bf16 {d}, a[{a}:{a+3}], v[{breg}:{breg+3}], {c}"))
    return reads, mfs
def s2_dma(hr):
    L = PL([f"s_add_u32 s29, s{S_C}, {hr}", "s_and_b32 s29, s29, 3", "s_mul_i32 s29, s29, 20480", "s_add_u32 s29, s29, s93", f"s_add_u32 m0, s31, {OLOC[hr]}"])
    for i in range(4): L.append(dma(f"v{V_L16}", f"s[{S_WS}:{S_WS+3}]", "s29", i*1024, ("P", hr), "sc1"))
    L += PL(["s_add_u32 s29, s29, 4096", f"s_add_u32 m0, s31, {OLOC[hr]+4096}"])
    L.append(dma(f"v{V_L16}", f"s[{S_WS}:{S_WS+3}]", "s29", 0, ("P", hr), "sc1"))
    return L

def stage2(opt):
    st = opt.get("stamps")
    L = flagline(F2)
    L += [f"s_lshl_b32 s28, s{S_C}, 2", f"s_add_u32 s28, s28, s{S_W}", "s_lshl_b32 s28, s28, 3", "s_add_u32 s31, s30, s28"]
    L += [f"v_add_u32 v76, 0x10000, v{V_WAX}", f"v_add_u32 v77, 0x10000, v{V_WAX+1}", f"v_add_u32 v78, 0x20000, v{V_WAX}", f"v_add_u32 v79, 0x20000, v{V_WAX+1}"]
    L += ["s_waitcnt vmcnt(16)"] + wave_flag(31, 0)
    L += ["s_waitcnt lgkmcnt(0)", "s_barrier"]
    L += [f"v_mov_b32 v248, v{V_L16}", f"v_add_u32 v249, 0x10000, v{V_L16}", f"v_add_u32 v250, 0x20000, v{V_L16}"]
    L = PL(L)
    regs_ = {0: V_WAX, 0x10000: 76, 0x20000: 78}
    L += wo_frag_reads(0, regs_) + wo_frag_reads(1, regs_)
    r0, m0 = s2_chunk(0, 0)
    AH = 6
    L += r0[:AH] + place(m0, [[F(r0[i], 2*(i-AH), 2*i - 4) for i in range(AH, 20)]], 8)
    L += PL(stamp(8, st))
    L += PL(poll(30, 15))
    L += PL(nst("poll2"))
    L += PL(["s_waitcnt lgkmcnt(0)", "s_barrier"])
    L += PL([f"s_mul_i32 s31, s{S_W}, 5120", f"s_mul_i32 s93, s{S_GRP}, 81920", "s_add_u32 s93, s93, s31", f"s_add_u32 s93, s93, {WS_OF}"])
    L += s2_dma(1) + s2_dma(2)
    w23 = wo_frag_reads(2, regs_) + wo_frag_reads(3, regs_)
    L += w23[:16]
    mf = []; idx = {}; rdch = []; dm = []; fixed = {}
    nb = 20
    for hr in (1, 2, 3):
        idx[hr] = len(mf)
        r, m = s2_chunk(hr, nb); nb += 20
        fixed[idx[hr]] = [P("s_barrier", need_vm=[("P", hr)])] + r[:AH]
        for i in range(AH, 20): rdch.append(F(r[i], idx[hr] + 2*(i-AH), idx[hr] + 2*i - 4))
        mf += m
    kk = 0
    for ins in s2_dma(3):
        lo = idx[1] + 2 + kk*6
        dm.append(F(ins, lo, lo + 6))
        if ins.kind == "dma": kk += 1
    wch = [F(x, idx[1] + 4 + 2*i, idx[2] + 20) for i, x in enumerate(w23[16:])]
    L += place(mf, [rdch, dm, wch], 8, fixed)
    L += PL(nst("gemm2"))
    T = [f"s_lshl_b32 s28, s{S_B}, 2", f"s_add_u32 s28, s28, s{S_C}", "s_mul_i32 s28, s28, 20", f"s_mul_i32 s29, s{S_W}, 5", "s_add_u32 s28, s28, s29",
         "s_lshl_b32 s28, s28, 3", f"s_add_u32 s28, s28, s{S_G}", "s_lshl_b32 s28, s28, 10", f"s_add_u32 s28, s28, {WS_OUTP}"]
    for n in range(5):
        a = V_O + n*4; b = V_O + (5+n)*4
        t = 28 + n*4
        T += [f"v_cvt_pk_bf16_f32 v{t}, v{a}, v{a+1}", f"v_cvt_pk_bf16_f32 v{t+1}, v{a+2}, v{a+3}",
              f"v_cvt_pk_bf16_f32 v{t+2}, v{b}, v{b+1}", f"v_cvt_pk_bf16_f32 v{t+3}, v{b+2}, v{b+3}",
              f"s_add_u32 s29, s28, {n*8192}", f"buffer_store_dwordx4 v[{t}:{t+3}], v{V_L16}, s[{S_WS}:{S_WS+3}], s29 offen sc1"]
    return L + PL(T)

def stage3(opt):
    L = [f"s_lshl_b32 s28, s{S_B}, 2", f"s_add_u32 s28, s28, s{S_C}", "s_mov_b32 s67, s28", "s_lshl_b32 s28, s28, 2", f"s_add_u32 s29, s28, s{S_W}", "s_lshl_b32 s29, s29, 6",
         f"s_add_u32 s29, s29, {WS_FLAG+F3}", f"s_lshl_b32 s30, s{S_G}, 3", "s_add_u32 s31, s29, s30"]
    L += selector(48)
    L += ["s_waitcnt vmcnt(0)"] + wave_flag(31, 0) + nst("flag3")
    L += [f"s_lshl_b32 s28, s{S_G}, 2", f"s_add_u32 s28, s28, s{S_W}", "s_cmp_lt_u32 s28, 20", "s_cbranch_scc0 L_done", "s_mov_b32 s65, s28",
          "s_mul_i32 s28, s65, 52", "s_lshr_b32 s92, s28, 8",
          "s_lshl_b32 s28, s67, 2", "s_add_u32 s28, s28, s92", "s_lshl_b32 s28, s28, 6", f"s_add_u32 s31, s28, {WS_FLAG+F3}"]
    L += poll(31, 7) + nst("poll3")
    L += ["s_mul_i32 s29, s67, 20", "s_add_u32 s29, s29, s65", "s_lshl_b32 s29, s29, 13", f"s_add_u32 s29, s29, {WS_OUTP}", "s_add_u32 s30, s29, 4096"]
    for gp in range(8):
        L.append(f"buffer_load_dwordx4 v[{84+4*gp}:{87+4*gp}], v{V_L16}, s[{S_WS}:{S_WS+3}], s{29 if gp < 4 else 30} offen offset:{(gp&3)*1024} sc1")
    for gp in range(8):
        L += [f"v_mfma_f32_16x16x32_bf16 v[60:63], v[48:51], v[{84+4*gp}:{87+4*gp}], {'0' if gp == 0 else 'v[60:63]'}",
              f"v_mfma_f32_16x16x32_bf16 v[64:67], v[52:55], v[{84+4*gp}:{87+4*gp}], {'0' if gp == 0 else 'v[64:67]'}"]
    L += ["s_mul_i32 s29, s92, 5", "s_sub_u32 s29, s65, s29",
          "s_lshl_b32 s29, s29, 14", "s_lshl_b32 s28, s92, 6", "s_add_u32 s28, s28, s29", f"s_lshl_b32 s29, s{S_C}, 8", "s_add_u32 s28, s28, s29",
          f"s_mul_i32 s29, s{S_B}, 81920", "s_add_u32 s28, s28, s29", "v_lshlrev_b32 v4, 10, v2", "v_lshl_add_u32 v4, v3, 3, v4"]
    L += ["v_cvt_pk_bf16_f32 v68, v60, v61", "v_cvt_pk_bf16_f32 v69, v62, v63", "v_cvt_pk_bf16_f32 v70, v64, v65", "v_cvt_pk_bf16_f32 v71, v66, v67",
          f"buffer_store_dwordx2 v[68:69], v4, s[{S_OUT}:{S_OUT+3}], s28 offen", f"buffer_store_dwordx2 v[70:71], v4, s[{S_OUT}:{S_OUT+3}], s28 offen offset:32"]
    L += ["L_done:"]
    return L

def maxpass():
    L = ["s_waitcnt vmcnt(0) lgkmcnt(0)", "s_barrier"]
    MXR = [76, 77, 78, 79, 80]
    for n in range(5): L.append(f"v_mov_b32 v{MXR[n]}, 0xff800000")
    L += ["s_mov_b32 s90, 0", "L_maxloop:", f"s_lshl_b32 s{S_KOFF}, s90, 13", f"s_add_u32 s{S_KOFF2}, s{S_KOFF}, 4096"]
    for half in range(2):
        L.append(f"s_add_u32 m0, s{S_M0K}, {half*4096}")
        for i in range(4): L.append(dma(f"v{V_KD+i}", f"s[{S_KSRD}:{S_KSRD+3}]", f"s{S_KOFF if half == 0 else S_KOFF2}", i*1024, ("X", 0)))
    L += ["s_waitcnt vmcnt(0)"]
    L += k_reads(0)
    L += ["s_waitcnt lgkmcnt(0)"]
    for n in range(5):
        for s in range(2):
            for j in range(4):
                d = R("v", V_S + s*4, 4)
                L.append(mfma16(d, Kf(s, j), Qf(n, j), "0" if j == 0 else d))
        m = MXR[n]
        L += [f"v_max3_f32 v{m}, v{V_S}, v{V_S+1}, v{m}", f"v_max3_f32 v{m}, v{V_S+2}, v{V_S+3}, v{m}",
              f"v_max3_f32 v{m}, v{V_S+4}, v{V_S+5}, v{m}", f"v_max3_f32 v{m}, v{V_S+6}, v{V_S+7}, v{m}"]
    L += ["s_add_u32 s90, s90, 1", "s_cmp_lt_u32 s90, 16", "s_cbranch_scc1 L_maxloop"]
    for n in range(5):
        m = MXR[n]
        L += [f"v_mov_b32 v4, v{m}", f"v_permlane16_swap_b32 v4, v{m}", f"v_max_f32 v{m}, v4, v{m}",
              f"v_mov_b32 v4, v{m}", f"v_permlane32_swap_b32 v4, v{m}", f"v_max_f32 v{m}, v4, v{m}"]
    MB = 155648
    L += ["v_lshlrev_b32 v4, 2, v0", f"s_mul_i32 s29, s{S_W}, 1280", "v_add_u32 v5, s29, v4", f"v_add_u32 v5, {MB}, v5", f"v_add_u32 v4, {MB}, v4"]
    for n in range(5): L.append(f"ds_write_b32 v5, v{MXR[n]} offset:{n*256}")
    L += ["s_waitcnt lgkmcnt(0)", "s_barrier"]
    for n in range(5):
        for w in range(4): L.append(f"ds_read_b32 v{V_S+w}, v4 offset:{w*1280+n*256}")
        L += ["s_waitcnt lgkmcnt(0)", f"v_max3_f32 v5, v{V_S}, v{V_S+1}, v{V_S+2}", f"v_max_f32 v5, v5, v{V_S+3}"]
        for r in range(4): L.append(f"v_sub_f32 v{V_NEGM+n*4+r}, 0, v5")
    L += k_dma(0) + v_dma(0) + k_dma(1) + v_dma(1)
    return L

def kernel(opt):
    st = opt.get("stamps")
    L = setup0(opt)
    if opt.get("stp"):
        L += [f"s_mov_b32 s{70+i}, 0" for i in range(20)]
    L += stampw(0, st)
    L += nonce_publish()
    L += ["L_restart:"]
    L += setup1()
    L += qp_dma(0)
    L += qp_lanebases()
    L += qp_dma(1)
    L += ring_addrs()
    for i in range(4): L += ["v_mov_b32 v1, 0x3f803f80", f"v_accvgpr_write_b32 a{A_ONE+i}, v1"]
    for i in range(20): L.append(f"v_mov_b32 v{V_NEGM+i}, 0")
    L += stamp(1, st)
    L += qproj(opt)
    L += stamp(2, st)
    L += q_exchange(opt)
    S1, n1 = finalize(L)
    M = [f"s_cmp_eq_u32 s{S_MODE}, 0", "s_cbranch_scc1 L_attn"] + maxpass() + ["L_attn:"] + pre_attn()
    S1b, n1b = finalize(M)
    vmq = [("K", 0)]*8 + [("V", 0)]*8 + [("K", 1)]*8 + [("V", 1)]*8
    kr0 = k_reads(0); kr0[0].need_vm = [("K", 0)]
    body = PL(stampw(4, st)) + kr0 + build(opt)
    S2, _, _ = insert_waits(body, vm_outstanding=vmq)
    S2, n2 = check_hazards(S2)
    T = ["s_nop 7"] + stampw(5, st)
    T = PL(T) + PL(stage1(opt)) + stage2(opt) + PL(stage3(opt))
    E = []
    if st:
        E += ["s_memtime s[88:89]", "s_memrealtime s[90:91]", "s_waitcnt lgkmcnt(0)",
              "s_lshl_b32 s28, s2, 2", f"s_add_u32 s28, s28, s{S_W}", "s_lshl_b32 s28, s28, 6", f"s_add_u32 s28, s28, {WS_STAMP}", "v_mov_b32 v2, s28"]
        if MS[0]: E += ["s_mov_b32 s88, s86"]
        if STP[0]: E += ["s_mov_b32 s86, s88"]
        for k in range(9):
            E += [f"s_sub_u32 s29, s{72+2*k}, s{70+2*k}", "v_mov_b32 v3, s29", f"buffer_store_dword v3, v2, s[{S_WS}:{S_WS+3}], 0 offen offset:{4*k}", "s_nop 1"]
        for k, s in ((12, "s68"), (13, "s90")):
            E += [f"v_mov_b32 v3, {s}", f"buffer_store_dword v3, v2, s[{S_WS}:{S_WS+3}], 0 offen offset:{4*k}", "s_nop 1"]
    E += ["s_waitcnt vmcnt(0)", "s_endpgm", "L_fallback:", f"s_mov_b32 s{S_MODE}, 1", "s_waitcnt vmcnt(0) lgkmcnt(0)", "s_barrier", "s_branch L_restart", "L_end:", "s_endpgm"]
    S3, n3 = finalize(T + PL(E))
    print(f"; nops inserted {n1} {n1b} {n2} {n3}", file=sys.stderr)
    return emit(S1) + "\n" + emit(S1b) + "\n" + emit(S2) + "\n" + emit(S3) + "\n"

def gen(opt):
    mb.OPT["flags"] = opt.get("flags", ""); mb.OPT["rot"] = opt.get("rot", True); mb.OPT["share_off"] = opt.get("share_off", True)
    import sched as _s; _s.MERGE[0] = opt.get("merge", 0)
    MS[0] = (4, 5) if opt.get("mainstamps") else None
    STP[0] = opt.get("stp")
    hdr = open("standalone__gqa_block_cached__near_ridge.s.ref").read().split("; Override")[0]
    s = hdr + "; @launch grid=(256,1,1) block=(256,1,1) lds=163840\n"
    s += f'.amdgcn_target "amdgcn-amd-amdhsa--gfx950"\n.text\n.globl {KN}\n.p2align 8\n.type {KN},@function\n{KN}:\n'
    s += kernel(opt)
    s += footer(vgpr=512, accum=256, name=KN)
    return s

if __name__ == "__main__":
    for nm, o in {"a6": {"merge": 130}, "a6m0": {"merge": 0}, "a6m100": {"merge": 100}, "a6m170": {"merge": 170}}.items():
        open(nm + ".s", "w").write(gen(o))
        o2 = dict(o); o2["stamps"] = True
        open(nm + "_st.s", "w").write(gen(o2))
```

```python
from sched import *

V_KA = 8
V_VA = 12
V_KD = 20
V_VD = 24
V_WAX = 26
V_L16 = 252
V_WD = 244
V_NEGM = 28
V_S = 48
V_P = 72
V_O = 84
A_Q = 0; A_K = 80; A_V = 112; A_L = 144; A_ONE = 164
S_KSRD = 12; S_VSRD = 16; S_WOSRD = 52
S_M0K = 24
S_KOFF = 25; S_VOFF = 26
S_KOFF2 = 98; S_VOFF2 = 99
S_WOB = [94, 95, 96, 97]
S_WOFF = 100
S_PLM0 = 101; S_PLOFF = 66
NT = 16
OPT = {"flags": ""}
KSLOT = [0, 32768]; VSLOT = [65536, 98304]
WO_REG = [131072, 98304, 0, 32768]
A_WO = [0, 32, 64, 96]

def Sreg(G, s, r=None):
    b = V_S + (G % 3)*8 + s*4
    return R("v", b, 4) if r is None else f"v{b+r}"
def Preg(G, i=None):
    b = V_P + (G % 3)*4
    return R("v", b, 4) if i is None else f"v{b+i}"
def Kf(s, j): return R("a", A_K + (s*4+j)*4, 4)
def Vf(dt, h=None):
    b = A_V + dt*4
    return R("a", b, 4) if h is None else R("a", b+2*h, 2)
def Qf(n, j): return R("a", A_Q + (n*4+j)*4, 4)
def Of(dt, n): return R("v", V_O + (dt*5+n)*4, 4)
def Lf(n): return R("a", A_L + n*4, 4)

def qk_mfmas(G):
    n = G % 5
    L = []
    for s in range(2):
        for j in range(4):
            c = R("v", V_NEGM + n*4, 4) if j == 0 else Sreg(G, s)
            L.append(mfma16(Sreg(G, s), Kf(s, j), Qf(n, j), c, tag=("qk", G, s, j)))
    return L
def pv_mfmas(G):
    n = G % 5
    first = G < 5
    L = [mfma16(Of(dt, n), Vf(dt), Preg(G), "0" if first else Of(dt, n), tag=("pv", G, dt)) for dt in range(8)]
    L.append(mfma16(Lf(n), R("a", A_ONE, 4), Preg(G), "0" if first else Lf(n), tag=("l", G)))
    return L
def softmax_fillers(G):
    e = [vexp(Sreg(G, s, r), Sreg(G, s, r)) for s in range(2) for r in range(4)]
    c = [vcvtpk(Preg(G, i), Sreg(G, i//2, (i%2)*2), Sreg(G, i//2, (i%2)*2+1)) for i in range(4)]
    return [e[0], e[1], e[2], c[0], e[3], e[4], c[1], e[5], e[6], c[2], e[7], c[3]]
def k_reads(t):
    sl = (t % 2)*32768
    return [ds_read128(Kf(s, j), f"v{V_KA+j}", sl + s*4096) for s in range(2) for j in range(4)]
def v_reads(t):
    sl = (t % 2)*32768
    return [ds_read_tr(Vf(dt, h), f"v{V_VA+dt}", sl + h*4096) for dt in range(8) for h in range(2)]
S_TAB = 92
def toff(reg, reg2, t):
    if not OPT.get("rot"):
        return [salu(f"s_mov_b32 s{reg}, {t*8192}"), salu(f"s_mov_b32 s{reg2}, {t*8192+4096}")]
    src = S_TAB + (t >> 3)
    return [salu(f"s_bfe_u32 s{reg}, s{src}, {hex((4*(t % 8)) | (4 << 16))}"), salu(f"s_lshl_b32 s{reg}, s{reg}, 13"), salu(f"s_add_u32 s{reg2}, s{reg}, 4096")]
def k_dma(t):
    sl = KSLOT[t % 2]
    L = toff(S_KOFF, S_KOFF2, t)
    for half in range(2):
        L.append(salu(f"s_add_u32 m0, s{S_M0K}, {sl + half*4096}"))
        for i in range(4):
            L.append(dma(f"v{V_KD+i}", f"s[{S_KSRD}:{S_KSRD+3}]", f"s{S_KOFF if half == 0 else S_KOFF2}", i*1024, ("K", t), OPT["flags"]))
    return L
def v_dma(t):
    sl = VSLOT[t % 2]
    share = OPT.get("share_off")
    L = [] if share else toff(S_VOFF, S_VOFF2, t)
    r0, r1 = (S_KOFF, S_KOFF2) if share else (S_VOFF, S_VOFF2)
    for half in range(2):
        L.append(salu(f"s_add_u32 m0, s{S_M0K}, {sl + half*4096}"))
        for i in range(4):
            L.append(dma(f"v{V_VD+(i&1)}", f"s[{S_VSRD}:{S_VSRD+3}]", f"s{r0 if half == 0 else r1}", i*1024, ("V", t), OPT["flags"]))
    return L
def wo_dma(hr):
    L = []
    for half in range(2):
        L += [salu(f"s_add_u32 s{S_WOFF}, s{S_WOB[hr]}, {half*16384}"), salu(f"s_add_u32 m0, s{S_M0K}, {WO_REG[hr] + half*4096}")]
        for i in range(4): L.append(dma(f"v{V_WD+i}", f"s[{S_WOSRD}:{S_WOSRD+3}]", f"s{S_WOFF}", i*1024, ("W", hr)))
    return L
def wo_frag_reads(hr, regs_):
    L = []
    for j in range(4):
        for ep in range(2):
            for hh in range(2):
                addr = WO_REG[hr] + (32*j + 16*hh)*256
                base = addr & ~0xffff
                r = A_WO[hr] + (j*2+ep)*4 + 2*hh
                L.append(P(f"ds_read_b64_tr_b16 a[{r}:{r+1}], v{regs_[base]+ep} offset:{addr - base}"))
    return L

V_CW = 253; V_CLW = 254; V_LT = 255
CREG = [0, 32768, 65536]
def combine_writes(n):
    L = []
    for j in range(4):
        a = V_O + ((2*j)*5+n)*4; b = V_O + ((2*j+1)*5+n)*4
        q = n*4 + j
        reg, off = (V_CW, CREG[q >> 3] + (q & 7)*1024) if q < 16 else (44, (q & 7)*1024)
        L += [P(f"v_cvt_pk_bf16_f32 v{a}, v{a}, v{a+1}"), P(f"v_cvt_pk_bf16_f32 v{a+1}, v{a+2}, v{a+3}"),
              P(f"v_cvt_pk_bf16_f32 v{a+2}, v{b}, v{b+1}"), P(f"v_cvt_pk_bf16_f32 v{a+3}, v{b+2}, v{b+3}"),
              P(f"ds_write_b128 v{reg}, v[{a}:{a+3}] offset:{off}")]
    L += [P(f"v_accvgpr_read_b32 v{V_LT}, a{A_L+4*n}"), P(f"ds_write_b32 v{V_CLW}, v{V_LT} offset:{n*256}")]
    return L

class F:
    def __init__(s, ins, lo, hi): s.ins = ins; s.lo = lo; s.hi = hi

def place(mf, chains, cap=8, fixed=None):
    stream = []
    ptr = [0]*len(chains)
    for m, ins in enumerate(mf):
        if fixed and m in fixed: stream += fixed[m]
        stream.append(ins)
        used = 0
        while True:
            cand = []
            for c, ch in enumerate(chains):
                if ptr[c] < len(ch) and ch[ptr[c]].lo <= m:
                    cand.append((ch[ptr[c]].hi, c))
            if not cand: break
            cand.sort()
            placed = False
            for hi, c in cand:
                f = chains[c][ptr[c]]
                if used + f.ins.cost <= cap or hi <= m:
                    stream.append(f.ins); used += f.ins.cost; ptr[c] += 1; placed = True
                    break
            if not placed: break
    for c, ch in enumerate(chains):
        assert ptr[c] == len(ch), (c, ptr[c], len(ch))
    return stream

def spaced(instrs, start, sp, win):
    out = []; k = 0
    for ins in instrs:
        lo = start + k*sp
        out.append(F(ins, lo, lo + win))
        if ins.kind == "dma": k += 1
    return out

def build(opt):
    nt = NT; nG = 5*nt
    mf = []; qk_idx = {}; pv_idx = {}
    for X in range(nG + 2):
        if X < nG:
            qk_idx[X] = len(mf); mf += qk_mfmas(X)
        if 0 <= X-2 < nG:
            pv_idx[X-2] = len(mf); mf += pv_mfmas(X-2)
    allf = []
    for G in range(nG):
        fl = softmax_fillers(G)
        lo0 = qk_idx[G] + 3 + 5; lo1 = qk_idx[G] + 7 + 5
        hi = pv_idx[G] - 2
        for k, ins in enumerate(fl):
            allf.append(F(ins, min(lo1 if k >= 5 else lo0, hi), hi))
    kr = []; vr_ = []; dm = []
    sp = opt.get("space", 4); win = opt.get("dwin", 4)
    for idx, ins in enumerate(v_reads(0)):
        if idx == 0: ins.need_vm = [("V", 0)]
        vr_.append(F(ins, 2 + idx//2, pv_idx[0] - 4))
    for t in range(1, nt):
        G = 5*t - 1
        for idx, ins in enumerate(k_reads(t)):
            if idx == 0: ins.need_vm = [("K", t)]
            kr.append(F(ins, qk_idx[G] + idx, qk_idx[G+1] + idx - 4))
        for idx, ins in enumerate(v_reads(t)):
            dt = idx // 2
            if idx == 0: ins.need_vm = [("V", t)]
            vr_.append(F(ins, pv_idx[G] + dt, pv_idx[G+1] + dt - 4))
    if opt.get("late1"):
        dm += spaced(k_dma(1), 0, opt.get("late1sp", 2), win)
        dm += spaced(v_dma(1), 8*opt.get("late1sp", 2) + 2, opt.get("late1sp", 2), win)
    for t in range(nt):
        lok = qk_idx[5*t] + 8
        if opt.get("late1") and t == 0: lok = 16*opt.get("late1sp", 2) + 6
        lov = pv_idx[5*t] + 9
        if t + 2 < nt:
            dm += spaced(k_dma(t+2), lok, sp, win)
            dm += spaced(v_dma(t+2), lov, sp, win)
            if t == opt.get("prelead_t", 11) and opt.get("prelead", True):
                pl = [salu(f"s_add_u32 m0, s{S_PLM0}, 0")]
                for i in range(4): pl.append(dma(f"v{V_WD+i}", f"s[{S_WOSRD}:{S_WOSRD+3}]", f"s{S_PLOFF}", i*1024, ("PL", 0)))
                dm += spaced(pl, lov + 8*sp, 2, win)
        elif opt.get("wo_in_loop_end"):
            if t == 15: dm += spaced(wo_dma(0), lok, sp, win)
    dm.sort(key=lambda f: 0)
    tf = []
    if opt.get("early", True):
        last = len(mf) - 1
        for n in range(4):
            lo = pv_idx[75+n] + 12
            items = combine_writes(n)
            for k, ins in enumerate(items):
                l2 = min(lo + k//2, last)
                tf.append(F(ins, l2, min(l2 + 10, last)))
    return place(mf, [allf, kr, vr_, dm, tf], opt.get("cap", 8))
```

```python
import sys, struct, math
from asmlib import *
from sched import *
import maina2 as mb
from maina2 import *

KN = "standalone__gqa_block_cached__near_ridge_kernel"
CSCALE = struct.unpack("<I", struct.pack("<f", math.log2(math.e)/math.sqrt(128.0)))[0]

WS_QX   = 0x0000000
WS_PART = 0x0600000
WS_LP   = 0x1B00000
WS_OF   = 0x1C00000
WS_OUTP = 0x2200000
WS_FLAG = 0x2800000
WS_MX   = 0x2900000
WS_STAMP= 0x1400000 + 0x1800000
WS_SIZE = 0x4000000
FQ, FQB, F1, F1B, F2, FM, F3 = 0, 0x4000, 0x8000, 0xC000, 0x10000, 0x14000, 0x18000
S_W, S_B, S_C, S_G = 20, 21, 22, 23
S_MODE = 27
S_X, S_WQ, S_WS, S_OUT, S_DBG = 32, 36, 40, 56, 60
S_NONCE = 64
S_GRP = 65
S_ROT = 67
QP_W = [110592, 0, 57344, 110592]
QP_X = [143360, 32768, 90112, 143360]
QBUF = 131072
V_XD = 60; V_WQD = 65; V_WB = 69; V_XB = 56
V_QD = 84
QA = [164, 200]; QB = [172, 208]
V_QWA = (250, 251); V_QXA = (48, 52)
V_NONCE = 253

STP = [None]
def nst(name):
    if STP[0] and name in STP[0]:
        i = STP[0].index(name); return [f"s_memtime s[{70+2*i}:{71+2*i}]"]
    return []
MS = [None]
def stamp(i, on):
    if STP[0] is not None: return nst({0:'start',1:'setup',2:'qproj',3:'qx',4:'main0',5:'main1',6:'cw',7:'cr',8:'own'}[i])
    if MS[0]:
        if i == MS[0][0]: return ['s_memtime s[70:71]']
        if i == MS[0][1]: return ['s_memtime s[86:87]']
        return []
    return [f"s_memtime s[{70+2*i}:{71+2*i}]"] if on else []
def stampw(i, on):
    if STP[0] is not None:
        r = stamp(i, on)
        return r + ['s_waitcnt lgkmcnt(0)'] if r else []
    if MS[0]:
        r = stamp(i, on)
        return r + ["s_waitcnt lgkmcnt(0)"] if r else []
    return [f"s_memtime s[{70+2*i}:{71+2*i}]", "s_waitcnt lgkmcnt(0)"] if on else []

_uid = [0]
def uid():
    _uid[0] += 1; return _uid[0]

def setup0(opt):
    L = ["s_cmp_ge_u32 s2, 256", "s_cbranch_scc1 L_end",
         "s_load_dwordx8 s[4:11], s[0:1], 0", "s_load_dwordx4 s[44:47], s[0:1], 32", "s_load_dwordx4 s[48:51], s[0:1], 48"]
    if opt.get("stamps"): L += ["s_memrealtime s[68:69]"]
    L += ["v_lshrrev_b32 v1, 6, v0", "v_and_b32 v0, 63, v0", f"v_readfirstlane_b32 s{S_W}, v1",
          f"s_and_b32 s{S_G}, s2, 7", f"s_lshr_b32 s{S_C}, s2, 3", f"s_and_b32 s{S_C}, s{S_C}, 3", f"s_lshr_b32 s{S_B}, s2, 5",
          f"s_lshl_b32 s{S_GRP}, s{S_B}, 3", f"s_add_u32 s{S_GRP}, s{S_GRP}, s{S_G}",
          f"s_mov_b32 s{S_MODE}, 0", f"s_mov_b32 s{S_NONCE}, 0", "s_waitcnt lgkmcnt(0)"]
    L += [f"s_mul_i32 s28, s{S_B}, 81920", f"s_add_u32 s{S_X}, s4, s28", f"s_addc_u32 s{S_X+1}, s5, 0", f"s_and_b32 s{S_X+1}, s{S_X+1}, 0xffff",
          f"s_mov_b32 s{S_X+2}, 81920", f"s_mov_b32 s{S_X+3}, 0x20000"]
    L += srd(S_WQ, 10, 512*4096*2)
    L += [f"s_lshl_b32 s28, s{S_GRP}, 19", f"s_lshl_b32 s29, s{S_W}, 17", "s_add_u32 s28, s28, s29"]
    L += ["s_add_u32 s12, s6, s28", "s_addc_u32 s13, s7, 0", "s_and_b32 s13, s13, 0xffff", "s_mov_b32 s14, 0x20000", "s_mov_b32 s15, 0x20000"]
    L += ["s_add_u32 s16, s8, s28", "s_addc_u32 s17, s9, 0", "s_and_b32 s17, s17, 0xffff", "s_mov_b32 s18, 0x20000", "s_mov_b32 s19, 0x20000"]
    L += srd(S_WS, 50, WS_SIZE) + srd(S_WOSRD, 44, 4096*512*2) + srd(S_OUT, 46, 8*80*512*2) + srd(S_DBG, 48, 256)
    return L

def setup1():
    L = ["v_and_b32 v2, 15, v0", "v_lshrrev_b32 v3, 4, v0", f"v_lshlrev_b32 v{V_L16}, 4, v0"]
    L += ["v_xor_b32 v4, v2, v3", f"s_lshl_b32 s28, s{S_W}, 4", "v_add_u32 v6, s28, v3"]
    for i in range(4):
        L += [f"v_xor_b32 v5, {4*i}, v4", "v_lshlrev_b32 v5, 4, v5", "v_lshl_add_u32 v5, v6, 10, v5", f"v_add_u32 v{V_XD+i}, {i*3072}, v5"]
    L += [f"s_lshl_b32 s28, s{S_W}, 2", "v_xor_b32 v5, s28, v4", "v_lshlrev_b32 v5, 4, v5", "s_add_u32 s28, s28, 64", "v_add_u32 v6, s28, v3", f"v_lshl_add_u32 v{V_XD+4}, v6, 10, v5"]
    L += [f"s_lshl_b32 s28, s{S_W}, 5", "v_add_u32 v4, s28, v3", "v_lshlrev_b32 v5, 2, v3", "v_xor_b32 v5, v5, v2", "v_lshlrev_b32 v5, 4, v5", "v_lshl_add_u32 v5, v4, 13, v5"]
    for i in range(4): L.append(f"v_add_u32 v{V_WQD+i}, {i*31744}, v5")
    L += [f"s_add_u32 s28, s{S_C}, s{S_B}", f"s_and_b32 s{S_ROT}, s28, 3"]
    L += [f"s_lshl_b32 s28, s{S_G}, 2", f"s_add_u32 s28, s28, s{S_C}", "s_lshl_b32 s31, s28, 8"]
    return L

def qp_dma(c):
    tag = ("C", c)
    L = [f"s_add_u32 s28, s{S_ROT}, {c}", "s_and_b32 s28, s28, 3", "s_lshl_b32 s29, s28, 8",
         f"s_lshl_b32 s30, s{S_W}, 12", f"s_add_u32 m0, s30, {QP_X[c]}"]
    for i in range(4): L.append(dma(f"v{V_XD+i}", f"s[{S_X}:{S_X+3}]", "s29", i*1024, tag))
    L += [f"s_lshl_b32 s30, s{S_W}, 10", f"s_add_u32 m0, s30, {QP_X[c] + 16384}"]
    L.append(dma(f"v{V_XD+4}", f"s[{S_X}:{S_X+3}]", "s29", 0, tag))
    L += ["s_lshl_b32 s29, s28, 20", "s_add_u32 s29, s29, s31", f"s_lshl_b32 s30, s{S_W}, 13", f"s_add_u32 m0, s30, {QP_W[c]}"]
    for i in range(4): L.append(dma(f"v{V_WQD+i}", f"s[{S_WQ}:{S_WQ+3}]", "s29", i*1024, tag))
    L += ["s_add_u32 s29, s29, 131072", f"s_add_u32 m0, s30, {QP_W[c] + 4096}"]
    for i in range(4): L.append(dma(f"v{V_WQD+i}", f"s[{S_WQ}:{S_WQ+3}]", "s29", i*1024, tag))
    return L

def qp_lanebases():
    L = ["v_lshrrev_b32 v4, 2, v2", f"v_xor_b32 v5, s{S_W}, v4", "v_lshlrev_b32 v5, 6, v5", "v_lshl_add_u32 v6, v3, 3, v4", "v_lshl_add_u32 v5, v6, 8, v5",
         "v_and_b32 v6, 3, v0", f"v_lshl_add_u32 v{V_WB}, v6, 4, v5"]
    for ks in range(4):
        L += [f"v_add_u32 v5, {4*ks}, v3", "v_xor_b32 v5, v5, v2", "v_lshlrev_b32 v5, 4, v5", f"v_lshl_add_u32 v{V_XB+ks}, v2, 8, v5"]
    return L

def ring_addrs():
    L = [f"s_lshl_b32 s{S_M0K}, s{S_W}, 13"]
    L += ["v_xor_b32 v6, v2, v3"]
    for i in range(4):
        L += [f"v_xor_b32 v5, {4*i}, v6", "v_lshlrev_b32 v5, 4, v5", f"v_lshl_add_u32 v{V_KD+i}, v3, 8, v5"]
    for i in range(2):
        L += [f"v_add_u32 v5, {4*i}, v3", "v_lshlrev_b32 v5, 1, v5", "v_xor_b32 v5, v5, v2", "v_lshlrev_b32 v5, 4, v5", f"v_lshl_add_u32 v{V_VD+i}, v3, 8, v5"]
    for j in range(4):
        L += [f"v_add_u32 v5, {4*j}, v3", "v_xor_b32 v5, v5, v2", "v_lshlrev_b32 v5, 4, v5", "v_lshl_add_u32 v5, v2, 8, v5", f"v_add_u32 v{V_KA+j}, s{S_M0K}, v5"]
    L += ["v_lshrrev_b32 v4, 2, v2", "v_lshl_add_u32 v4, v3, 2, v4", "v_and_b32 v5, 7, v4", "v_lshlrev_b32 v5, 1, v5",
          "v_and_b32 v6, 3, v0", "v_lshrrev_b32 v6, 1, v6", "v_and_b32 v7, 1, v0", "v_lshlrev_b32 v7, 3, v7",
          "v_lshl_add_u32 v7, v4, 8, v7"]
    L += [f"s_lshl_b32 s28, s{S_W}, 2"]
    for ep in range(2):
        L += [f"s_add_u32 s29, s28, {2*ep}", "v_add_u32 v1, s29, v6", "v_xor_b32 v1, v1, v5", f"v_lshl_add_u32 v{V_WAX+ep}, v1, 4, v7"]
    L += [f"s_add_u32 s28, s{S_M0K}, 65536", "v_add_u32 v7, s28, v7"]
    for dt in range(8):
        L += [f"v_add_u32 v1, {2*dt}, v6", "v_xor_b32 v1, v1, v5", f"v_lshl_add_u32 v{V_VA+dt}, v1, 4, v7"]
    for i in range(4):
        L += [f"v_add_u32 v5, {4*(i&1)}, v3", "v_lshlrev_b32 v5, 1, v5", "v_xor_b32 v5, v5, v2", "v_lshlrev_b32 v5, 4, v5",
              f"v_add_u32 v6, {4*i}, v3", "v_lshl_add_u32 v5, v6, 10, v5", f"v_subrev_u32 v{V_WD+i}, {i*1024}, v5"]
    if mb.OPT.get("rot"):
        def order(j, ph):
            o = []; bounds = [0] + [x for x in range(ph, 16, 4) if x > 0] + [16]
            for a_, b_ in zip(bounds[:-1], bounds[1:]):
                n_ = b_ - a_
                o += [a_ + ((i + j) % n_) for i in range(n_)]
            return o
        L += [f"s_and_b32 s28, s{S_B}, 3", "s_lshl_b32 s28, s28, 2", f"s_add_u32 s28, s28, s{S_C}", f"s_mov_b32 s{S_TAB}, 0", f"s_mov_b32 s{S_TAB+1}, 0"]
        for ph in range(4):
            for j in range(4):
                o = order(j, ph); assert sorted(o) == list(range(16))
                lo = sum(v << (4*i) for i, v in enumerate(o[:8])); hi = sum(v << (4*i) for i, v in enumerate(o[8:]))
                L += [f"s_cmp_eq_u32 s28, {ph*4+j}", f"s_cselect_b32 s{S_TAB}, {hex(lo)}, s{S_TAB}", f"s_cselect_b32 s{S_TAB+1}, {hex(hi)}, s{S_TAB+1}"]
    L += [f"s_lshl_b32 s28, s{S_B}, 16", f"s_lshl_b32 s29, s{S_W}, 14", "s_add_u32 s28, s28, s29", f"s_lshl_b32 s29, s{S_G}, 19", "s_add_u32 s28, s28, s29",
          f"s_lshl_b32 s29, s{S_C}, 8", f"s_add_u32 s{S_PLOFF}, s28, s29", f"s_lshl_b32 s28, s{S_W}, 13", f"s_add_u32 s{S_PLM0}, s28, 131072"]
    for hr in range(4):
        L += [f"s_add_u32 s28, s{S_C}, {hr}", "s_and_b32 s28, s28, 3", "s_lshl_b32 s28, s28, 17", f"s_lshl_b32 s29, s{S_G}, 19", "s_add_u32 s28, s28, s29",
              f"s_lshl_b32 s29, s{S_C}, 8", "s_add_u32 s28, s28, s29", f"s_lshl_b32 s29, s{S_W}, 15", f"s_add_u32 s{S_WOB[hr]}, s28, s29"]
    return L

def qp_reads(c, ks):
    st = ks % 2; xa = V_QXA[c % 2] + ks; wa = V_QWA[c % 2]
    r = [P(f"ds_read_b128 {R('v', QB[st]+4*n, 4)}, v{xa} offset:{n*4096}") for n in range(5)]
    for e in range(2):
        for hh in range(2):
            r.append(P(f"ds_read_b64_tr_b16 {R('v', QA[st]+e*4+2*hh, 2)}, v{wa} offset:{ks*8192+hh*1024+e*8}"))
    return [r[5], r[6], r[0], r[7], r[8], r[1], r[2], r[3], r[4]]
def qp_addr(c):
    return PL([f"v_add_u32 v{V_QWA[c%2]}, {QP_W[c]}, v{V_WB}"] + [f"v_add_u32 v{V_QXA[c%2]+ks}, {QP_X[c]}, v{V_XB+ks}" for ks in range(4)])
def qp_mfmas(c, ks):
    r = []
    st = ks % 2
    for n in range(5):
        for e in range(2):
            d = R('v', V_QD+(e*5+n)*4, 4)
            cc = "0" if (c == 0 and ks == 0) else d
            r.append(P(f"v_mfma_f32_16x16x32_bf16 {d}, {R('v', QA[st]+e*4, 4)}, {R('v', QB[st]+4*n, 4)}, {cc}"))
    return r

def qproj(opt):
    mf = []; idx = {}
    for c in range(4):
        for ks in range(4):
            idx[(c, ks)] = len(mf); mf += qp_mfmas(c, ks)
    fixed = {}; rd = []; dm = []
    pre = [P("s_barrier", need_vm=[("C", 0)])] + qp_addr(0) + qp_reads(0, 0)
    order = [(c, ks) for c in range(4) for ks in range(4)]
    for gi in range(1, 16):
        c, ks = order[gi]; pc, pks = order[gi-1]
        start = idx[(pc, pks)]
        if ks == 0:
            fixed[start] = [P("s_waitcnt lgkmcnt(0)"), P("s_barrier", need_vm=[("C", c)])] + qp_addr(c)
        for k, ins in enumerate(qp_reads(c, ks)): rd.append(F(ins, start + k, idx[(c, ks)] - 1))
    def sched(items, start, end):
        n = sum(1 for i in items if i.kind in ("dma", "vmem"))
        step = max(1, (end - start) // max(n, 1))
        out = []; k = 0
        for ins in items:
            lo = min(start + k*step, end - 1)
            out.append(F(ins, lo, lo + step))
            if ins.kind in ("dma", "vmem"): k += 1
        return out
    dm += sched(PL(qp_dma(2)), idx[(0, 0)], idx[(0, 3)])
    dm += sched(PL(qp_dma(3)), idx[(0, 3)] + 1, idx[(1, 3)])
    nl = PL([f"s_lshl_b32 s28, s{S_B}, 5", "v_mov_b32 v254, s28", f"buffer_load_dword v{V_NONCE}, v254, s[{S_DBG}:{S_DBG+3}], 0 offen sc1"])
    dm += sched(nl + k_dma(0), idx[(1, 3)] + 1, idx[(2, 3)])
    dm += sched(v_dma(0), idx[(2, 3)] + 1, idx[(3, 3)] + 8)
    return pre + place(mf, [rd, dm], 8, fixed)

def nonce_publish():
    return [f"s_or_b32 s28, s{S_G}, s{S_C}", f"s_or_b32 s28, s28, s{S_W}", "s_cmp_eq_u32 s28, 0", "s_cbranch_scc0 L_not_leader",
            "s_memrealtime s[28:29]", "s_waitcnt lgkmcnt(0)", "s_or_b32 s28, s28, 1", "v_mov_b32 v5, s28", f"s_lshl_b32 s29, s{S_B}, 5", "v_mov_b32 v4, s29",
            f"buffer_store_dword v5, v4, s[{S_DBG}:{S_DBG+3}], 0 offen sc1", "L_not_leader:"]
def nonce_code():
    return [f"s_cmp_lg_u32 s{S_NONCE}, 0", "s_cbranch_scc1 L_have_nonce", f"v_readfirstlane_b32 s{S_NONCE}, v{V_NONCE}",
            f"s_cmp_lg_u32 s{S_NONCE}, 0", "s_cbranch_scc1 L_have_nonce",
            f"s_lshl_b32 s28, s{S_B}, 5", "v_mov_b32 v4, s28", "s_mov_b32 s29, 0", "L_nonce_poll:",
            f"buffer_load_dword v5, v4, s[{S_DBG}:{S_DBG+3}], 0 offen sc1", "s_waitcnt vmcnt(0)", f"v_readfirstlane_b32 s{S_NONCE}, v5",
            f"s_cmp_lg_u32 s{S_NONCE}, 0", "s_cbranch_scc1 L_have_nonce", "s_add_u32 s29, s29, 1", "s_cmp_lt_u32 s29, 0x40000", "s_cbranch_scc0 L_have_nonce",
            "s_sleep 2", "s_branch L_nonce_poll", "L_have_nonce:"]

def wave_flag(addr_s, payload):
    return [f"v_mov_b32 v4, s{addr_s}", f"v_mov_b32 v6, s{S_NONCE}", f"v_mov_b32 v7, {payload}", "s_mov_b64 exec, 1",
            f"buffer_store_dwordx2 v[6:7], v4, s[{S_WS}:{S_WS+3}], 0 offen sc1", "s_mov_b64 exec, -1"]
def poll(base_s, mask, shift=3, lane_off=0):
    u = uid()
    return [f"v_and_b32 v4, {mask}, v0", f"v_lshlrev_b32 v4, {shift}, v4", f"v_add_u32 v4, s{base_s}, v4", "s_mov_b32 s29, 0", f"L_pf{u}:",
            f"buffer_load_dwordx2 v[6:7], v4, s[{S_WS}:{S_WS+3}], 0 offen sc1", "s_waitcnt vmcnt(0)",
            f"v_cmp_ne_u32 vcc, s{S_NONCE}, v6", f"s_cbranch_vccz L_pf{u}_ok", "s_add_u32 s29, s29, 1", "s_cmp_lt_u32 s29, 0x40000",
            f"s_cbranch_scc1 L_pf{u}", f"L_pf{u}_ok:"]
def flagline(area_a, area_b=None):
    L = [f"s_lshl_b32 s30, s{S_GRP}, 7", f"s_add_u32 s30, s30, {WS_FLAG}"]
    if area_b is None: L += [f"s_add_u32 s30, s30, {area_a}"] if area_a else []
    else: L += [f"s_mul_i32 s29, s{S_MODE}, {area_b - area_a}", "s_add_u32 s30, s30, s29"] + ([f"s_add_u32 s30, s30, {area_a}"] if area_a else [])
    return L

def q_exchange(opt):
    st = opt.get("stamps")
    L = ["s_waitcnt lgkmcnt(0)", "s_barrier"]
    if not opt.get("late1"): L += k_dma(1)
    L += [f"s_mov_b32 s29, {hex(CSCALE)}", f"s_lshl_b32 s28, s{S_W}, 10", f"v_add_u32 v4, s28, v{V_L16}", f"v_add_u32 v4, {QBUF}, v4"]
    for n in range(5):
        d0 = V_QD + n*4; d1 = V_QD + (5+n)*4
        for r in range(4): L += [f"v_mul_f32 v{d0+r}, s29, v{d0+r}", f"v_mul_f32 v{d1+r}, s29, v{d1+r}"]
        t = 164 + n*4
        L += [f"v_cvt_pk_bf16_f32 v{t}, v{d0}, v{d0+1}", f"v_cvt_pk_bf16_f32 v{t+1}, v{d0+2}, v{d0+3}",
              f"v_cvt_pk_bf16_f32 v{t+2}, v{d1}, v{d1+1}", f"v_cvt_pk_bf16_f32 v{t+3}, v{d1+2}, v{d1+3}",
              f"ds_write_b128 v4, v[{t}:{t+3}] offset:{n*4096}"]
    if not opt.get("late1"): L += v_dma(1)
    L += ["s_waitcnt lgkmcnt(0)", "s_barrier"]
    L += stamp(3, st)
    L += [f"v_add_u32 v4, {QBUF}, v{V_L16}"]
    for n in range(5):
        for j in range(4): L.append(f"ds_read_b128 {Qf(n, j)}, v4 offset:{(n*4+j)*1024}")
    return L

def selector(base):
    return ["v_lshrrev_b32 v4, 2, v2", "v_cmp_eq_u32 vcc, v4, v3", "v_and_b32 v5, 1, v0", "v_lshlrev_b32 v5, 4, v5", "v_mov_b32 v6, 0x3f80", "v_lshlrev_b32 v6, v5, v6",
            "v_cndmask_b32 v6, 0, v6, vcc", "v_and_b32 v5, 2, v0", "v_cmp_eq_u32 vcc, 0, v5",
            f"v_cndmask_b32 v{base}, 0, v6, vcc", f"v_cndmask_b32 v{base+1}, v6, 0, vcc",
            f"v_mov_b32 v{base+2}, 0", f"v_mov_b32 v{base+3}, 0", f"v_mov_b32 v{base+4}, 0", f"v_mov_b32 v{base+5}, 0",
            f"v_mov_b32 v{base+6}, v{base}", f"v_mov_b32 v{base+7}, v{base+1}"]

CBUF = 0
CL = 81920
OLOC = [65536, 86016, 106496, 126976]
def pre_attn(late1=False):
    L = ["s_waitcnt vmcnt(16)" if late1 else "s_waitcnt vmcnt(32)"] + nonce_code()
    L += [f"v_add_u32 v{V_CW}, s{S_M0K}, v{V_L16}", "v_lshlrev_b32 v4, 2, v0", f"s_add_u32 s28, s{S_M0K}, {65536+4096}", f"v_add_u32 v{V_CLW}, s28, v4"]
    return L

def stage1(opt):
    st = opt.get("stamps")
    L = [f"v_add_u32 v44, 0x10000, v{V_CW}"]
    L += combine_writes(4)
    if not opt.get("early", True):
        for n in range(4): L += combine_writes(n)
    L += wo_dma(0)
    L += selector(48)
    L += [f"s_lshl_b32 s28, s{S_W}, 10", f"v_add_u32 v5, s28, v{V_L16}", f"v_add_u32 v45, 0x10000, v5", "v_lshlrev_b32 v6, 2, v0", f"v_add_u32 v6, {65536+4096}, v6"]
    L += ["s_waitcnt lgkmcnt(0)", "s_barrier"]
    L += stamp(6, st)
    PB = V_O
    DB = 164
    rd = []
    for n in range(5):
        for s_ in range(4):
            q0 = n*4
            addr = CREG[n >> 1] + s_*8192 + (n & 1)*4096
            rd.append(P(f"ds_read_b128 v[{PB+(n*4+s_)*4}:{PB+(n*4+s_)*4+3}], v{5 if addr < 65536 else 45} offset:{addr & 0xffff}"))
    lr = [P(f"ds_read_b32 v{56+4*n+s_}, v6 offset:{s_*8192+n*256}") for n in range(5) for s_ in range(4)]
    mf = []
    for n in range(5):
        for s_ in range(4):
            q = f"v[{PB+(n*4+s_)*4}:{PB+(n*4+s_)*4+3}]"
            mf += [P(f"v_mfma_f32_16x16x32_bf16 v[{DB+n*8}:{DB+n*8+3}], v[48:51], {q}, {'0' if s_ == 0 else f'v[{DB+n*8}:{DB+n*8+3}]'}"),
                   P(f"v_mfma_f32_16x16x32_bf16 v[{DB+n*8+4}:{DB+n*8+7}], v[52:55], {q}, {'0' if s_ == 0 else f'v[{DB+n*8+4}:{DB+n*8+7}]'}")]
    va = []
    for n in range(5):
        l = 56 + 4*n
        va += PL([f"v_add_f32 v{l}, v{l}, v{l+1}", f"v_add_f32 v{l+2}, v{l+2}, v{l+3}", f"v_add_f32 v{l}, v{l}, v{l+2}"])
    L += rd[:8]
    ch_rd = [F(rd[i], max(0, 2*(i-8)), 2*i - 6) for i in range(8, 20)]
    ch_lr = [F(x, 4 + i//2, 16) for i, x in enumerate(lr)]
    ch_va = [F(x, 18 + i, 38) for i, x in enumerate(va)]
    w1 = wo_dma(1)
    ch_w = []; kk = 0
    for ins in w1:
        ch_w.append(F(ins, 2 + kk*4, 39))
        if ins.kind == "dma": kk += 1
    L += place(mf, [ch_rd, ch_lr, ch_va, ch_w], 8)
    L += ["s_mov_b32 s29, 0x21800000", "s_mov_b32 s30, 0x5d800000", "s_mov_b64 s[90:91], 0"]
    for n in range(5):
        L += [f"v_cmp_nge_f32 vcc, v{56+4*n}, s29", "s_or_b64 s[90:91], s[90:91], vcc", f"v_cmp_nle_f32 vcc, v{56+4*n}, s30", "s_or_b64 s[90:91], s[90:91], vcc"]
    L += ["s_cmp_lg_u64 s[90:91], 0", "s_cselect_b32 s31, 1, 0", f"s_cmp_eq_u32 s{S_MODE}, 0", "s_cselect_b32 s31, s31, 0", "s_cmp_lg_u32 s31, 0", "s_cbranch_scc1 L_fallback"]
    for n in range(5): L.append(f"v_rcp_f32 v{56+4*n}, v{56+4*n}")
    DB = 164
    L += [f"s_lshl_b32 s28, s{S_W}, 10", f"v_add_u32 v44, s28, v{V_L16}", f"v_add_u32 v44, {OLOC[0]}, v44", f"s_lshl_b32 s29, s{S_GRP}, 2", f"s_add_u32 s29, s29, s{S_C}", "s_mul_i32 s29, s29, 20480",
          "s_add_u32 s93, s29, s28", f"s_add_u32 s93, s93, {WS_OF}"]
    L += ["s_barrier"]
    L += stamp(7, st)
    st_ = []; dw = []
    for n in range(5):
        l = 56 + 4*n; d = DB + n*8
        for r in range(8): L.append(f"v_mul_f32 v{d+r}, v{d+r}, v{l}")
        L += [f"v_cvt_pk_bf16_f32 v{d}, v{d}, v{d+1}", f"v_cvt_pk_bf16_f32 v{d+1}, v{d+2}, v{d+3}",
              f"v_cvt_pk_bf16_f32 v{d+2}, v{d+4}, v{d+5}", f"v_cvt_pk_bf16_f32 v{d+3}, v{d+6}, v{d+7}",
              f"s_add_u32 s30, s93, {n*4096}", f"buffer_store_dwordx4 v[{d}:{d+3}], v{V_L16}, s[{S_WS}:{S_WS+3}], s30 offen sc1"]
        dw.append(f"ds_write_b128 v44, v[{d}:{d+3}] offset:{n*4096}")
    L += dw
    L += wo_dma(2) + wo_dma(3)
    return L

def s2_chunk(hr, nbase):
    reads = []; mfs = []
    for j in range(4):
        for n in range(5):
            addr = OLOC[hr] + (n*4+j)*1024
            breg = 28 + ((nbase + j*5 + n) % 12)*4
            reads.append(P(f"ds_read_b128 v[{breg}:{breg+3}], v{248 + (addr >> 16)} offset:{addr & 0xffff}"))
            for ep in range(2):
                d = R('v', V_O + (ep*5+n)*4, 4)
                c = "0" if (hr == 0 and j == 0) else d
                a = A_WO[hr] + (j*2+ep)*4
                mfs.append(P(f"v_mfma_f32_16x16x32_bf16 {d}, a[{a}:{a+3}], v[{breg}:{breg+3}], {c}"))
    return reads, mfs
def s2_dma(hr):
    L = PL([f"s_add_u32 s29, s{S_C}, {hr}", "s_and_b32 s29, s29, 3", "s_mul_i32 s29, s29, 20480", "s_add_u32 s29, s29, s93", f"s_add_u32 m0, s31, {OLOC[hr]}"])
    for i in range(4): L.append(dma(f"v{V_L16}", f"s[{S_WS}:{S_WS+3}]", "s29", i*1024, ("P", hr), "sc1"))
    L += PL(["s_add_u32 s29, s29, 4096", f"s_add_u32 m0, s31, {OLOC[hr]+4096}"])
    L.append(dma(f"v{V_L16}", f"s[{S_WS}:{S_WS+3}]", "s29", 0, ("P", hr), "sc1"))
    return L

def stage2(opt):
    st = opt.get("stamps")
    L = flagline(F2)
    L += [f"s_lshl_b32 s28, s{S_C}, 2", f"s_add_u32 s28, s28, s{S_W}", "s_lshl_b32 s28, s28, 3", "s_add_u32 s31, s30, s28"]
    L += [f"v_add_u32 v76, 0x10000, v{V_WAX}", f"v_add_u32 v77, 0x10000, v{V_WAX+1}", f"v_add_u32 v78, 0x20000, v{V_WAX}", f"v_add_u32 v79, 0x20000, v{V_WAX+1}"]
    L += ["s_waitcnt vmcnt(16)"] + wave_flag(31, 0)
    L += ["s_waitcnt lgkmcnt(0)", "s_barrier"]
    L += [f"v_mov_b32 v248, v{V_L16}", f"v_add_u32 v249, 0x10000, v{V_L16}", f"v_add_u32 v250, 0x20000, v{V_L16}"]
    L = PL(L)
    regs_ = {0: V_WAX, 0x10000: 76, 0x20000: 78}
    L += wo_frag_reads(0, regs_) + wo_frag_reads(1, regs_)
    r0, m0 = s2_chunk(0, 0)
    AH = 6
    L += r0[:AH] + place(m0, [[F(r0[i], 2*(i-AH), 2*i - 4) for i in range(AH, 20)]], 8)
    L += PL(stamp(8, st))
    L += PL(poll(30, 15))
    L += PL(nst("poll2"))
    L += PL(["s_waitcnt lgkmcnt(0)", "s_barrier"])
    L += PL([f"s_mul_i32 s31, s{S_W}, 5120", f"s_mul_i32 s93, s{S_GRP}, 81920", "s_add_u32 s93, s93, s31", f"s_add_u32 s93, s93, {WS_OF}"])
    L += s2_dma(1) + s2_dma(2)
    w23 = wo_frag_reads(2, regs_) + wo_frag_reads(3, regs_)
    L += w23[:16]
    mf = []; idx = {}; rdch = []; dm = []; fixed = {}
    nb = 20
    for hr in (1, 2, 3):
        idx[hr] = len(mf)
        r, m = s2_chunk(hr, nb); nb += 20
        fixed[idx[hr]] = [P("s_barrier", need_vm=[("P", hr)])] + r[:AH]
        for i in range(AH, 20): rdch.append(F(r[i], idx[hr] + 2*(i-AH), idx[hr] + 2*i - 4))
        mf += m
    kk = 0
    for ins in s2_dma(3):
        lo = idx[1] + 2 + kk*6
        dm.append(F(ins, lo, lo + 6))
        if ins.kind == "dma": kk += 1
    wch = [F(x, idx[1] + 4 + 2*i, idx[2] + 20) for i, x in enumerate(w23[16:])]
    L += place(mf, [rdch, dm, wch], 8, fixed)
    L += PL(nst("gemm2"))
    T = [f"s_lshl_b32 s28, s{S_B}, 2", f"s_add_u32 s28, s28, s{S_C}", "s_mul_i32 s28, s28, 20", f"s_mul_i32 s29, s{S_W}, 5", "s_add_u32 s28, s28, s29",
         "s_lshl_b32 s28, s28, 3", f"s_add_u32 s28, s28, s{S_G}", "s_lshl_b32 s28, s28, 10", f"s_add_u32 s28, s28, {WS_OUTP}"]
    for n in range(5):
        a = V_O + n*4; b = V_O + (5+n)*4
        t = 28 + n*4
        T += [f"v_cvt_pk_bf16_f32 v{t}, v{a}, v{a+1}", f"v_cvt_pk_bf16_f32 v{t+1}, v{a+2}, v{a+3}",
              f"v_cvt_pk_bf16_f32 v{t+2}, v{b}, v{b+1}", f"v_cvt_pk_bf16_f32 v{t+3}, v{b+2}, v{b+3}",
              f"s_add_u32 s29, s28, {n*8192}", f"buffer_store_dwordx4 v[{t}:{t+3}], v{V_L16}, s[{S_WS}:{S_WS+3}], s29 offen sc1"]
    return L + PL(T)

def stage3(opt):
    L = [f"s_lshl_b32 s28, s{S_B}, 2", f"s_add_u32 s28, s28, s{S_C}", "s_mov_b32 s67, s28", "s_lshl_b32 s28, s28, 2", f"s_add_u32 s29, s28, s{S_W}", "s_lshl_b32 s29, s29, 6",
         f"s_add_u32 s29, s29, {WS_FLAG+F3}", f"s_lshl_b32 s30, s{S_G}, 3", "s_add_u32 s31, s29, s30"]
    L += selector(48)
    L += ["s_waitcnt vmcnt(0)"] + wave_flag(31, 0) + nst("flag3")
    L += [f"s_lshl_b32 s28, s{S_G}, 2", f"s_add_u32 s28, s28, s{S_W}", "s_cmp_lt_u32 s28, 20", "s_cbranch_scc0 L_done", "s_mov_b32 s65, s28",
          "s_mul_i32 s28, s65, 52", "s_lshr_b32 s92, s28, 8",
          "s_lshl_b32 s28, s67, 2", "s_add_u32 s28, s28, s92", "s_lshl_b32 s28, s28, 6", f"s_add_u32 s31, s28, {WS_FLAG+F3}"]
    L += poll(31, 7) + nst("poll3")
    L += ["s_mul_i32 s29, s67, 20", "s_add_u32 s29, s29, s65", "s_lshl_b32 s29, s29, 13", f"s_add_u32 s29, s29, {WS_OUTP}", "s_add_u32 s30, s29, 4096"]
    for gp in range(8):
        L.append(f"buffer_load_dwordx4 v[{84+4*gp}:{87+4*gp}], v{V_L16}, s[{S_WS}:{S_WS+3}], s{29 if gp < 4 else 30} offen offset:{(gp&3)*1024} sc1")
    for gp in range(8):
        L += [f"v_mfma_f32_16x16x32_bf16 v[60:63], v[48:51], v[{84+4*gp}:{87+4*gp}], {'0' if gp == 0 else 'v[60:63]'}",
              f"v_mfma_f32_16x16x32_bf16 v[64:67], v[52:55], v[{84+4*gp}:{87+4*gp}], {'0' if gp == 0 else 'v[64:67]'}"]
    L += ["s_mul_i32 s29, s92, 5", "s_sub_u32 s29, s65, s29",
          "s_lshl_b32 s29, s29, 14", "s_lshl_b32 s28, s92, 6", "s_add_u32 s28, s28, s29", f"s_lshl_b32 s29, s{S_C}, 8", "s_add_u32 s28, s28, s29",
          f"s_mul_i32 s29, s{S_B}, 81920", "s_add_u32 s28, s28, s29", "v_lshlrev_b32 v4, 10, v2", "v_lshl_add_u32 v4, v3, 3, v4"]
    L += ["v_cvt_pk_bf16_f32 v68, v60, v61", "v_cvt_pk_bf16_f32 v69, v62, v63", "v_cvt_pk_bf16_f32 v70, v64, v65", "v_cvt_pk_bf16_f32 v71, v66, v67",
          f"buffer_store_dwordx2 v[68:69], v4, s[{S_OUT}:{S_OUT+3}], s28 offen", f"buffer_store_dwordx2 v[70:71], v4, s[{S_OUT}:{S_OUT+3}], s28 offen offset:32"]
    L += ["L_done:"]
    return L

def maxpass(late1=False):
    L = ["s_waitcnt vmcnt(0) lgkmcnt(0)", "s_barrier"]
    MXR = [76, 77, 78, 79, 80]
    for n in range(5): L.append(f"v_mov_b32 v{MXR[n]}, 0xff800000")
    L += ["s_mov_b32 s90, 0", "L_maxloop:", f"s_lshl_b32 s{S_KOFF}, s90, 13", f"s_add_u32 s{S_KOFF2}, s{S_KOFF}, 4096"]
    for half in range(2):
        L.append(f"s_add_u32 m0, s{S_M0K}, {half*4096}")
        for i in range(4): L.append(dma(f"v{V_KD+i}", f"s[{S_KSRD}:{S_KSRD+3}]", f"s{S_KOFF if half == 0 else S_KOFF2}", i*1024, ("X", 0)))
    L += ["s_waitcnt vmcnt(0)"]
    L += k_reads(0)
    L += ["s_waitcnt lgkmcnt(0)"]
    for n in range(5):
        for s in range(2):
            for j in range(4):
                d = R("v", V_S + s*4, 4)
                L.append(mfma16(d, Kf(s, j), Qf(n, j), "0" if j == 0 else d))
        m = MXR[n]
        L += [f"v_max3_f32 v{m}, v{V_S}, v{V_S+1}, v{m}", f"v_max3_f32 v{m}, v{V_S+2}, v{V_S+3}, v{m}",
              f"v_max3_f32 v{m}, v{V_S+4}, v{V_S+5}, v{m}", f"v_max3_f32 v{m}, v{V_S+6}, v{V_S+7}, v{m}"]
    L += ["s_add_u32 s90, s90, 1", "s_cmp_lt_u32 s90, 16", "s_cbranch_scc1 L_maxloop"]
    for n in range(5):
        m = MXR[n]
        L += [f"v_mov_b32 v4, v{m}", f"v_permlane16_swap_b32 v4, v{m}", f"v_max_f32 v{m}, v4, v{m}",
              f"v_mov_b32 v4, v{m}", f"v_permlane32_swap_b32 v4, v{m}", f"v_max_f32 v{m}, v4, v{m}"]
    MB = 155648
    L += ["v_lshlrev_b32 v4, 2, v0", f"s_mul_i32 s29, s{S_W}, 1280", "v_add_u32 v5, s29, v4", f"v_add_u32 v5, {MB}, v5", f"v_add_u32 v4, {MB}, v4"]
    for n in range(5): L.append(f"ds_write_b32 v5, v{MXR[n]} offset:{n*256}")
    L += ["s_waitcnt lgkmcnt(0)", "s_barrier"]
    for n in range(5):
        for w in range(4): L.append(f"ds_read_b32 v{V_S+w}, v4 offset:{w*1280+n*256}")
        L += ["s_waitcnt lgkmcnt(0)", f"v_max3_f32 v5, v{V_S}, v{V_S+1}, v{V_S+2}", f"v_max_f32 v5, v5, v{V_S+3}"]
        for r in range(4): L.append(f"v_sub_f32 v{V_NEGM+n*4+r}, 0, v5")
    L += k_dma(0) + v_dma(0) + ([] if late1 else k_dma(1) + v_dma(1))
    return L

def kernel(opt):
    st = opt.get("stamps")
    L = setup0(opt)
    if opt.get("stp"):
        L += [f"s_mov_b32 s{70+i}, 0" for i in range(20)]
    L += stampw(0, st)
    L += nonce_publish()
    L += ["L_restart:"]
    L += setup1()
    L += qp_dma(0)
    L += qp_lanebases()
    L += qp_dma(1)
    L += ring_addrs()
    for i in range(4): L += ["v_mov_b32 v1, 0x3f803f80", f"v_accvgpr_write_b32 a{A_ONE+i}, v1"]
    for i in range(20): L.append(f"v_mov_b32 v{V_NEGM+i}, 0")
    L += stamp(1, st)
    L += qproj(opt)
    L += stamp(2, st)
    L += q_exchange(opt)
    S1, n1 = finalize(L)
    M = [f"s_cmp_eq_u32 s{S_MODE}, 0", "s_cbranch_scc1 L_attn"] + maxpass(opt.get('late1')) + ["L_attn:"] + pre_attn(opt.get('late1'))
    S1b, n1b = finalize(M)
    vmq = [("K", 0)]*8 + [("V", 0)]*8 + ([] if opt.get("late1") else [("K", 1)]*8 + [("V", 1)]*8)
    kr0 = k_reads(0); kr0[0].need_vm = [("K", 0)]
    body = PL(stampw(4, st)) + kr0 + build(opt)
    S2, _, _ = insert_waits(body, vm_outstanding=vmq)
    S2, n2 = check_hazards(S2)
    T = ["s_nop 7"] + stampw(5, st)
    T = PL(T) + PL(stage1(opt)) + stage2(opt) + PL(stage3(opt))
    E = []
    if st:
        E += ["s_memtime s[88:89]", "s_memrealtime s[90:91]", "s_waitcnt lgkmcnt(0)",
              "s_lshl_b32 s28, s2, 2", f"s_add_u32 s28, s28, s{S_W}", "s_lshl_b32 s28, s28, 6", f"s_add_u32 s28, s28, {WS_STAMP}", "v_mov_b32 v2, s28"]
        if MS[0]: E += ["s_mov_b32 s88, s86"]
        if STP[0]: E += ["s_mov_b32 s86, s88"]
        for k in range(9):
            E += [f"s_sub_u32 s29, s{72+2*k}, s{70+2*k}", "v_mov_b32 v3, s29", f"buffer_store_dword v3, v2, s[{S_WS}:{S_WS+3}], 0 offen offset:{4*k}", "s_nop 1"]
        for k, s in ((12, "s68"), (13, "s90")):
            E += [f"v_mov_b32 v3, {s}", f"buffer_store_dword v3, v2, s[{S_WS}:{S_WS+3}], 0 offen offset:{4*k}", "s_nop 1"]
    E += ["s_waitcnt vmcnt(0)", "s_endpgm", "L_fallback:", f"s_mov_b32 s{S_MODE}, 1", "s_waitcnt vmcnt(0) lgkmcnt(0)", "s_barrier", "s_branch L_restart", "L_end:", "s_endpgm"]
    S3, n3 = finalize(T + PL(E))
    print(f"; nops inserted {n1} {n1b} {n2} {n3}", file=sys.stderr)
    return emit(S1) + "\n" + emit(S1b) + "\n" + emit(S2) + "\n" + emit(S3) + "\n"

def gen(opt):
    mb.OPT["flags"] = opt.get("flags", ""); mb.OPT["rot"] = opt.get("rot", True); mb.OPT["share_off"] = opt.get("share_off", True)
    import sched as _s; _s.MERGE[0] = opt.get("merge", 0)
    MS[0] = (4, 5) if opt.get("mainstamps") else None
    STP[0] = opt.get("stp")
    hdr = open("standalone__gqa_block_cached__near_ridge.s.ref").read().split("; Override")[0]
    s = hdr + "; @launch grid=(256,1,1) block=(256,1,1) lds=163840\n"
    s += f'.amdgcn_target "amdgcn-amd-amdhsa--gfx950"\n.text\n.globl {KN}\n.p2align 8\n.type {KN},@function\n{KN}:\n'
    s += kernel(opt)
    s += footer(vgpr=512, accum=256, name=KN)
    return s

if __name__ == "__main__":
    for nm, o in {"a12": {"merge": 130}}.items():
        open(nm + ".s", "w").write(gen(o))
        o2 = dict(o); o2["stamps"] = True
        open(nm + "_st.s", "w").write(gen(o2))
```

```python
import sys, struct, math
from asmlib import *
from sched import *
import maina2 as mb
from maina2 import *

KN = "standalone__gqa_block_cached__near_ridge_kernel"
CSCALE = struct.unpack("<I", struct.pack("<f", math.log2(math.e)/math.sqrt(128.0)))[0]

WS_QX   = 0x0000000
WS_PART = 0x0600000
WS_LP   = 0x1B00000
WS_OF   = 0x1C00000
WS_OUTP = 0x2200000
WS_FLAG = 0x2800000
WS_MX   = 0x2900000
WS_STAMP= 0x1400000 + 0x1800000
WS_SIZE = 0x4000000
FQ, FQB, F1, F1B, F2, FM, F3 = 0, 0x4000, 0x8000, 0xC000, 0x10000, 0x14000, 0x18000
S_W, S_B, S_C, S_G = 20, 21, 22, 23
S_MODE = 27
S_X, S_WQ, S_WS, S_OUT, S_DBG = 32, 36, 40, 56, 60
S_NONCE = 64
S_GRP = 65
S_ROT = 67
QP_W = [110592, 0, 57344, 110592]
QP_X = [143360, 32768, 90112, 143360]
QBUF = 131072
V_XD = 60; V_WQD = 65; V_WB = 69; V_XB = 56
V_QD = 84
QA = [164, 200]; QB = [172, 208]
V_QWA = (250, 251); V_QXA = (48, 52)
V_NONCE = 253

STP = [None]
def nst(name):
    if STP[0] and name in STP[0]:
        i = STP[0].index(name); return [f"s_memtime s[{70+2*i}:{71+2*i}]"]
    return []
MS = [None]
def stamp(i, on):
    if STP[0] is not None: return nst({0:'start',1:'setup',2:'qproj',3:'qx',4:'main0',5:'main1',6:'cw',7:'cr',8:'own'}[i])
    if MS[0]:
        if i == MS[0][0]: return ['s_memtime s[70:71]']
        if i == MS[0][1]: return ['s_memtime s[86:87]']
        return []
    return [f"s_memtime s[{70+2*i}:{71+2*i}]"] if on else []
def stampw(i, on):
    if STP[0] is not None:
        r = stamp(i, on)
        return r + ['s_waitcnt lgkmcnt(0)'] if r else []
    if MS[0]:
        r = stamp(i, on)
        return r + ["s_waitcnt lgkmcnt(0)"] if r else []
    return [f"s_memtime s[{70+2*i}:{71+2*i}]", "s_waitcnt lgkmcnt(0)"] if on else []

_uid = [0]
def uid():
    _uid[0] += 1; return _uid[0]

def setup0(opt):
    L = ["s_cmp_ge_u32 s2, 256", "s_cbranch_scc1 L_end",
         "s_load_dwordx8 s[4:11], s[0:1], 0", "s_load_dwordx4 s[44:47], s[0:1], 32", "s_load_dwordx4 s[48:51], s[0:1], 48"]
    if opt.get("stamps"): L += ["s_memrealtime s[68:69]"]
    L += ["v_lshrrev_b32 v1, 6, v0", "v_and_b32 v0, 63, v0", f"v_readfirstlane_b32 s{S_W}, v1",
          f"s_and_b32 s{S_G}, s2, 7", f"s_lshr_b32 s{S_C}, s2, 3", f"s_and_b32 s{S_C}, s{S_C}, 3", f"s_lshr_b32 s{S_B}, s2, 5",
          f"s_lshl_b32 s{S_GRP}, s{S_B}, 3", f"s_add_u32 s{S_GRP}, s{S_GRP}, s{S_G}",
          f"s_mov_b32 s{S_MODE}, 0", f"s_mov_b32 s{S_NONCE}, 0", "s_waitcnt lgkmcnt(0)"]
    L += [f"s_mul_i32 s28, s{S_B}, 81920", f"s_add_u32 s{S_X}, s4, s28", f"s_addc_u32 s{S_X+1}, s5, 0", f"s_and_b32 s{S_X+1}, s{S_X+1}, 0xffff",
          f"s_mov_b32 s{S_X+2}, 81920", f"s_mov_b32 s{S_X+3}, 0x20000"]
    L += srd(S_WQ, 10, 512*4096*2)
    L += [f"s_lshl_b32 s28, s{S_GRP}, 19", f"s_lshl_b32 s29, s{S_W}, 17", "s_add_u32 s28, s28, s29"]
    L += ["s_add_u32 s12, s6, s28", "s_addc_u32 s13, s7, 0", "s_and_b32 s13, s13, 0xffff", "s_mov_b32 s14, 0x20000", "s_mov_b32 s15, 0x20000"]
    L += ["s_add_u32 s16, s8, s28", "s_addc_u32 s17, s9, 0", "s_and_b32 s17, s17, 0xffff", "s_mov_b32 s18, 0x20000", "s_mov_b32 s19, 0x20000"]
    L += srd(S_WS, 50, WS_SIZE) + srd(S_WOSRD, 44, 4096*512*2) + srd(S_OUT, 46, 8*80*512*2) + srd(S_DBG, 48, 256)
    return L

def setup1():
    L = ["v_and_b32 v2, 15, v0", "v_lshrrev_b32 v3, 4, v0", f"v_lshlrev_b32 v{V_L16}, 4, v0"]
    L += ["v_xor_b32 v4, v2, v3", f"s_lshl_b32 s28, s{S_W}, 4", "v_add_u32 v6, s28, v3"]
    for i in range(4):
        L += [f"v_xor_b32 v5, {4*i}, v4", "v_lshlrev_b32 v5, 4, v5", "v_lshl_add_u32 v5, v6, 10, v5", f"v_add_u32 v{V_XD+i}, {i*3072}, v5"]
    L += [f"s_lshl_b32 s28, s{S_W}, 2", "v_xor_b32 v5, s28, v4", "v_lshlrev_b32 v5, 4, v5", "s_add_u32 s28, s28, 64", "v_add_u32 v6, s28, v3", f"v_lshl_add_u32 v{V_XD+4}, v6, 10, v5"]
    L += [f"s_lshl_b32 s28, s{S_W}, 5", "v_add_u32 v4, s28, v3", "v_lshlrev_b32 v5, 2, v3", "v_xor_b32 v5, v5, v2", "v_lshlrev_b32 v5, 4, v5", "v_lshl_add_u32 v5, v4, 13, v5"]
    for i in range(4): L.append(f"v_add_u32 v{V_WQD+i}, {i*31744}, v5")
    L += [f"s_add_u32 s28, s{S_C}, s{S_B}", f"s_and_b32 s{S_ROT}, s28, 3", f"s_lshr_b32 s28, s{S_B}, 2", "s_lshl_b32 s90, s28, 17", "s_lshl_b32 s91, s28, 12"]
    L += [f"s_lshl_b32 s28, s{S_G}, 2", f"s_add_u32 s28, s28, s{S_C}", "s_lshl_b32 s31, s28, 8"]
    return L

def qp_dma(c):
    tag = ("C", c)
    L = [f"s_add_u32 s28, s{S_ROT}, {c}", "s_and_b32 s28, s28, 3", "s_lshl_b32 s29, s28, 8",
         f"s_lshl_b32 s30, s{S_W}, 12", f"s_add_u32 m0, s30, {QP_X[c]}"]
    for i in range(4): L.append(dma(f"v{V_XD+i}", f"s[{S_X}:{S_X+3}]", "s29", i*1024, tag))
    L += [f"s_lshl_b32 s30, s{S_W}, 10", f"s_add_u32 m0, s30, {QP_X[c] + 16384}"]
    L.append(dma(f"v{V_XD+4}", f"s[{S_X}:{S_X+3}]", "s29", 0, tag))
    L += ["s_lshl_b32 s29, s28, 20", "s_add_u32 s29, s29, s31", "s_add_u32 s28, s29, s90", f"s_lshl_b32 s30, s{S_W}, 13", f"s_add_u32 s30, s30, {QP_W[c]}", "s_add_u32 m0, s30, s91"]
    for i in range(4): L.append(dma(f"v{V_WQD+i}", f"s[{S_WQ}:{S_WQ+3}]", "s28", i*1024, tag))
    L += ["s_xor_b32 s28, s90, 131072", "s_add_u32 s28, s28, s29", "s_xor_b32 s29, s91, 4096", "s_add_u32 m0, s30, s29"]
    for i in range(4): L.append(dma(f"v{V_WQD+i}", f"s[{S_WQ}:{S_WQ+3}]", "s28", i*1024, tag))
    return L

def qp_lanebases():
    L = ["v_lshrrev_b32 v4, 2, v2", f"v_xor_b32 v5, s{S_W}, v4", "v_lshlrev_b32 v5, 6, v5", "v_lshl_add_u32 v6, v3, 3, v4", "v_lshl_add_u32 v5, v6, 8, v5",
         "v_and_b32 v6, 3, v0", f"v_lshl_add_u32 v{V_WB}, v6, 4, v5"]
    for ks in range(4):
        L += [f"v_add_u32 v5, {4*ks}, v3", "v_xor_b32 v5, v5, v2", "v_lshlrev_b32 v5, 4, v5", f"v_lshl_add_u32 v{V_XB+ks}, v2, 8, v5"]
    return L

def ring_addrs():
    L = [f"s_lshl_b32 s{S_M0K}, s{S_W}, 13"]
    L += ["v_xor_b32 v6, v2, v3"]
    for i in range(4):
        L += [f"v_xor_b32 v5, {4*i}, v6", "v_lshlrev_b32 v5, 4, v5", f"v_lshl_add_u32 v{V_KD+i}, v3, 8, v5"]
    for i in range(2):
        L += [f"v_add_u32 v5, {4*i}, v3", "v_lshlrev_b32 v5, 1, v5", "v_xor_b32 v5, v5, v2", "v_lshlrev_b32 v5, 4, v5", f"v_lshl_add_u32 v{V_VD+i}, v3, 8, v5"]
    for j in range(4):
        L += [f"v_add_u32 v5, {4*j}, v3", "v_xor_b32 v5, v5, v2", "v_lshlrev_b32 v5, 4, v5", "v_lshl_add_u32 v5, v2, 8, v5", f"v_add_u32 v{V_KA+j}, s{S_M0K}, v5"]
    L += ["v_lshrrev_b32 v4, 2, v2", "v_lshl_add_u32 v4, v3, 2, v4", "v_and_b32 v5, 7, v4", "v_lshlrev_b32 v5, 1, v5",
          "v_and_b32 v6, 3, v0", "v_lshrrev_b32 v6, 1, v6", "v_and_b32 v7, 1, v0", "v_lshlrev_b32 v7, 3, v7",
          "v_lshl_add_u32 v7, v4, 8, v7"]
    L += [f"s_lshl_b32 s28, s{S_W}, 2"]
    for ep in range(2):
        L += [f"s_add_u32 s29, s28, {2*ep}", "v_add_u32 v1, s29, v6", "v_xor_b32 v1, v1, v5", f"v_lshl_add_u32 v{V_WAX+ep}, v1, 4, v7"]
    L += [f"s_add_u32 s28, s{S_M0K}, 65536", "v_add_u32 v7, s28, v7"]
    for dt in range(8):
        L += [f"v_add_u32 v1, {2*dt}, v6", "v_xor_b32 v1, v1, v5", f"v_lshl_add_u32 v{V_VA+dt}, v1, 4, v7"]
    for i in range(4):
        L += [f"v_add_u32 v5, {4*(i&1)}, v3", "v_lshlrev_b32 v5, 1, v5", "v_xor_b32 v5, v5, v2", "v_lshlrev_b32 v5, 4, v5",
              f"v_add_u32 v6, {4*i}, v3", "v_lshl_add_u32 v5, v6, 10, v5", f"v_subrev_u32 v{V_WD+i}, {i*1024}, v5"]
    if mb.OPT.get("rot"):
        def order(j, ph):
            o = []; bounds = [0] + [x for x in range(ph, 16, 4) if x > 0] + [16]
            for a_, b_ in zip(bounds[:-1], bounds[1:]):
                n_ = b_ - a_
                o += [a_ + ((i + j) % n_) for i in range(n_)]
            return o
        L += [f"s_and_b32 s28, s{S_B}, 3", "s_lshl_b32 s28, s28, 2", f"s_add_u32 s28, s28, s{S_C}", f"s_mov_b32 s{S_TAB}, 0", f"s_mov_b32 s{S_TAB+1}, 0"]
        for ph in range(4):
            for j in range(4):
                o = order(j, ph); assert sorted(o) == list(range(16))
                lo = sum(v << (4*i) for i, v in enumerate(o[:8])); hi = sum(v << (4*i) for i, v in enumerate(o[8:]))
                L += [f"s_cmp_eq_u32 s28, {ph*4+j}", f"s_cselect_b32 s{S_TAB}, {hex(lo)}, s{S_TAB}", f"s_cselect_b32 s{S_TAB+1}, {hex(hi)}, s{S_TAB+1}"]
    L += [f"s_lshl_b32 s28, s{S_B}, 16", f"s_lshl_b32 s29, s{S_W}, 14", "s_add_u32 s28, s28, s29", f"s_lshl_b32 s29, s{S_G}, 19", "s_add_u32 s28, s28, s29",
          f"s_lshl_b32 s29, s{S_C}, 8", f"s_add_u32 s{S_PLOFF}, s28, s29", f"s_lshl_b32 s28, s{S_W}, 13", f"s_add_u32 s{S_PLM0}, s28, 131072"]
    for hr in range(4):
        L += [f"s_add_u32 s28, s{S_C}, {hr}", "s_and_b32 s28, s28, 3", "s_lshl_b32 s28, s28, 17", f"s_lshl_b32 s29, s{S_G}, 19", "s_add_u32 s28, s28, s29",
              f"s_lshl_b32 s29, s{S_C}, 8", "s_add_u32 s28, s28, s29", f"s_lshl_b32 s29, s{S_W}, 15", f"s_add_u32 s{S_WOB[hr]}, s28, s29"]
    return L

def qp_reads(c, ks):
    st = ks % 2; xa = V_QXA[c % 2] + ks; wa = V_QWA[c % 2]
    r = [P(f"ds_read_b128 {R('v', QB[st]+4*n, 4)}, v{xa} offset:{n*4096}") for n in range(5)]
    for e in range(2):
        for hh in range(2):
            r.append(P(f"ds_read_b64_tr_b16 {R('v', QA[st]+e*4+2*hh, 2)}, v{wa} offset:{ks*8192+hh*1024+e*8}"))
    return [r[5], r[6], r[0], r[7], r[8], r[1], r[2], r[3], r[4]]
def qp_addr(c):
    return PL([f"v_add_u32 v{V_QWA[c%2]}, {QP_W[c]}, v{V_WB}"] + [f"v_add_u32 v{V_QXA[c%2]+ks}, {QP_X[c]}, v{V_XB+ks}" for ks in range(4)])
def qp_mfmas(c, ks):
    r = []
    st = ks % 2
    for n in range(5):
        for e in range(2):
            d = R('v', V_QD+(e*5+n)*4, 4)
            cc = "0" if (c == 0 and ks == 0) else d
            r.append(P(f"v_mfma_f32_16x16x32_bf16 {d}, {R('v', QA[st]+e*4, 4)}, {R('v', QB[st]+4*n, 4)}, {cc}"))
    return r

def qproj(opt):
    mf = []; idx = {}
    for c in range(4):
        for ks in range(4):
            idx[(c, ks)] = len(mf); mf += qp_mfmas(c, ks)
    fixed = {}; rd = []; dm = []
    pre = [P("s_barrier", need_vm=[("C", 0)])] + qp_addr(0) + qp_reads(0, 0)
    order = [(c, ks) for c in range(4) for ks in range(4)]
    for gi in range(1, 16):
        c, ks = order[gi]; pc, pks = order[gi-1]
        start = idx[(pc, pks)]
        if ks == 0:
            fixed[start] = [P("s_waitcnt lgkmcnt(0)"), P("s_barrier", need_vm=[("C", c)])] + qp_addr(c)
        for k, ins in enumerate(qp_reads(c, ks)): rd.append(F(ins, start + k, idx[(c, ks)] - 1))
    def sched(items, start, end):
        n = sum(1 for i in items if i.kind in ("dma", "vmem"))
        step = max(1, (end - start) // max(n, 1))
        out = []; k = 0
        for ins in items:
            lo = min(start + k*step, end - 1)
            out.append(F(ins, lo, lo + step))
            if ins.kind in ("dma", "vmem"): k += 1
        return out
    dm += sched(PL(qp_dma(2)), idx[(0, 0)], idx[(0, 3)])
    dm += sched(PL(qp_dma(3)), idx[(0, 3)] + 1, idx[(1, 3)])
    nl = PL([f"s_lshl_b32 s28, s{S_B}, 5", "v_mov_b32 v254, s28", f"buffer_load_dword v{V_NONCE}, v254, s[{S_DBG}:{S_DBG+3}], 0 offen sc1"])
    dm += sched(nl + k_dma(0), idx[(1, 3)] + 1, idx[(2, 3)])
    dm += sched(v_dma(0), idx[(2, 3)] + 1, idx[(3, 3)] + 8)
    return pre + place(mf, [rd, dm], 8, fixed)

def nonce_publish():
    return [f"s_or_b32 s28, s{S_G}, s{S_C}", f"s_or_b32 s28, s28, s{S_W}", "s_cmp_eq_u32 s28, 0", "s_cbranch_scc0 L_not_leader",
            "s_memrealtime s[28:29]", "s_waitcnt lgkmcnt(0)", "s_or_b32 s28, s28, 1", "v_mov_b32 v5, s28", f"s_lshl_b32 s29, s{S_B}, 5", "v_mov_b32 v4, s29",
            f"buffer_store_dword v5, v4, s[{S_DBG}:{S_DBG+3}], 0 offen sc1", "L_not_leader:"]
def nonce_code():
    return [f"s_cmp_lg_u32 s{S_NONCE}, 0", "s_cbranch_scc1 L_have_nonce", f"v_readfirstlane_b32 s{S_NONCE}, v{V_NONCE}",
            f"s_cmp_lg_u32 s{S_NONCE}, 0", "s_cbranch_scc1 L_have_nonce",
            f"s_lshl_b32 s28, s{S_B}, 5", "v_mov_b32 v4, s28", "s_mov_b32 s29, 0", "L_nonce_poll:",
            f"buffer_load_dword v5, v4, s[{S_DBG}:{S_DBG+3}], 0 offen sc1", "s_waitcnt vmcnt(0)", f"v_readfirstlane_b32 s{S_NONCE}, v5",
            f"s_cmp_lg_u32 s{S_NONCE}, 0", "s_cbranch_scc1 L_have_nonce", "s_add_u32 s29, s29, 1", "s_cmp_lt_u32 s29, 0x40000", "s_cbranch_scc0 L_have_nonce",
            "s_sleep 2", "s_branch L_nonce_poll", "L_have_nonce:"]

def wave_flag(addr_s, payload):
    return [f"v_mov_b32 v4, s{addr_s}", f"v_mov_b32 v6, s{S_NONCE}", f"v_mov_b32 v7, {payload}", "s_mov_b64 exec, 1",
            f"buffer_store_dwordx2 v[6:7], v4, s[{S_WS}:{S_WS+3}], 0 offen sc1", "s_mov_b64 exec, -1"]
def poll(base_s, mask, shift=3, lane_off=0):
    u = uid()
    return [f"v_and_b32 v4, {mask}, v0", f"v_lshlrev_b32 v4, {shift}, v4", f"v_add_u32 v4, s{base_s}, v4", "s_mov_b32 s29, 0", f"L_pf{u}:",
            f"buffer_load_dwordx2 v[6:7], v4, s[{S_WS}:{S_WS+3}], 0 offen sc1", "s_waitcnt vmcnt(0)",
            f"v_cmp_ne_u32 vcc, s{S_NONCE}, v6", f"s_cbranch_vccz L_pf{u}_ok", "s_add_u32 s29, s29, 1", "s_cmp_lt_u32 s29, 0x40000",
            f"s_cbranch_scc1 L_pf{u}", f"L_pf{u}_ok:"]
def flagline(area_a, area_b=None):
    L = [f"s_lshl_b32 s30, s{S_GRP}, 7", f"s_add_u32 s30, s30, {WS_FLAG}"]
    if area_b is None: L += [f"s_add_u32 s30, s30, {area_a}"] if area_a else []
    else: L += [f"s_mul_i32 s29, s{S_MODE}, {area_b - area_a}", "s_add_u32 s30, s30, s29"] + ([f"s_add_u32 s30, s30, {area_a}"] if area_a else [])
    return L

def q_exchange(opt):
    st = opt.get("stamps")
    L = ["s_waitcnt lgkmcnt(0)", "s_barrier"]
    if not opt.get("late1"): L += k_dma(1)
    L += [f"s_mov_b32 s29, {hex(CSCALE)}", f"s_lshl_b32 s28, s{S_W}, 10", f"v_add_u32 v4, s28, v{V_L16}", f"v_add_u32 v4, {QBUF}, v4"]
    for n in range(5):
        d0 = V_QD + n*4; d1 = V_QD + (5+n)*4
        for r in range(4): L += [f"v_mul_f32 v{d0+r}, s29, v{d0+r}", f"v_mul_f32 v{d1+r}, s29, v{d1+r}"]
        t = 164 + n*4
        L += [f"v_cvt_pk_bf16_f32 v{t}, v{d0}, v{d0+1}", f"v_cvt_pk_bf16_f32 v{t+1}, v{d0+2}, v{d0+3}",
              f"v_cvt_pk_bf16_f32 v{t+2}, v{d1}, v{d1+1}", f"v_cvt_pk_bf16_f32 v{t+3}, v{d1+2}, v{d1+3}",
              f"ds_write_b128 v4, v[{t}:{t+3}] offset:{n*4096}"]
    if not opt.get("late1"): L += v_dma(1)
    L += ["s_waitcnt lgkmcnt(0)", "s_barrier"]
    L += stamp(3, st)
    L += [f"v_add_u32 v4, {QBUF}, v{V_L16}"]
    for n in range(5):
        for j in range(4): L.append(f"ds_read_b128 {Qf(n, j)}, v4 offset:{(n*4+j)*1024}")
    return L

def selector(base):
    return ["v_lshrrev_b32 v4, 2, v2", "v_cmp_eq_u32 vcc, v4, v3", "v_and_b32 v5, 1, v0", "v_lshlrev_b32 v5, 4, v5", "v_mov_b32 v6, 0x3f80", "v_lshlrev_b32 v6, v5, v6",
            "v_cndmask_b32 v6, 0, v6, vcc", "v_and_b32 v5, 2, v0", "v_cmp_eq_u32 vcc, 0, v5",
            f"v_cndmask_b32 v{base}, 0, v6, vcc", f"v_cndmask_b32 v{base+1}, v6, 0, vcc",
            f"v_mov_b32 v{base+2}, 0", f"v_mov_b32 v{base+3}, 0", f"v_mov_b32 v{base+4}, 0", f"v_mov_b32 v{base+5}, 0",
            f"v_mov_b32 v{base+6}, v{base}", f"v_mov_b32 v{base+7}, v{base+1}"]

CBUF = 0
CL = 81920
OLOC = [65536, 86016, 106496, 126976]
def pre_attn(late1=False):
    L = ["s_waitcnt vmcnt(16)" if late1 else "s_waitcnt vmcnt(32)"] + nonce_code()
    L += [f"v_add_u32 v{V_CW}, s{S_M0K}, v{V_L16}", "v_lshlrev_b32 v4, 2, v0", f"s_add_u32 s28, s{S_M0K}, {65536+4096}", f"v_add_u32 v{V_CLW}, s28, v4"]
    return L

def stage1(opt):
    st = opt.get("stamps")
    L = [f"v_add_u32 v44, 0x10000, v{V_CW}"]
    L += combine_writes(4)
    if not opt.get("early", True):
        for n in range(4): L += combine_writes(n)
    L += wo_dma(0)
    L += selector(48)
    L += [f"s_lshl_b32 s28, s{S_W}, 10", f"v_add_u32 v5, s28, v{V_L16}", f"v_add_u32 v45, 0x10000, v5", "v_lshlrev_b32 v6, 2, v0", f"v_add_u32 v6, {65536+4096}, v6"]
    L += ["s_waitcnt lgkmcnt(0)", "s_barrier"]
    L += stamp(6, st)
    PB = V_O
    DB = 164
    rd = []
    for n in range(5):
        for s_ in range(4):
            q0 = n*4
            addr = CREG[n >> 1] + s_*8192 + (n & 1)*4096
            rd.append(P(f"ds_read_b128 v[{PB+(n*4+s_)*4}:{PB+(n*4+s_)*4+3}], v{5 if addr < 65536 else 45} offset:{addr & 0xffff}"))
    lr = [P(f"ds_read_b32 v{56+4*n+s_}, v6 offset:{s_*8192+n*256}") for n in range(5) for s_ in range(4)]
    mf = []
    for n in range(5):
        for s_ in range(4):
            q = f"v[{PB+(n*4+s_)*4}:{PB+(n*4+s_)*4+3}]"
            mf += [P(f"v_mfma_f32_16x16x32_bf16 v[{DB+n*8}:{DB+n*8+3}], v[48:51], {q}, {'0' if s_ == 0 else f'v[{DB+n*8}:{DB+n*8+3}]'}"),
                   P(f"v_mfma_f32_16x16x32_bf16 v[{DB+n*8+4}:{DB+n*8+7}], v[52:55], {q}, {'0' if s_ == 0 else f'v[{DB+n*8+4}:{DB+n*8+7}]'}")]
    va = []
    for n in range(5):
        l = 56 + 4*n
        va += PL([f"v_add_f32 v{l}, v{l}, v{l+1}", f"v_add_f32 v{l+2}, v{l+2}, v{l+3}", f"v_add_f32 v{l}, v{l}, v{l+2}"])
    L += rd[:8]
    ch_rd = [F(rd[i], max(0, 2*(i-8)), 2*i - 6) for i in range(8, 20)]
    ch_lr = [F(x, 4 + i//2, 16) for i, x in enumerate(lr)]
    ch_va = [F(x, 18 + i, 38) for i, x in enumerate(va)]
    w1 = wo_dma(1)
    ch_w = []; kk = 0
    for ins in w1:
        ch_w.append(F(ins, 2 + kk*4, 39))
        if ins.kind == "dma": kk += 1
    L += place(mf, [ch_rd, ch_lr, ch_va, ch_w], 8)
    L += ["s_mov_b32 s29, 0x21800000", "s_mov_b32 s30, 0x5d800000", "s_mov_b64 s[90:91], 0"]
    for n in range(5):
        L += [f"v_cmp_nge_f32 vcc, v{56+4*n}, s29", "s_or_b64 s[90:91], s[90:91], vcc", f"v_cmp_nle_f32 vcc, v{56+4*n}, s30", "s_or_b64 s[90:91], s[90:91], vcc"]
    L += ["s_cmp_lg_u64 s[90:91], 0", "s_cselect_b32 s31, 1, 0", f"s_cmp_eq_u32 s{S_MODE}, 0", "s_cselect_b32 s31, s31, 0", "s_cmp_lg_u32 s31, 0", "s_cbranch_scc1 L_fallback"]
    for n in range(5): L.append(f"v_rcp_f32 v{56+4*n}, v{56+4*n}")
    DB = 164
    L += [f"s_lshl_b32 s28, s{S_W}, 10", f"v_add_u32 v44, s28, v{V_L16}", f"v_add_u32 v44, {OLOC[0]}, v44", f"s_lshl_b32 s29, s{S_GRP}, 2", f"s_add_u32 s29, s29, s{S_C}", "s_mul_i32 s29, s29, 20480",
          "s_add_u32 s93, s29, s28", f"s_add_u32 s93, s93, {WS_OF}"]
    L += ["s_barrier"]
    L += stamp(7, st)
    st_ = []; dw = []
    for n in range(5):
        l = 56 + 4*n; d = DB + n*8
        for r in range(8): L.append(f"v_mul_f32 v{d+r}, v{d+r}, v{l}")
        L += [f"v_cvt_pk_bf16_f32 v{d}, v{d}, v{d+1}", f"v_cvt_pk_bf16_f32 v{d+1}, v{d+2}, v{d+3}",
              f"v_cvt_pk_bf16_f32 v{d+2}, v{d+4}, v{d+5}", f"v_cvt_pk_bf16_f32 v{d+3}, v{d+6}, v{d+7}",
              f"s_add_u32 s30, s93, {n*4096}", f"buffer_store_dwordx4 v[{d}:{d+3}], v{V_L16}, s[{S_WS}:{S_WS+3}], s30 offen sc1"]
        dw.append(f"ds_write_b128 v44, v[{d}:{d+3}] offset:{n*4096}")
    L += dw
    L += wo_dma(2) + wo_dma(3)
    return L

def s2_chunk(hr, nbase):
    reads = []; mfs = []
    for j in range(4):
        for n in range(5):
            addr = OLOC[hr] + (n*4+j)*1024
            breg = 28 + ((nbase + j*5 + n) % 12)*4
            reads.append(P(f"ds_read_b128 v[{breg}:{breg+3}], v{248 + (addr >> 16)} offset:{addr & 0xffff}"))
            for ep in range(2):
                d = R('v', V_O + (ep*5+n)*4, 4)
                c = "0" if (hr == 0 and j == 0) else d
                a = A_WO[hr] + (j*2+ep)*4
                mfs.append(P(f"v_mfma_f32_16x16x32_bf16 {d}, a[{a}:{a+3}], v[{breg}:{breg+3}], {c}"))
    return reads, mfs
def s2_dma(hr):
    L = PL([f"s_add_u32 s29, s{S_C}, {hr}", "s_and_b32 s29, s29, 3", "s_mul_i32 s29, s29, 20480", "s_add_u32 s29, s29, s93", f"s_add_u32 m0, s31, {OLOC[hr]}"])
    for i in range(4): L.append(dma(f"v{V_L16}", f"s[{S_WS}:{S_WS+3}]", "s29", i*1024, ("P", hr), "sc1"))
    L += PL(["s_add_u32 s29, s29, 4096", f"s_add_u32 m0, s31, {OLOC[hr]+4096}"])
    L.append(dma(f"v{V_L16}", f"s[{S_WS}:{S_WS+3}]", "s29", 0, ("P", hr), "sc1"))
    return L

def stage2(opt):
    st = opt.get("stamps")
    L = flagline(F2)
    L += [f"s_lshl_b32 s28, s{S_C}, 2", f"s_add_u32 s28, s28, s{S_W}", "s_lshl_b32 s28, s28, 3", "s_add_u32 s31, s30, s28"]
    L += [f"v_add_u32 v76, 0x10000, v{V_WAX}", f"v_add_u32 v77, 0x10000, v{V_WAX+1}", f"v_add_u32 v78, 0x20000, v{V_WAX}", f"v_add_u32 v79, 0x20000, v{V_WAX+1}"]
    L += ["s_waitcnt vmcnt(16)"] + wave_flag(31, 0)
    L += ["s_waitcnt lgkmcnt(0)", "s_barrier"]
    L += [f"v_mov_b32 v248, v{V_L16}", f"v_add_u32 v249, 0x10000, v{V_L16}", f"v_add_u32 v250, 0x20000, v{V_L16}"]
    L = PL(L)
    regs_ = {0: V_WAX, 0x10000: 76, 0x20000: 78}
    L += wo_frag_reads(0, regs_) + wo_frag_reads(1, regs_)
    r0, m0 = s2_chunk(0, 0)
    AH = 6
    L += r0[:AH] + place(m0, [[F(r0[i], 2*(i-AH), 2*i - 4) for i in range(AH, 20)]], 8)
    L += PL(stamp(8, st))
    L += PL(poll(30, 15))
    L += PL(nst("poll2"))
    L += PL(["s_waitcnt lgkmcnt(0)", "s_barrier"])
    L += PL([f"s_mul_i32 s31, s{S_W}, 5120", f"s_mul_i32 s93, s{S_GRP}, 81920", "s_add_u32 s93, s93, s31", f"s_add_u32 s93, s93, {WS_OF}"])
    L += s2_dma(1) + s2_dma(2)
    w23 = wo_frag_reads(2, regs_) + wo_frag_reads(3, regs_)
    L += w23[:16]
    mf = []; idx = {}; rdch = []; dm = []; fixed = {}
    nb = 20
    for hr in (1, 2, 3):
        idx[hr] = len(mf)
        r, m = s2_chunk(hr, nb); nb += 20
        fixed[idx[hr]] = [P("s_barrier", need_vm=[("P", hr)])] + r[:AH]
        for i in range(AH, 20): rdch.append(F(r[i], idx[hr] + 2*(i-AH), idx[hr] + 2*i - 4))
        mf += m
    kk = 0
    for ins in s2_dma(3):
        lo = idx[1] + 2 + kk*6
        dm.append(F(ins, lo, lo + 6))
        if ins.kind == "dma": kk += 1
    wch = [F(x, idx[1] + 4 + 2*i, idx[2] + 20) for i, x in enumerate(w23[16:])]
    L += place(mf, [rdch, dm, wch], 8, fixed)
    L += PL(nst("gemm2"))
    T = [f"s_lshl_b32 s28, s{S_B}, 2", f"s_add_u32 s28, s28, s{S_C}", "s_mul_i32 s28, s28, 20", f"s_mul_i32 s29, s{S_W}, 5", "s_add_u32 s28, s28, s29",
         "s_lshl_b32 s28, s28, 3", f"s_add_u32 s28, s28, s{S_G}", "s_lshl_b32 s28, s28, 10", f"s_add_u32 s28, s28, {WS_OUTP}"]
    for n in range(5):
        a = V_O + n*4; b = V_O + (5+n)*4
        t = 28 + n*4
        T += [f"v_cvt_pk_bf16_f32 v{t}, v{a}, v{a+1}", f"v_cvt_pk_bf16_f32 v{t+1}, v{a+2}, v{a+3}",
              f"v_cvt_pk_bf16_f32 v{t+2}, v{b}, v{b+1}", f"v_cvt_pk_bf16_f32 v{t+3}, v{b+2}, v{b+3}",
              f"s_add_u32 s29, s28, {n*8192}", f"buffer_store_dwordx4 v[{t}:{t+3}], v{V_L16}, s[{S_WS}:{S_WS+3}], s29 offen sc1"]
    return L + PL(T)

def stage3(opt):
    L = [f"s_lshl_b32 s28, s{S_B}, 2", f"s_add_u32 s28, s28, s{S_C}", "s_mov_b32 s67, s28", "s_lshl_b32 s28, s28, 2", f"s_add_u32 s29, s28, s{S_W}", "s_lshl_b32 s29, s29, 6",
         f"s_add_u32 s29, s29, {WS_FLAG+F3}", f"s_lshl_b32 s30, s{S_G}, 3", "s_add_u32 s31, s29, s30"]
    L += selector(48)
    L += ["s_waitcnt vmcnt(0)"] + wave_flag(31, 0) + nst("flag3")
    L += [f"s_lshl_b32 s28, s{S_G}, 2", f"s_add_u32 s28, s28, s{S_W}", "s_cmp_lt_u32 s28, 20", "s_cbranch_scc0 L_done", "s_mov_b32 s65, s28",
          "s_mul_i32 s28, s65, 52", "s_lshr_b32 s92, s28, 8",
          "s_lshl_b32 s28, s67, 2", "s_add_u32 s28, s28, s92", "s_lshl_b32 s28, s28, 6", f"s_add_u32 s31, s28, {WS_FLAG+F3}"]
    L += poll(31, 7) + nst("poll3")
    L += ["s_mul_i32 s29, s67, 20", "s_add_u32 s29, s29, s65", "s_lshl_b32 s29, s29, 13", f"s_add_u32 s29, s29, {WS_OUTP}", "s_add_u32 s30, s29, 4096"]
    for gp in range(8):
        L.append(f"buffer_load_dwordx4 v[{84+4*gp}:{87+4*gp}], v{V_L16}, s[{S_WS}:{S_WS+3}], s{29 if gp < 4 else 30} offen offset:{(gp&3)*1024} sc1")
    for gp in range(8):
        L += [f"v_mfma_f32_16x16x32_bf16 v[60:63], v[48:51], v[{84+4*gp}:{87+4*gp}], {'0' if gp == 0 else 'v[60:63]'}",
              f"v_mfma_f32_16x16x32_bf16 v[64:67], v[52:55], v[{84+4*gp}:{87+4*gp}], {'0' if gp == 0 else 'v[64:67]'}"]
    L += ["s_mul_i32 s29, s92, 5", "s_sub_u32 s29, s65, s29",
          "s_lshl_b32 s29, s29, 14", "s_lshl_b32 s28, s92, 6", "s_add_u32 s28, s28, s29", f"s_lshl_b32 s29, s{S_C}, 8", "s_add_u32 s28, s28, s29",
          f"s_mul_i32 s29, s{S_B}, 81920", "s_add_u32 s28, s28, s29", "v_lshlrev_b32 v4, 10, v2", "v_lshl_add_u32 v4, v3, 3, v4"]
    L += ["v_cvt_pk_bf16_f32 v68, v60, v61", "v_cvt_pk_bf16_f32 v69, v62, v63", "v_cvt_pk_bf16_f32 v70, v64, v65", "v_cvt_pk_bf16_f32 v71, v66, v67",
          f"buffer_store_dwordx2 v[68:69], v4, s[{S_OUT}:{S_OUT+3}], s28 offen", f"buffer_store_dwordx2 v[70:71], v4, s[{S_OUT}:{S_OUT+3}], s28 offen offset:32"]
    L += ["L_done:"]
    return L

def maxpass(late1=False):
    L = ["s_waitcnt vmcnt(0) lgkmcnt(0)", "s_barrier"]
    MXR = [76, 77, 78, 79, 80]
    for n in range(5): L.append(f"v_mov_b32 v{MXR[n]}, 0xff800000")
    L += ["s_mov_b32 s90, 0", "L_maxloop:", f"s_lshl_b32 s{S_KOFF}, s90, 13", f"s_add_u32 s{S_KOFF2}, s{S_KOFF}, 4096"]
    for half in range(2):
        L.append(f"s_add_u32 m0, s{S_M0K}, {half*4096}")
        for i in range(4): L.append(dma(f"v{V_KD+i}", f"s[{S_KSRD}:{S_KSRD+3}]", f"s{S_KOFF if half == 0 else S_KOFF2}", i*1024, ("X", 0)))
    L += ["s_waitcnt vmcnt(0)"]
    L += k_reads(0)
    L += ["s_waitcnt lgkmcnt(0)"]
    for n in range(5):
        for s in range(2):
            for j in range(4):
                d = R("v", V_S + s*4, 4)
                L.append(mfma16(d, Kf(s, j), Qf(n, j), "0" if j == 0 else d))
        m = MXR[n]
        L += [f"v_max3_f32 v{m}, v{V_S}, v{V_S+1}, v{m}", f"v_max3_f32 v{m}, v{V_S+2}, v{V_S+3}, v{m}",
              f"v_max3_f32 v{m}, v{V_S+4}, v{V_S+5}, v{m}", f"v_max3_f32 v{m}, v{V_S+6}, v{V_S+7}, v{m}"]
    L += ["s_add_u32 s90, s90, 1", "s_cmp_lt_u32 s90, 16", "s_cbranch_scc1 L_maxloop"]
    for n in range(5):
        m = MXR[n]
        L += [f"v_mov_b32 v4, v{m}", f"v_permlane16_swap_b32 v4, v{m}", f"v_max_f32 v{m}, v4, v{m}",
              f"v_mov_b32 v4, v{m}", f"v_permlane32_swap_b32 v4, v{m}", f"v_max_f32 v{m}, v4, v{m}"]
    MB = 155648
    L += ["v_lshlrev_b32 v4, 2, v0", f"s_mul_i32 s29, s{S_W}, 1280", "v_add_u32 v5, s29, v4", f"v_add_u32 v5, {MB}, v5", f"v_add_u32 v4, {MB}, v4"]
    for n in range(5): L.append(f"ds_write_b32 v5, v{MXR[n]} offset:{n*256}")
    L += ["s_waitcnt lgkmcnt(0)", "s_barrier"]
    for n in range(5):
        for w in range(4): L.append(f"ds_read_b32 v{V_S+w}, v4 offset:{w*1280+n*256}")
        L += ["s_waitcnt lgkmcnt(0)", f"v_max3_f32 v5, v{V_S}, v{V_S+1}, v{V_S+2}", f"v_max_f32 v5, v5, v{V_S+3}"]
        for r in range(4): L.append(f"v_sub_f32 v{V_NEGM+n*4+r}, 0, v5")
    L += k_dma(0) + v_dma(0) + ([] if late1 else k_dma(1) + v_dma(1))
    return L

def kernel(opt):
    st = opt.get("stamps")
    L = setup0(opt)
    if opt.get("stp"):
        L += [f"s_mov_b32 s{70+i}, 0" for i in range(20)]
    L += stampw(0, st)
    L += nonce_publish()
    L += ["L_restart:"]
    L += setup1()
    if opt.get("pt"):
        L += ["v_mov_b32 v4, 0", "s_mov_b64 exec, 1",
              f"buffer_load_dword v255, v4, s[{S_KSRD}:{S_KSRD+3}], 0 offen", f"buffer_load_dword v255, v4, s[{S_VSRD}:{S_VSRD+3}], 0 offen"]
        if opt["pt"] >= 2:
            L += [f"s_lshl_b32 s28, s{S_G}, 19", f"buffer_load_dword v255, v4, s[{S_WOSRD}:{S_WOSRD+3}], s28 offen"]
        if opt["pt"] >= 3:
            L += [f"s_mov_b32 s28, {WS_FLAG + 0x80000}", f"buffer_load_dword v255, v4, s[{S_WS}:{S_WS+3}], s28 offen",
                  f"s_mov_b32 s28, {0x2180000}", f"buffer_load_dword v255, v4, s[{S_WS}:{S_WS+3}], s28 offen",
                  f"s_mov_b32 s28, {0x2780000}", f"buffer_load_dword v255, v4, s[{S_WS}:{S_WS+3}], s28 offen"]
        L += ["s_mov_b64 exec, -1"]
    L += qp_dma(0)
    L += qp_lanebases()
    L += qp_dma(1)
    L += ring_addrs()
    for i in range(4): L += ["v_mov_b32 v1, 0x3f803f80", f"v_accvgpr_write_b32 a{A_ONE+i}, v1"]
    for i in range(20): L.append(f"v_mov_b32 v{V_NEGM+i}, 0")
    L += stamp(1, st)
    L += qproj(opt)
    L += stamp(2, st)
    L += q_exchange(opt)
    S1, n1 = finalize(L)
    M = [f"s_cmp_eq_u32 s{S_MODE}, 0", "s_cbranch_scc1 L_attn"] + maxpass(opt.get('late1')) + ["L_attn:"] + pre_attn(opt.get('late1'))
    S1b, n1b = finalize(M)
    vmq = [("K", 0)]*8 + [("V", 0)]*8 + ([] if opt.get("late1") else [("K", 1)]*8 + [("V", 1)]*8)
    kr0 = k_reads(0); kr0[0].need_vm = [("K", 0)]
    body = PL(stampw(4, st)) + kr0 + build(opt)
    S2, _, _ = insert_waits(body, vm_outstanding=vmq)
    S2, n2 = check_hazards(S2)
    T = ["s_nop 7"] + stampw(5, st)
    T = PL(T) + PL(stage1(opt)) + stage2(opt) + PL(stage3(opt))
    E = []
    if st:
        E += ["s_memtime s[88:89]", "s_memrealtime s[90:91]", "s_waitcnt lgkmcnt(0)",
              "s_lshl_b32 s28, s2, 2", f"s_add_u32 s28, s28, s{S_W}", "s_lshl_b32 s28, s28, 6", f"s_add_u32 s28, s28, {WS_STAMP}", "v_mov_b32 v2, s28"]
        if MS[0]: E += ["s_mov_b32 s88, s86"]
        if STP[0]: E += ["s_mov_b32 s86, s88"]
        for k in range(9):
            E += [f"s_sub_u32 s29, s{72+2*k}, s{70+2*k}", "v_mov_b32 v3, s29", f"buffer_store_dword v3, v2, s[{S_WS}:{S_WS+3}], 0 offen offset:{4*k}", "s_nop 1"]
        for k, s in ((12, "s68"), (13, "s90")):
            E += [f"v_mov_b32 v3, {s}", f"buffer_store_dword v3, v2, s[{S_WS}:{S_WS+3}], 0 offen offset:{4*k}", "s_nop 1"]
    E += ["s_waitcnt vmcnt(0)", "s_endpgm", "L_fallback:", f"s_mov_b32 s{S_MODE}, 1", "s_waitcnt vmcnt(0) lgkmcnt(0)", "s_barrier", "s_branch L_restart", "L_end:", "s_endpgm"]
    S3, n3 = finalize(T + PL(E))
    print(f"; nops inserted {n1} {n1b} {n2} {n3}", file=sys.stderr)
    return emit(S1) + "\n" + emit(S1b) + "\n" + emit(S2) + "\n" + emit(S3) + "\n"

def gen(opt):
    mb.OPT["flags"] = opt.get("flags", ""); mb.OPT["rot"] = opt.get("rot", True); mb.OPT["share_off"] = opt.get("share_off", True)
    import sched as _s; _s.MERGE[0] = opt.get("merge", 0)
    MS[0] = (4, 5) if opt.get("mainstamps") else None
    STP[0] = opt.get("stp")
    hdr = open("standalone__gqa_block_cached__near_ridge.s.ref").read().split("; Override")[0]
    s = hdr + "; @launch grid=(256,1,1) block=(256,1,1) lds=163840\n"
    s += f'.amdgcn_target "amdgcn-amd-amdhsa--gfx950"\n.text\n.globl {KN}\n.p2align 8\n.type {KN},@function\n{KN}:\n'
    s += kernel(opt)
    s += footer(vgpr=512, accum=256, name=KN)
    return s

if __name__ == "__main__":
    for nm, o in {"a13": {"merge": 130}, "a14p1": {"merge": 130, "pt": 1}, "a14p2": {"merge": 130, "pt": 2}, "a14p3": {"merge": 130, "pt": 3}}.items():
        open(nm + ".s", "w").write(gen(o))
        o2 = dict(o); o2["stamps"] = True
        open(nm + "_st.s", "w").write(gen(o2))
```

```python
import sys, struct, math
from asmlib import *
from sched import *
import maina2 as mb
from maina2 import *

KN = "standalone__gqa_block_cached__near_ridge_kernel"
CSCALE = struct.unpack("<I", struct.pack("<f", math.log2(math.e)/math.sqrt(128.0)))[0]

WS_QX   = 0x0000000
WS_PART = 0x0600000
WS_LP   = 0x1B00000
WS_OF   = 0x1C00000
WS_OUTP = 0x2200000
WS_FLAG = 0x2800000
WS_MX   = 0x2900000
WS_STAMP= 0x1400000 + 0x1800000
WS_SIZE = 0x4000000
FQ, FQB, F1, F1B, F2, FM, F3 = 0, 0x4000, 0x8000, 0xC000, 0x10000, 0x14000, 0x18000
S_W, S_B, S_C, S_G = 20, 21, 22, 23
S_MODE = 27
S_X, S_WQ, S_WS, S_OUT, S_DBG = 32, 36, 40, 56, 60
S_NONCE = 64
S_GRP = 65
S_ROT = 67
QP_W = [110592, 0, 57344, 110592]
QP_X = [143360, 32768, 90112, 143360]
QBUF = 131072
V_XD = 60; V_WQD = 65; V_WB = 69; V_XB = 56
V_QD = 84
QA = [164, 200]; QB = [172, 208]
V_QWA = (250, 251); V_QXA = (48, 52)
V_NONCE = 253

STP = [None]
def nst(name):
    if STP[0] and name in STP[0]:
        i = STP[0].index(name); return [f"s_memtime s[{70+2*i}:{71+2*i}]"]
    return []
MS = [None]
def stamp(i, on):
    if STP[0] is not None: return nst({0:'start',1:'setup',2:'qproj',3:'qx',4:'main0',5:'main1',6:'cw',7:'cr',8:'own'}[i])
    if MS[0]:
        if i == MS[0][0]: return ['s_memtime s[70:71]']
        if i == MS[0][1]: return ['s_memtime s[86:87]']
        return []
    return [f"s_memtime s[{70+2*i}:{71+2*i}]"] if on else []
def stampw(i, on):
    if STP[0] is not None:
        r = stamp(i, on)
        return r + ['s_waitcnt lgkmcnt(0)'] if r else []
    if MS[0]:
        r = stamp(i, on)
        return r + ["s_waitcnt lgkmcnt(0)"] if r else []
    return [f"s_memtime s[{70+2*i}:{71+2*i}]", "s_waitcnt lgkmcnt(0)"] if on else []

_uid = [0]
def uid():
    _uid[0] += 1; return _uid[0]

def setup0(opt):
    L = ["s_cmp_ge_u32 s2, 256", "s_cbranch_scc1 L_end",
         "s_load_dwordx8 s[4:11], s[0:1], 0", "s_load_dwordx4 s[44:47], s[0:1], 32", "s_load_dwordx4 s[48:51], s[0:1], 48"]
    if opt.get("stamps"): L += ["s_memrealtime s[68:69]"]
    L += ["v_lshrrev_b32 v1, 6, v0", "v_and_b32 v0, 63, v0", f"v_readfirstlane_b32 s{S_W}, v1",
          f"s_and_b32 s{S_G}, s2, 7", f"s_lshr_b32 s{S_C}, s2, 3", f"s_and_b32 s{S_C}, s{S_C}, 3", f"s_lshr_b32 s{S_B}, s2, 5",
          f"s_lshl_b32 s{S_GRP}, s{S_B}, 3", f"s_add_u32 s{S_GRP}, s{S_GRP}, s{S_G}",
          f"s_mov_b32 s{S_MODE}, 0", f"s_mov_b32 s{S_NONCE}, 0", "s_waitcnt lgkmcnt(0)"]
    L += [f"s_mul_i32 s28, s{S_B}, 81920", f"s_add_u32 s{S_X}, s4, s28", f"s_addc_u32 s{S_X+1}, s5, 0", f"s_and_b32 s{S_X+1}, s{S_X+1}, 0xffff",
          f"s_mov_b32 s{S_X+2}, 81920", f"s_mov_b32 s{S_X+3}, 0x20000"]
    L += srd(S_WQ, 10, 512*4096*2)
    L += [f"s_lshl_b32 s28, s{S_GRP}, 19", f"s_lshl_b32 s29, s{S_W}, 17", "s_add_u32 s28, s28, s29"]
    L += ["s_add_u32 s12, s6, s28", "s_addc_u32 s13, s7, 0", "s_and_b32 s13, s13, 0xffff", "s_mov_b32 s14, 0x20000", "s_mov_b32 s15, 0x20000"]
    L += ["s_add_u32 s16, s8, s28", "s_addc_u32 s17, s9, 0", "s_and_b32 s17, s17, 0xffff", "s_mov_b32 s18, 0x20000", "s_mov_b32 s19, 0x20000"]
    L += srd(S_WS, 50, WS_SIZE) + srd(S_WOSRD, 44, 4096*512*2) + srd(S_OUT, 46, 8*80*512*2) + srd(S_DBG, 48, 256)
    return L

def setup1():
    L = ["v_and_b32 v2, 15, v0", "v_lshrrev_b32 v3, 4, v0", f"v_lshlrev_b32 v{V_L16}, 4, v0"]
    L += ["v_xor_b32 v4, v2, v3", f"s_lshl_b32 s28, s{S_W}, 4", "v_add_u32 v6, s28, v3"]
    for i in range(4):
        L += [f"v_xor_b32 v5, {4*i}, v4", "v_lshlrev_b32 v5, 4, v5", "v_lshl_add_u32 v5, v6, 10, v5", f"v_add_u32 v{V_XD+i}, {i*3072}, v5"]
    L += [f"s_lshl_b32 s28, s{S_W}, 2", "v_xor_b32 v5, s28, v4", "v_lshlrev_b32 v5, 4, v5", "s_add_u32 s28, s28, 64", "v_add_u32 v6, s28, v3", f"v_lshl_add_u32 v{V_XD+4}, v6, 10, v5"]
    L += [f"s_lshl_b32 s28, s{S_W}, 5", "v_add_u32 v4, s28, v3", "v_lshlrev_b32 v5, 2, v3", "v_xor_b32 v5, v5, v2", "v_lshlrev_b32 v5, 4, v5", "v_lshl_add_u32 v5, v4, 13, v5"]
    for i in range(4): L.append(f"v_add_u32 v{V_WQD+i}, {i*31744}, v5")
    L += [f"s_add_u32 s28, s{S_C}, s{S_B}", f"s_and_b32 s{S_ROT}, s28, 3", f"s_lshr_b32 s28, s{S_B}, 2", "s_lshl_b32 s90, s28, 17", "s_lshl_b32 s91, s28, 12"]
    L += [f"s_lshl_b32 s28, s{S_G}, 2", f"s_add_u32 s28, s28, s{S_C}", "s_lshl_b32 s31, s28, 8"]
    return L

def qp_dma(c):
    tag = ("C", c)
    L = [f"s_add_u32 s28, s{S_ROT}, {c}", "s_and_b32 s28, s28, 3", "s_lshl_b32 s29, s28, 8",
         f"s_lshl_b32 s30, s{S_W}, 12", f"s_add_u32 m0, s30, {QP_X[c]}"]
    for i in range(4): L.append(dma(f"v{V_XD+i}", f"s[{S_X}:{S_X+3}]", "s29", i*1024, tag))
    L += [f"s_lshl_b32 s30, s{S_W}, 10", f"s_add_u32 m0, s30, {QP_X[c] + 16384}"]
    L.append(dma(f"v{V_XD+4}", f"s[{S_X}:{S_X+3}]", "s29", 0, tag))
    L += ["s_lshl_b32 s29, s28, 20", "s_add_u32 s29, s29, s31", "s_add_u32 s28, s29, s90", f"s_lshl_b32 s30, s{S_W}, 13", f"s_add_u32 s30, s30, {QP_W[c]}", "s_add_u32 m0, s30, s91"]
    for i in range(4): L.append(dma(f"v{V_WQD+i}", f"s[{S_WQ}:{S_WQ+3}]", "s28", i*1024, tag))
    L += ["s_xor_b32 s28, s90, 131072", "s_add_u32 s28, s28, s29", "s_xor_b32 s29, s91, 4096", "s_add_u32 m0, s30, s29"]
    for i in range(4): L.append(dma(f"v{V_WQD+i}", f"s[{S_WQ}:{S_WQ+3}]", "s28", i*1024, tag))
    return L

def qp_lanebases():
    L = ["v_lshrrev_b32 v4, 2, v2", f"v_xor_b32 v5, s{S_W}, v4", "v_lshlrev_b32 v5, 6, v5", "v_lshl_add_u32 v6, v3, 3, v4", "v_lshl_add_u32 v5, v6, 8, v5",
         "v_and_b32 v6, 3, v0", f"v_lshl_add_u32 v{V_WB}, v6, 4, v5"]
    for ks in range(4):
        L += [f"v_add_u32 v5, {4*ks}, v3", "v_xor_b32 v5, v5, v2", "v_lshlrev_b32 v5, 4, v5", f"v_lshl_add_u32 v{V_XB+ks}, v2, 8, v5"]
    return L

def ring_addrs():
    L = [f"s_lshl_b32 s{S_M0K}, s{S_W}, 13"]
    L += ["v_xor_b32 v6, v2, v3"]
    for i in range(4):
        L += [f"v_xor_b32 v5, {4*i}, v6", "v_lshlrev_b32 v5, 4, v5", f"v_lshl_add_u32 v{V_KD+i}, v3, 8, v5"]
    for i in range(2):
        L += [f"v_add_u32 v5, {4*i}, v3", "v_lshlrev_b32 v5, 1, v5", "v_xor_b32 v5, v5, v2", "v_lshlrev_b32 v5, 4, v5", f"v_lshl_add_u32 v{V_VD+i}, v3, 8, v5"]
    for j in range(4):
        L += [f"v_add_u32 v5, {4*j}, v3", "v_xor_b32 v5, v5, v2", "v_lshlrev_b32 v5, 4, v5", "v_lshl_add_u32 v5, v2, 8, v5", f"v_add_u32 v{V_KA+j}, s{S_M0K}, v5"]
    L += ["v_lshrrev_b32 v4, 2, v2", "v_lshl_add_u32 v4, v3, 2, v4", "v_and_b32 v5, 7, v4", "v_lshlrev_b32 v5, 1, v5",
          "v_and_b32 v6, 3, v0", "v_lshrrev_b32 v6, 1, v6", "v_and_b32 v7, 1, v0", "v_lshlrev_b32 v7, 3, v7",
          "v_lshl_add_u32 v7, v4, 8, v7"]
    L += [f"s_lshl_b32 s28, s{S_W}, 2"]
    for ep in range(2):
        L += [f"s_add_u32 s29, s28, {2*ep}", "v_add_u32 v1, s29, v6", "v_xor_b32 v1, v1, v5", f"v_lshl_add_u32 v{V_WAX+ep}, v1, 4, v7"]
    L += [f"s_add_u32 s28, s{S_M0K}, 65536", "v_add_u32 v7, s28, v7"]
    for dt in range(8):
        L += [f"v_add_u32 v1, {2*dt}, v6", "v_xor_b32 v1, v1, v5", f"v_lshl_add_u32 v{V_VA+dt}, v1, 4, v7"]
    for i in range(4):
        L += [f"v_add_u32 v5, {4*(i&1)}, v3", "v_lshlrev_b32 v5, 1, v5", "v_xor_b32 v5, v5, v2", "v_lshlrev_b32 v5, 4, v5",
              f"v_add_u32 v6, {4*i}, v3", "v_lshl_add_u32 v5, v6, 10, v5", f"v_subrev_u32 v{V_WD+i}, {i*1024}, v5"]
    if mb.OPT.get("rot"):
        def order(j, ph):
            o = []; bounds = [0] + [x for x in range(ph, 16, 4) if x > 0] + [16]
            for a_, b_ in zip(bounds[:-1], bounds[1:]):
                n_ = b_ - a_
                o += [a_ + ((i + j) % n_) for i in range(n_)]
            return o
        L += [f"s_and_b32 s28, s{S_B}, 3", "s_lshl_b32 s28, s28, 2", f"s_add_u32 s28, s28, s{S_C}", f"s_mov_b32 s{S_TAB}, 0", f"s_mov_b32 s{S_TAB+1}, 0"]
        for ph in range(4):
            for j in range(4):
                o = order(j, ph); assert sorted(o) == list(range(16))
                lo = sum(v << (4*i) for i, v in enumerate(o[:8])); hi = sum(v << (4*i) for i, v in enumerate(o[8:]))
                L += [f"s_cmp_eq_u32 s28, {ph*4+j}", f"s_cselect_b32 s{S_TAB}, {hex(lo)}, s{S_TAB}", f"s_cselect_b32 s{S_TAB+1}, {hex(hi)}, s{S_TAB+1}"]
    L += [f"s_lshl_b32 s28, s{S_B}, 16", f"s_lshl_b32 s29, s{S_W}, 14", "s_add_u32 s28, s28, s29", f"s_lshl_b32 s29, s{S_G}, 19", "s_add_u32 s28, s28, s29",
          f"s_lshl_b32 s29, s{S_C}, 8", f"s_add_u32 s{S_PLOFF}, s28, s29", f"s_lshl_b32 s28, s{S_W}, 13", f"s_add_u32 s{S_PLM0}, s28, 131072"]
    for hr in range(4):
        L += [f"s_add_u32 s28, s{S_C}, {hr}", "s_and_b32 s28, s28, 3", "s_lshl_b32 s28, s28, 17", f"s_lshl_b32 s29, s{S_G}, 19", "s_add_u32 s28, s28, s29",
              f"s_lshl_b32 s29, s{S_C}, 8", "s_add_u32 s28, s28, s29", f"s_lshl_b32 s29, s{S_W}, 15", f"s_add_u32 s{S_WOB[hr]}, s28, s29"]
    return L

def qp_reads(c, ks):
    st = ks % 2; xa = V_QXA[c % 2] + ks; wa = V_QWA[c % 2]
    r = [P(f"ds_read_b128 {R('v', QB[st]+4*n, 4)}, v{xa} offset:{n*4096}") for n in range(5)]
    for e in range(2):
        for hh in range(2):
            r.append(P(f"ds_read_b64_tr_b16 {R('v', QA[st]+e*4+2*hh, 2)}, v{wa} offset:{ks*8192+hh*1024+e*8}"))
    return [r[5], r[6], r[0], r[7], r[8], r[1], r[2], r[3], r[4]]
def qp_addr(c):
    return PL([f"v_add_u32 v{V_QWA[c%2]}, {QP_W[c]}, v{V_WB}"] + [f"v_add_u32 v{V_QXA[c%2]+ks}, {QP_X[c]}, v{V_XB+ks}" for ks in range(4)])
def qp_mfmas(c, ks):
    r = []
    st = ks % 2
    for n in range(5):
        for e in range(2):
            d = R('v', V_QD+(e*5+n)*4, 4)
            cc = "0" if (c == 0 and ks == 0) else d
            r.append(P(f"v_mfma_f32_16x16x32_bf16 {d}, {R('v', QA[st]+e*4, 4)}, {R('v', QB[st]+4*n, 4)}, {cc}"))
    return r

def qproj(opt):
    mf = []; idx = {}
    for c in range(4):
        for ks in range(4):
            idx[(c, ks)] = len(mf); mf += qp_mfmas(c, ks)
    fixed = {}; rd = []; dm = []
    pre = [P("s_barrier", need_vm=[("C", 0)])] + qp_addr(0) + qp_reads(0, 0)
    order = [(c, ks) for c in range(4) for ks in range(4)]
    for gi in range(1, 16):
        c, ks = order[gi]; pc, pks = order[gi-1]
        start = idx[(pc, pks)]
        if ks == 0:
            fixed[start] = [P("s_waitcnt lgkmcnt(0)"), P("s_barrier", need_vm=[("C", c)])] + qp_addr(c)
        for k, ins in enumerate(qp_reads(c, ks)): rd.append(F(ins, start + k, idx[(c, ks)] - 1))
    def sched(items, start, end):
        n = sum(1 for i in items if i.kind in ("dma", "vmem"))
        step = max(1, (end - start) // max(n, 1))
        out = []; k = 0
        for ins in items:
            lo = min(start + k*step, end - 1)
            out.append(F(ins, lo, lo + step))
            if ins.kind in ("dma", "vmem"): k += 1
        return out
    dm += sched(PL(qp_dma(2)), idx[(0, 0)], idx[(0, 3)])
    dm += sched(PL(qp_dma(3)), idx[(0, 3)] + 1, idx[(1, 3)])
    nl = [] if opt.get("latenonce", True) else PL([f"s_lshl_b32 s28, s{S_B}, 5", "v_mov_b32 v254, s28", f"buffer_load_dword v{V_NONCE}, v254, s[{S_DBG}:{S_DBG+3}], 0 offen sc1"])
    dm += sched(nl + k_dma(0), idx[(1, 3)] + 1, idx[(2, 3)])
    dm += sched(v_dma(0), idx[(2, 3)] + 1, idx[(3, 3)] + 8)
    return pre + place(mf, [rd, dm], 8, fixed)

def nonce_publish():
    return [f"s_or_b32 s28, s{S_G}, s{S_C}", f"s_or_b32 s28, s28, s{S_W}", "s_cmp_eq_u32 s28, 0", "s_cbranch_scc0 L_not_leader",
            "s_memrealtime s[28:29]", "s_waitcnt lgkmcnt(0)", "s_or_b32 s28, s28, 1", "v_mov_b32 v5, s28", f"s_lshl_b32 s29, s{S_B}, 5", "v_mov_b32 v4, s29",
            f"buffer_store_dword v5, v4, s[{S_DBG}:{S_DBG+3}], 0 offen sc1", "L_not_leader:"]
def nonce_code(vreg=None):
    return [f"s_cmp_lg_u32 s{S_NONCE}, 0", "s_cbranch_scc1 L_have_nonce", f"v_readfirstlane_b32 s{S_NONCE}, v{vreg or V_NONCE}",
            f"s_cmp_lg_u32 s{S_NONCE}, 0", "s_cbranch_scc1 L_have_nonce",
            f"s_lshl_b32 s28, s{S_B}, 5", "v_mov_b32 v4, s28", "s_mov_b32 s29, 0", "L_nonce_poll:",
            f"buffer_load_dword v5, v4, s[{S_DBG}:{S_DBG+3}], 0 offen sc1", "s_waitcnt vmcnt(0)", f"v_readfirstlane_b32 s{S_NONCE}, v5",
            f"s_cmp_lg_u32 s{S_NONCE}, 0", "s_cbranch_scc1 L_have_nonce", "s_add_u32 s29, s29, 1", "s_cmp_lt_u32 s29, 0x40000", "s_cbranch_scc0 L_have_nonce",
            "s_sleep 2", "s_branch L_nonce_poll", "L_have_nonce:"]

def wave_flag(addr_s, payload):
    return [f"v_mov_b32 v4, s{addr_s}", f"v_mov_b32 v6, s{S_NONCE}", f"v_mov_b32 v7, {payload}", "s_mov_b64 exec, 1",
            f"buffer_store_dwordx2 v[6:7], v4, s[{S_WS}:{S_WS+3}], 0 offen sc1", "s_mov_b64 exec, -1"]
def poll(base_s, mask, shift=3, lane_off=0):
    u = uid()
    return [f"v_and_b32 v4, {mask}, v0", f"v_lshlrev_b32 v4, {shift}, v4", f"v_add_u32 v4, s{base_s}, v4", "s_mov_b32 s29, 0", f"L_pf{u}:",
            f"buffer_load_dwordx2 v[6:7], v4, s[{S_WS}:{S_WS+3}], 0 offen sc1", "s_waitcnt vmcnt(0)",
            f"v_cmp_ne_u32 vcc, s{S_NONCE}, v6", f"s_cbranch_vccz L_pf{u}_ok", "s_add_u32 s29, s29, 1", "s_cmp_lt_u32 s29, 0x40000",
            f"s_cbranch_scc1 L_pf{u}", f"L_pf{u}_ok:"]
def flagline(area_a, area_b=None):
    L = [f"s_lshl_b32 s30, s{S_GRP}, 7", f"s_add_u32 s30, s30, {WS_FLAG}"]
    if area_b is None: L += [f"s_add_u32 s30, s30, {area_a}"] if area_a else []
    else: L += [f"s_mul_i32 s29, s{S_MODE}, {area_b - area_a}", "s_add_u32 s30, s30, s29"] + ([f"s_add_u32 s30, s30, {area_a}"] if area_a else [])
    return L

def q_exchange(opt):
    st = opt.get("stamps")
    L = ["s_waitcnt lgkmcnt(0)", "s_barrier"]
    if not opt.get("late1"): L += k_dma(1)
    L += [f"s_mov_b32 s29, {hex(CSCALE)}", f"s_lshl_b32 s28, s{S_W}, 10", f"v_add_u32 v4, s28, v{V_L16}", f"v_add_u32 v4, {QBUF}, v4"]
    for n in range(5):
        d0 = V_QD + n*4; d1 = V_QD + (5+n)*4
        for r in range(4): L += [f"v_mul_f32 v{d0+r}, s29, v{d0+r}", f"v_mul_f32 v{d1+r}, s29, v{d1+r}"]
        t = 164 + n*4
        L += [f"v_cvt_pk_bf16_f32 v{t}, v{d0}, v{d0+1}", f"v_cvt_pk_bf16_f32 v{t+1}, v{d0+2}, v{d0+3}",
              f"v_cvt_pk_bf16_f32 v{t+2}, v{d1}, v{d1+1}", f"v_cvt_pk_bf16_f32 v{t+3}, v{d1+2}, v{d1+3}",
              f"ds_write_b128 v4, v[{t}:{t+3}] offset:{n*4096}"]
    if not opt.get("late1"): L += v_dma(1)
    L += ["s_waitcnt lgkmcnt(0)", "s_barrier"]
    L += stamp(3, st)
    L += [f"v_add_u32 v4, {QBUF}, v{V_L16}"]
    for n in range(5):
        for j in range(4): L.append(f"ds_read_b128 {Qf(n, j)}, v4 offset:{(n*4+j)*1024}")
    return L

def selector(base):
    return ["v_lshrrev_b32 v4, 2, v2", "v_cmp_eq_u32 vcc, v4, v3", "v_and_b32 v5, 1, v0", "v_lshlrev_b32 v5, 4, v5", "v_mov_b32 v6, 0x3f80", "v_lshlrev_b32 v6, v5, v6",
            "v_cndmask_b32 v6, 0, v6, vcc", "v_and_b32 v5, 2, v0", "v_cmp_eq_u32 vcc, 0, v5",
            f"v_cndmask_b32 v{base}, 0, v6, vcc", f"v_cndmask_b32 v{base+1}, v6, 0, vcc",
            f"v_mov_b32 v{base+2}, 0", f"v_mov_b32 v{base+3}, 0", f"v_mov_b32 v{base+4}, 0", f"v_mov_b32 v{base+5}, 0",
            f"v_mov_b32 v{base+6}, v{base}", f"v_mov_b32 v{base+7}, v{base+1}"]

CBUF = 0
CL = 81920
OLOC = [65536, 86016, 106496, 126976]
def pre_attn(late1=False, latenonce=True):
    L = [] if latenonce else ["s_waitcnt vmcnt(16)" if late1 else "s_waitcnt vmcnt(32)"] + nonce_code()
    L += [f"v_add_u32 v{V_CW}, s{S_M0K}, v{V_L16}", "v_lshlrev_b32 v4, 2, v0", f"s_add_u32 s28, s{S_M0K}, {65536+4096}", f"v_add_u32 v{V_CLW}, s28, v4"]
    return L

def stage1(opt):
    st = opt.get("stamps")
    L = [f"v_add_u32 v44, 0x10000, v{V_CW}"]
    if opt.get("latenonce", True):
        L += [f"s_lshl_b32 s28, s{S_B}, 5", "v_mov_b32 v83, s28", f"buffer_load_dword v82, v83, s[{S_DBG}:{S_DBG+3}], 0 offen sc1"]
    L += combine_writes(4)
    if not opt.get("early", True):
        for n in range(4): L += combine_writes(n)
    L += wo_dma(0)
    L += selector(48)
    L += [f"s_lshl_b32 s28, s{S_W}, 10", f"v_add_u32 v5, s28, v{V_L16}", f"v_add_u32 v45, 0x10000, v5", "v_lshlrev_b32 v6, 2, v0", f"v_add_u32 v6, {65536+4096}, v6"]
    L += ["s_waitcnt lgkmcnt(0)", "s_barrier"]
    L += stamp(6, st)
    PB = V_O
    DB = 164
    rd = []
    for n in range(5):
        for s_ in range(4):
            q0 = n*4
            addr = CREG[n >> 1] + s_*8192 + (n & 1)*4096
            rd.append(P(f"ds_read_b128 v[{PB+(n*4+s_)*4}:{PB+(n*4+s_)*4+3}], v{5 if addr < 65536 else 45} offset:{addr & 0xffff}"))
    lr = [P(f"ds_read_b32 v{56+4*n+s_}, v6 offset:{s_*8192+n*256}") for n in range(5) for s_ in range(4)]
    mf = []
    for n in range(5):
        for s_ in range(4):
            q = f"v[{PB+(n*4+s_)*4}:{PB+(n*4+s_)*4+3}]"
            mf += [P(f"v_mfma_f32_16x16x32_bf16 v[{DB+n*8}:{DB+n*8+3}], v[48:51], {q}, {'0' if s_ == 0 else f'v[{DB+n*8}:{DB+n*8+3}]'}"),
                   P(f"v_mfma_f32_16x16x32_bf16 v[{DB+n*8+4}:{DB+n*8+7}], v[52:55], {q}, {'0' if s_ == 0 else f'v[{DB+n*8+4}:{DB+n*8+7}]'}")]
    va = []
    for n in range(5):
        l = 56 + 4*n
        va += PL([f"v_add_f32 v{l}, v{l}, v{l+1}", f"v_add_f32 v{l+2}, v{l+2}, v{l+3}", f"v_add_f32 v{l}, v{l}, v{l+2}"])
    L += rd[:8]
    ch_rd = [F(rd[i], max(0, 2*(i-8)), 2*i - 6) for i in range(8, 20)]
    ch_lr = [F(x, 4 + i//2, 16) for i, x in enumerate(lr)]
    ch_va = [F(x, 18 + i, 38) for i, x in enumerate(va)]
    w1 = wo_dma(1)
    ch_w = []; kk = 0
    for ins in w1:
        ch_w.append(F(ins, 2 + kk*4, 39))
        if ins.kind == "dma": kk += 1
    L += place(mf, [ch_rd, ch_lr, ch_va, ch_w], 8)
    L += ["s_mov_b32 s29, 0x21800000", "s_mov_b32 s30, 0x5d800000", "s_mov_b64 s[90:91], 0"]
    for n in range(5):
        L += [f"v_cmp_nge_f32 vcc, v{56+4*n}, s29", "s_or_b64 s[90:91], s[90:91], vcc", f"v_cmp_nle_f32 vcc, v{56+4*n}, s30", "s_or_b64 s[90:91], s[90:91], vcc"]
    L += ["s_cmp_lg_u64 s[90:91], 0", "s_cselect_b32 s31, 1, 0", f"s_cmp_eq_u32 s{S_MODE}, 0", "s_cselect_b32 s31, s31, 0", "s_cmp_lg_u32 s31, 0", "s_cbranch_scc1 L_fallback"]
    for n in range(5): L.append(f"v_rcp_f32 v{56+4*n}, v{56+4*n}")
    DB = 164
    L += [f"s_lshl_b32 s28, s{S_W}, 10", f"v_add_u32 v44, s28, v{V_L16}", f"v_add_u32 v44, {OLOC[0]}, v44", f"s_lshl_b32 s29, s{S_GRP}, 2", f"s_add_u32 s29, s29, s{S_C}", "s_mul_i32 s29, s29, 20480",
          "s_add_u32 s93, s29, s28", f"s_add_u32 s93, s93, {WS_OF}"]
    L += ["s_barrier"]
    L += stamp(7, st)
    st_ = []; dw = []
    for n in range(5):
        l = 56 + 4*n; d = DB + n*8
        for r in range(8): L.append(f"v_mul_f32 v{d+r}, v{d+r}, v{l}")
        L += [f"v_cvt_pk_bf16_f32 v{d}, v{d}, v{d+1}", f"v_cvt_pk_bf16_f32 v{d+1}, v{d+2}, v{d+3}",
              f"v_cvt_pk_bf16_f32 v{d+2}, v{d+4}, v{d+5}", f"v_cvt_pk_bf16_f32 v{d+3}, v{d+6}, v{d+7}",
              f"s_add_u32 s30, s93, {n*4096}", f"buffer_store_dwordx4 v[{d}:{d+3}], v{V_L16}, s[{S_WS}:{S_WS+3}], s30 offen sc1"]
        dw.append(f"ds_write_b128 v44, v[{d}:{d+3}] offset:{n*4096}")
    L += dw
    L += wo_dma(2) + wo_dma(3)
    return L

def s2_chunk(hr, nbase):
    reads = []; mfs = []
    for j in range(4):
        for n in range(5):
            addr = OLOC[hr] + (n*4+j)*1024
            breg = 28 + ((nbase + j*5 + n) % 12)*4
            reads.append(P(f"ds_read_b128 v[{breg}:{breg+3}], v{248 + (addr >> 16)} offset:{addr & 0xffff}"))
            for ep in range(2):
                d = R('v', V_O + (ep*5+n)*4, 4)
                c = "0" if (hr == 0 and j == 0) else d
                a = A_WO[hr] + (j*2+ep)*4
                mfs.append(P(f"v_mfma_f32_16x16x32_bf16 {d}, a[{a}:{a+3}], v[{breg}:{breg+3}], {c}"))
    return reads, mfs
def s2_dma(hr):
    L = PL([f"s_add_u32 s29, s{S_C}, {hr}", "s_and_b32 s29, s29, 3", "s_mul_i32 s29, s29, 20480", "s_add_u32 s29, s29, s93", f"s_add_u32 m0, s31, {OLOC[hr]}"])
    for i in range(4): L.append(dma(f"v{V_L16}", f"s[{S_WS}:{S_WS+3}]", "s29", i*1024, ("P", hr), "sc1"))
    L += PL(["s_add_u32 s29, s29, 4096", f"s_add_u32 m0, s31, {OLOC[hr]+4096}"])
    L.append(dma(f"v{V_L16}", f"s[{S_WS}:{S_WS+3}]", "s29", 0, ("P", hr), "sc1"))
    return L

def stage2(opt):
    st = opt.get("stamps")
    L = flagline(F2)
    L += [f"s_lshl_b32 s28, s{S_C}, 2", f"s_add_u32 s28, s28, s{S_W}", "s_lshl_b32 s28, s28, 3", "s_add_u32 s31, s30, s28"]
    L += [f"v_add_u32 v76, 0x10000, v{V_WAX}", f"v_add_u32 v77, 0x10000, v{V_WAX+1}", f"v_add_u32 v78, 0x20000, v{V_WAX}", f"v_add_u32 v79, 0x20000, v{V_WAX+1}"]
    L += ["s_waitcnt vmcnt(16)"] + (nonce_code(82) if opt.get("latenonce", True) else []) + wave_flag(31, 0)
    L += ["s_waitcnt lgkmcnt(0)", "s_barrier"]
    L += [f"v_mov_b32 v248, v{V_L16}", f"v_add_u32 v249, 0x10000, v{V_L16}", f"v_add_u32 v250, 0x20000, v{V_L16}"]
    L = PL(L)
    regs_ = {0: V_WAX, 0x10000: 76, 0x20000: 78}
    L += wo_frag_reads(0, regs_) + wo_frag_reads(1, regs_)
    r0, m0 = s2_chunk(0, 0)
    AH = 6
    L += r0[:AH] + place(m0, [[F(r0[i], 2*(i-AH), 2*i - 4) for i in range(AH, 20)]], 8)
    L += PL(stamp(8, st))
    L += PL(poll(30, 15))
    L += PL(nst("poll2"))
    L += PL(["s_waitcnt lgkmcnt(0)", "s_barrier"])
    L += PL([f"s_mul_i32 s31, s{S_W}, 5120", f"s_mul_i32 s93, s{S_GRP}, 81920", "s_add_u32 s93, s93, s31", f"s_add_u32 s93, s93, {WS_OF}"])
    L += s2_dma(1) + s2_dma(2)
    w23 = wo_frag_reads(2, regs_) + wo_frag_reads(3, regs_)
    L += w23[:16]
    mf = []; idx = {}; rdch = []; dm = []; fixed = {}
    nb = 20
    for hr in (1, 2, 3):
        idx[hr] = len(mf)
        r, m = s2_chunk(hr, nb); nb += 20
        fixed[idx[hr]] = [P("s_barrier", need_vm=[("P", hr)])] + r[:AH]
        for i in range(AH, 20): rdch.append(F(r[i], idx[hr] + 2*(i-AH), idx[hr] + 2*i - 4))
        mf += m
    kk = 0
    for ins in s2_dma(3):
        lo = idx[1] + 2 + kk*6
        dm.append(F(ins, lo, lo + 6))
        if ins.kind == "dma": kk += 1
    wch = [F(x, idx[1] + 4 + 2*i, idx[2] + 20) for i, x in enumerate(w23[16:])]
    L += place(mf, [rdch, dm, wch], 8, fixed)
    L += PL(nst("gemm2"))
    T = [f"s_lshl_b32 s28, s{S_B}, 2", f"s_add_u32 s28, s28, s{S_C}", "s_mul_i32 s28, s28, 20", f"s_mul_i32 s29, s{S_W}, 5", "s_add_u32 s28, s28, s29",
         "s_lshl_b32 s28, s28, 3", f"s_add_u32 s28, s28, s{S_G}", "s_lshl_b32 s28, s28, 10", f"s_add_u32 s28, s28, {WS_OUTP}"]
    for n in range(5):
        a = V_O + n*4; b = V_O + (5+n)*4
        t = 28 + n*4
        T += [f"v_cvt_pk_bf16_f32 v{t}, v{a}, v{a+1}", f"v_cvt_pk_bf16_f32 v{t+1}, v{a+2}, v{a+3}",
              f"v_cvt_pk_bf16_f32 v{t+2}, v{b}, v{b+1}", f"v_cvt_pk_bf16_f32 v{t+3}, v{b+2}, v{b+3}",
              f"s_add_u32 s29, s28, {n*8192}", f"buffer_store_dwordx4 v[{t}:{t+3}], v{V_L16}, s[{S_WS}:{S_WS+3}], s29 offen sc1"]
    return L + PL(T)

def stage3(opt):
    L = [f"s_lshl_b32 s28, s{S_B}, 2", f"s_add_u32 s28, s28, s{S_C}", "s_mov_b32 s67, s28", "s_lshl_b32 s28, s28, 2", f"s_add_u32 s29, s28, s{S_W}", "s_lshl_b32 s29, s29, 6",
         f"s_add_u32 s29, s29, {WS_FLAG+F3}", f"s_lshl_b32 s30, s{S_G}, 3", "s_add_u32 s31, s29, s30"]
    L += selector(48)
    L += ["s_waitcnt vmcnt(0)"] + wave_flag(31, 0) + nst("flag3")
    L += [f"s_lshl_b32 s28, s{S_G}, 2", f"s_add_u32 s28, s28, s{S_W}", "s_cmp_lt_u32 s28, 20", "s_cbranch_scc0 L_done", "s_mov_b32 s65, s28",
          "s_mul_i32 s28, s65, 52", "s_lshr_b32 s92, s28, 8",
          "s_lshl_b32 s28, s67, 2", "s_add_u32 s28, s28, s92", "s_lshl_b32 s28, s28, 6", f"s_add_u32 s31, s28, {WS_FLAG+F3}"]
    L += poll(31, 7) + nst("poll3")
    L += ["s_mul_i32 s29, s67, 20", "s_add_u32 s29, s29, s65", "s_lshl_b32 s29, s29, 13", f"s_add_u32 s29, s29, {WS_OUTP}", "s_add_u32 s30, s29, 4096"]
    for gp in range(8):
        L.append(f"buffer_load_dwordx4 v[{84+4*gp}:{87+4*gp}], v{V_L16}, s[{S_WS}:{S_WS+3}], s{29 if gp < 4 else 30} offen offset:{(gp&3)*1024} sc1")
    for gp in range(8):
        L += [f"v_mfma_f32_16x16x32_bf16 v[60:63], v[48:51], v[{84+4*gp}:{87+4*gp}], {'0' if gp == 0 else 'v[60:63]'}",
              f"v_mfma_f32_16x16x32_bf16 v[64:67], v[52:55], v[{84+4*gp}:{87+4*gp}], {'0' if gp == 0 else 'v[64:67]'}"]
    L += ["s_mul_i32 s29, s92, 5", "s_sub_u32 s29, s65, s29",
          "s_lshl_b32 s29, s29, 14", "s_lshl_b32 s28, s92, 6", "s_add_u32 s28, s28, s29", f"s_lshl_b32 s29, s{S_C}, 8", "s_add_u32 s28, s28, s29",
          f"s_mul_i32 s29, s{S_B}, 81920", "s_add_u32 s28, s28, s29", "v_lshlrev_b32 v4, 10, v2", "v_lshl_add_u32 v4, v3, 3, v4"]
    L += ["v_cvt_pk_bf16_f32 v68, v60, v61", "v_cvt_pk_bf16_f32 v69, v62, v63", "v_cvt_pk_bf16_f32 v70, v64, v65", "v_cvt_pk_bf16_f32 v71, v66, v67",
          f"buffer_store_dwordx2 v[68:69], v4, s[{S_OUT}:{S_OUT+3}], s28 offen", f"buffer_store_dwordx2 v[70:71], v4, s[{S_OUT}:{S_OUT+3}], s28 offen offset:32"]
    L += ["L_done:"]
    return L

def maxpass(late1=False):
    L = ["s_waitcnt vmcnt(0) lgkmcnt(0)", "s_barrier"]
    MXR = [76, 77, 78, 79, 80]
    for n in range(5): L.append(f"v_mov_b32 v{MXR[n]}, 0xff800000")
    L += ["s_mov_b32 s90, 0", "L_maxloop:", f"s_lshl_b32 s{S_KOFF}, s90, 13", f"s_add_u32 s{S_KOFF2}, s{S_KOFF}, 4096"]
    for half in range(2):
        L.append(f"s_add_u32 m0, s{S_M0K}, {half*4096}")
        for i in range(4): L.append(dma(f"v{V_KD+i}", f"s[{S_KSRD}:{S_KSRD+3}]", f"s{S_KOFF if half == 0 else S_KOFF2}", i*1024, ("X", 0)))
    L += ["s_waitcnt vmcnt(0)"]
    L += k_reads(0)
    L += ["s_waitcnt lgkmcnt(0)"]
    for n in range(5):
        for s in range(2):
            for j in range(4):
                d = R("v", V_S + s*4, 4)
                L.append(mfma16(d, Kf(s, j), Qf(n, j), "0" if j == 0 else d))
        m = MXR[n]
        L += [f"v_max3_f32 v{m}, v{V_S}, v{V_S+1}, v{m}", f"v_max3_f32 v{m}, v{V_S+2}, v{V_S+3}, v{m}",
              f"v_max3_f32 v{m}, v{V_S+4}, v{V_S+5}, v{m}", f"v_max3_f32 v{m}, v{V_S+6}, v{V_S+7}, v{m}"]
    L += ["s_add_u32 s90, s90, 1", "s_cmp_lt_u32 s90, 16", "s_cbranch_scc1 L_maxloop"]
    for n in range(5):
        m = MXR[n]
        L += [f"v_mov_b32 v4, v{m}", f"v_permlane16_swap_b32 v4, v{m}", f"v_max_f32 v{m}, v4, v{m}",
              f"v_mov_b32 v4, v{m}", f"v_permlane32_swap_b32 v4, v{m}", f"v_max_f32 v{m}, v4, v{m}"]
    MB = 155648
    L += ["v_lshlrev_b32 v4, 2, v0", f"s_mul_i32 s29, s{S_W}, 1280", "v_add_u32 v5, s29, v4", f"v_add_u32 v5, {MB}, v5", f"v_add_u32 v4, {MB}, v4"]
    for n in range(5): L.append(f"ds_write_b32 v5, v{MXR[n]} offset:{n*256}")
    L += ["s_waitcnt lgkmcnt(0)", "s_barrier"]
    for n in range(5):
        for w in range(4): L.append(f"ds_read_b32 v{V_S+w}, v4 offset:{w*1280+n*256}")
        L += ["s_waitcnt lgkmcnt(0)", f"v_max3_f32 v5, v{V_S}, v{V_S+1}, v{V_S+2}", f"v_max_f32 v5, v5, v{V_S+3}"]
        for r in range(4): L.append(f"v_sub_f32 v{V_NEGM+n*4+r}, 0, v5")
    L += k_dma(0) + v_dma(0) + ([] if late1 else k_dma(1) + v_dma(1))
    return L

def kernel(opt):
    st = opt.get("stamps")
    L = setup0(opt)
    if opt.get("stp"):
        L += [f"s_mov_b32 s{70+i}, 0" for i in range(20)]
    L += stampw(0, st)
    L += nonce_publish()
    L += ["L_restart:"]
    L += setup1()
    if opt.get("pt"):
        L += ["v_mov_b32 v4, 0", "s_mov_b64 exec, 1",
              f"buffer_load_dword v255, v4, s[{S_KSRD}:{S_KSRD+3}], 0 offen", f"buffer_load_dword v255, v4, s[{S_VSRD}:{S_VSRD+3}], 0 offen"]
        if opt["pt"] >= 2:
            L += [f"s_lshl_b32 s28, s{S_G}, 19", f"buffer_load_dword v255, v4, s[{S_WOSRD}:{S_WOSRD+3}], s28 offen"]
        if opt["pt"] >= 3:
            L += [f"s_mov_b32 s28, {WS_FLAG + 0x80000}", f"buffer_load_dword v255, v4, s[{S_WS}:{S_WS+3}], s28 offen",
                  f"s_mov_b32 s28, {0x2180000}", f"buffer_load_dword v255, v4, s[{S_WS}:{S_WS+3}], s28 offen",
                  f"s_mov_b32 s28, {0x2780000}", f"buffer_load_dword v255, v4, s[{S_WS}:{S_WS+3}], s28 offen"]
        L += ["s_mov_b64 exec, -1"]
    L += qp_dma(0)
    L += qp_lanebases()
    if not opt.get("addr_first", True): L += qp_dma(1)
    L += ring_addrs()
    for i in range(4): L += ["v_mov_b32 v1, 0x3f803f80", f"v_accvgpr_write_b32 a{A_ONE+i}, v1"]
    for i in range(20): L.append(f"v_mov_b32 v{V_NEGM+i}, 0")
    if opt.get("addr_first", True): L += qp_dma(1)
    L += stamp(1, st)
    L += qproj(opt)
    L += stamp(2, st)
    L += q_exchange(opt)
    S1, n1 = finalize(L)
    M = [f"s_cmp_eq_u32 s{S_MODE}, 0", "s_cbranch_scc1 L_attn"] + maxpass(opt.get('late1')) + ["L_attn:"] + pre_attn(opt.get('late1'), opt.get('latenonce', True))
    S1b, n1b = finalize(M)
    vmq = [("K", 0)]*8 + [("V", 0)]*8 + ([] if opt.get("late1") else [("K", 1)]*8 + [("V", 1)]*8)
    kr0 = k_reads(0); kr0[0].need_vm = [("K", 0)]
    body = PL(stampw(4, st)) + kr0 + build(opt)
    S2, _, _ = insert_waits(body, vm_outstanding=vmq)
    S2, n2 = check_hazards(S2)
    T = ["s_nop 7"] + stampw(5, st)
    T = PL(T) + PL(stage1(opt)) + stage2(opt) + PL(stage3(opt))
    E = []
    if st:
        E += ["s_memtime s[88:89]", "s_memrealtime s[90:91]", "s_waitcnt lgkmcnt(0)",
              "s_lshl_b32 s28, s2, 2", f"s_add_u32 s28, s28, s{S_W}", "s_lshl_b32 s28, s28, 6", f"s_add_u32 s28, s28, {WS_STAMP}", "v_mov_b32 v2, s28"]
        if MS[0]: E += ["s_mov_b32 s88, s86"]
        if STP[0]: E += ["s_mov_b32 s86, s88"]
        for k in range(9):
            E += [f"s_sub_u32 s29, s{72+2*k}, s{70+2*k}", "v_mov_b32 v3, s29", f"buffer_store_dword v3, v2, s[{S_WS}:{S_WS+3}], 0 offen offset:{4*k}", "s_nop 1"]
        for k, s in ((12, "s68"), (13, "s90")):
            E += [f"v_mov_b32 v3, {s}", f"buffer_store_dword v3, v2, s[{S_WS}:{S_WS+3}], 0 offen offset:{4*k}", "s_nop 1"]
    E += ["s_waitcnt vmcnt(0)", "s_endpgm", "L_fallback:", f"s_mov_b32 s{S_MODE}, 1", "s_waitcnt vmcnt(0) lgkmcnt(0)", "s_barrier", "s_branch L_restart", "L_end:", "s_endpgm"]
    S3, n3 = finalize(T + PL(E))
    print(f"; nops inserted {n1} {n1b} {n2} {n3}", file=sys.stderr)
    return emit(S1) + "\n" + emit(S1b) + "\n" + emit(S2) + "\n" + emit(S3) + "\n"

def gen(opt):
    mb.OPT["flags"] = opt.get("flags", ""); mb.OPT["rot"] = opt.get("rot", True); mb.OPT["share_off"] = opt.get("share_off", True)
    import sched as _s; _s.MERGE[0] = opt.get("merge", 0)
    MS[0] = (4, 5) if opt.get("mainstamps") else None
    STP[0] = opt.get("stp")
    hdr = open("standalone__gqa_block_cached__near_ridge.s.ref").read().split("; Override")[0]
    s = hdr + "; @launch grid=(256,1,1) block=(256,1,1) lds=163840\n"
    s += f'.amdgcn_target "amdgcn-amd-amdhsa--gfx950"\n.text\n.globl {KN}\n.p2align 8\n.type {KN},@function\n{KN}:\n'
    s += kernel(opt)
    s += footer(vgpr=512, accum=256, name=KN)
    return s

if __name__ == "__main__":
    for nm, o in {"a17": {"merge": 130}, "a16": {"merge": 130, "addr_first": False}}.items():
        open(nm + ".s", "w").write(gen(o))
        o2 = dict(o); o2["stamps"] = True
        open(nm + "_st.s", "w").write(gen(o2))
```

```python
import sys, struct, math
from asmlib import *
from sched import *
import maina2 as mb
from maina2 import *

KN = "standalone__gqa_block_cached__near_ridge_kernel"
CSCALE = struct.unpack("<I", struct.pack("<f", math.log2(math.e)/math.sqrt(128.0)))[0]

WS_QX   = 0x0000000
WS_PART = 0x0600000
WS_LP   = 0x1B00000
WS_OF   = 0x1C00000
WS_OUTP = 0x2200000
WS_FLAG = 0x2800000
WS_MX   = 0x2900000
WS_STAMP= 0x1400000 + 0x1800000
WS_SIZE = 0x4000000
FQ, FQB, F1, F1B, F2, FM, F3 = 0, 0x4000, 0x8000, 0xC000, 0x10000, 0x14000, 0x18000
S_W, S_B, S_C, S_G = 20, 21, 22, 23
S_MODE = 27
S_X, S_WQ, S_WS, S_OUT, S_DBG = 32, 36, 40, 56, 60
S_NONCE = 64
S_GRP = 65
S_ROT = 67
QP_W = [110592, 0, 57344, 110592]
QP_X = [143360, 32768, 90112, 143360]
QBUF = 131072
V_XD = 60; V_WQD = 65; V_WB = 69; V_XB = 56
V_QD = 84
QA = [164, 200]; QB = [172, 208]
V_QWA = (250, 251); V_QXA = (48, 52)
V_NONCE = 253

STP = [None]
def nst(name):
    if STP[0] and name in STP[0]:
        i = STP[0].index(name); return [f"s_memtime s[{70+2*i}:{71+2*i}]"]
    return []
MS = [None]
def stamp(i, on):
    if STP[0] is not None: return nst({0:'start',1:'setup',2:'qproj',3:'qx',4:'main0',5:'main1',6:'cw',7:'cr',8:'own'}[i])
    if MS[0]:
        if i == MS[0][0]: return ['s_memtime s[70:71]']
        if i == MS[0][1]: return ['s_memtime s[86:87]']
        return []
    return [f"s_memtime s[{70+2*i}:{71+2*i}]"] if on else []
def stampw(i, on):
    if STP[0] is not None:
        r = stamp(i, on)
        return r + ['s_waitcnt lgkmcnt(0)'] if r else []
    if MS[0]:
        r = stamp(i, on)
        return r + ["s_waitcnt lgkmcnt(0)"] if r else []
    return [f"s_memtime s[{70+2*i}:{71+2*i}]", "s_waitcnt lgkmcnt(0)"] if on else []

_uid = [0]
def uid():
    _uid[0] += 1; return _uid[0]

def setup0(opt):
    L = ["s_cmp_ge_u32 s2, 256", "s_cbranch_scc1 L_end",
         "s_load_dwordx8 s[4:11], s[0:1], 0", "s_load_dwordx4 s[44:47], s[0:1], 32", "s_load_dwordx4 s[48:51], s[0:1], 48"]
    if opt.get("stamps"): L += ["s_memrealtime s[68:69]"]
    L += ["v_lshrrev_b32 v1, 6, v0", "v_and_b32 v0, 63, v0", f"v_readfirstlane_b32 s{S_W}, v1",
          f"s_and_b32 s{S_G}, s2, 7", f"s_lshr_b32 s{S_C}, s2, 3", f"s_and_b32 s{S_C}, s{S_C}, 3", f"s_lshr_b32 s{S_B}, s2, 5",
          f"s_lshl_b32 s{S_GRP}, s{S_B}, 3", f"s_add_u32 s{S_GRP}, s{S_GRP}, s{S_G}",
          f"s_mov_b32 s{S_MODE}, 0", f"s_mov_b32 s{S_NONCE}, 0"]
    return L

def srd_first():
    L = ["s_waitcnt lgkmcnt(0)"]
    L += [f"s_mul_i32 s28, s{S_B}, 81920", f"s_add_u32 s{S_X}, s4, s28", f"s_addc_u32 s{S_X+1}, s5, 0", f"s_and_b32 s{S_X+1}, s{S_X+1}, 0xffff",
          f"s_mov_b32 s{S_X+2}, 81920", f"s_mov_b32 s{S_X+3}, 0x20000"]
    L += srd(S_WQ, 10, 512*4096*2)
    return L

def srd_rest():
    L = [f"s_lshl_b32 s28, s{S_GRP}, 19", f"s_lshl_b32 s29, s{S_W}, 17", "s_add_u32 s28, s28, s29"]
    L += ["s_add_u32 s12, s6, s28", "s_addc_u32 s13, s7, 0", "s_and_b32 s13, s13, 0xffff", "s_mov_b32 s14, 0x20000", "s_mov_b32 s15, 0x20000"]
    L += ["s_add_u32 s16, s8, s28", "s_addc_u32 s17, s9, 0", "s_and_b32 s17, s17, 0xffff", "s_mov_b32 s18, 0x20000", "s_mov_b32 s19, 0x20000"]
    L += srd(S_WS, 50, WS_SIZE) + srd(S_WOSRD, 44, 4096*512*2) + srd(S_OUT, 46, 8*80*512*2) + srd(S_DBG, 48, 256)
    return L

def setup1():
    L = ["v_and_b32 v2, 15, v0", "v_lshrrev_b32 v3, 4, v0", f"v_lshlrev_b32 v{V_L16}, 4, v0"]
    L += ["v_xor_b32 v4, v2, v3", f"s_lshl_b32 s28, s{S_W}, 4", "v_add_u32 v6, s28, v3"]
    for i in range(4):
        L += [f"v_xor_b32 v5, {4*i}, v4", "v_lshlrev_b32 v5, 4, v5", "v_lshl_add_u32 v5, v6, 10, v5", f"v_add_u32 v{V_XD+i}, {i*3072}, v5"]
    L += [f"s_lshl_b32 s28, s{S_W}, 2", "v_xor_b32 v5, s28, v4", "v_lshlrev_b32 v5, 4, v5", "s_add_u32 s28, s28, 64", "v_add_u32 v6, s28, v3", f"v_lshl_add_u32 v{V_XD+4}, v6, 10, v5"]
    L += [f"s_lshl_b32 s28, s{S_W}, 5", "v_add_u32 v4, s28, v3", "v_lshlrev_b32 v5, 2, v3", "v_xor_b32 v5, v5, v2", "v_lshlrev_b32 v5, 4, v5", "v_lshl_add_u32 v5, v4, 13, v5"]
    for i in range(4): L.append(f"v_add_u32 v{V_WQD+i}, {i*31744}, v5")
    L += [f"s_add_u32 s28, s{S_C}, s{S_B}", f"s_and_b32 s{S_ROT}, s28, 3", f"s_lshr_b32 s28, s{S_B}, 2", "s_lshl_b32 s90, s28, 17", "s_lshl_b32 s91, s28, 12"]
    L += [f"s_lshl_b32 s28, s{S_G}, 2", f"s_add_u32 s28, s28, s{S_C}", "s_lshl_b32 s31, s28, 8"]
    return L

def qp_dma(c):
    tag = ("C", c)
    L = [f"s_add_u32 s28, s{S_ROT}, {c}", "s_and_b32 s28, s28, 3", "s_lshl_b32 s29, s28, 8",
         f"s_lshl_b32 s30, s{S_W}, 12", f"s_add_u32 m0, s30, {QP_X[c]}"]
    for i in range(4): L.append(dma(f"v{V_XD+i}", f"s[{S_X}:{S_X+3}]", "s29", i*1024, tag))
    L += [f"s_lshl_b32 s30, s{S_W}, 10", f"s_add_u32 m0, s30, {QP_X[c] + 16384}"]
    L.append(dma(f"v{V_XD+4}", f"s[{S_X}:{S_X+3}]", "s29", 0, tag))
    L += ["s_lshl_b32 s29, s28, 20", "s_add_u32 s29, s29, s31", "s_add_u32 s28, s29, s90", f"s_lshl_b32 s30, s{S_W}, 13", f"s_add_u32 s30, s30, {QP_W[c]}", "s_add_u32 m0, s30, s91"]
    for i in range(4): L.append(dma(f"v{V_WQD+i}", f"s[{S_WQ}:{S_WQ+3}]", "s28", i*1024, tag))
    L += ["s_xor_b32 s28, s90, 131072", "s_add_u32 s28, s28, s29", "s_xor_b32 s29, s91, 4096", "s_add_u32 m0, s30, s29"]
    for i in range(4): L.append(dma(f"v{V_WQD+i}", f"s[{S_WQ}:{S_WQ+3}]", "s28", i*1024, tag))
    return L

def qp_lanebases():
    L = ["v_lshrrev_b32 v4, 2, v2", f"v_xor_b32 v5, s{S_W}, v4", "v_lshlrev_b32 v5, 6, v5", "v_lshl_add_u32 v6, v3, 3, v4", "v_lshl_add_u32 v5, v6, 8, v5",
         "v_and_b32 v6, 3, v0", f"v_lshl_add_u32 v{V_WB}, v6, 4, v5"]
    for ks in range(4):
        L += [f"v_add_u32 v5, {4*ks}, v3", "v_xor_b32 v5, v5, v2", "v_lshlrev_b32 v5, 4, v5", f"v_lshl_add_u32 v{V_XB+ks}, v2, 8, v5"]
    return L

def ring_addrs():
    L = [f"s_lshl_b32 s{S_M0K}, s{S_W}, 13"]
    L += ["v_xor_b32 v6, v2, v3"]
    for i in range(4):
        L += [f"v_xor_b32 v5, {4*i}, v6", "v_lshlrev_b32 v5, 4, v5", f"v_lshl_add_u32 v{V_KD+i}, v3, 8, v5"]
    for i in range(2):
        L += [f"v_add_u32 v5, {4*i}, v3", "v_lshlrev_b32 v5, 1, v5", "v_xor_b32 v5, v5, v2", "v_lshlrev_b32 v5, 4, v5", f"v_lshl_add_u32 v{V_VD+i}, v3, 8, v5"]
    for j in range(4):
        L += [f"v_add_u32 v5, {4*j}, v3", "v_xor_b32 v5, v5, v2", "v_lshlrev_b32 v5, 4, v5", "v_lshl_add_u32 v5, v2, 8, v5", f"v_add_u32 v{V_KA+j}, s{S_M0K}, v5"]
    L += ["v_lshrrev_b32 v4, 2, v2", "v_lshl_add_u32 v4, v3, 2, v4", "v_and_b32 v5, 7, v4", "v_lshlrev_b32 v5, 1, v5",
          "v_and_b32 v6, 3, v0", "v_lshrrev_b32 v6, 1, v6", "v_and_b32 v7, 1, v0", "v_lshlrev_b32 v7, 3, v7",
          "v_lshl_add_u32 v7, v4, 8, v7"]
    L += [f"s_lshl_b32 s28, s{S_W}, 2"]
    for ep in range(2):
        L += [f"s_add_u32 s29, s28, {2*ep}", "v_add_u32 v1, s29, v6", "v_xor_b32 v1, v1, v5", f"v_lshl_add_u32 v{V_WAX+ep}, v1, 4, v7"]
    L += [f"s_add_u32 s28, s{S_M0K}, 65536", "v_add_u32 v7, s28, v7"]
    for dt in range(8):
        L += [f"v_add_u32 v1, {2*dt}, v6", "v_xor_b32 v1, v1, v5", f"v_lshl_add_u32 v{V_VA+dt}, v1, 4, v7"]
    for i in range(4):
        L += [f"v_add_u32 v5, {4*(i&1)}, v3", "v_lshlrev_b32 v5, 1, v5", "v_xor_b32 v5, v5, v2", "v_lshlrev_b32 v5, 4, v5",
              f"v_add_u32 v6, {4*i}, v3", "v_lshl_add_u32 v5, v6, 10, v5", f"v_subrev_u32 v{V_WD+i}, {i*1024}, v5"]
    if mb.OPT.get("rot"):
        def order(j, ph):
            o = []; bounds = [0] + [x for x in range(ph, 16, 4) if x > 0] + [16]
            for a_, b_ in zip(bounds[:-1], bounds[1:]):
                n_ = b_ - a_
                o += [a_ + ((i + j) % n_) for i in range(n_)]
            return o
        L += [f"s_and_b32 s28, s{S_B}, 3", "s_lshl_b32 s28, s28, 2", f"s_add_u32 s28, s28, s{S_C}", f"s_mov_b32 s{S_TAB}, 0", f"s_mov_b32 s{S_TAB+1}, 0"]
        for ph in range(4):
            for j in range(4):
                o = order(j, ph); assert sorted(o) == list(range(16))
                lo = sum(v << (4*i) for i, v in enumerate(o[:8])); hi = sum(v << (4*i) for i, v in enumerate(o[8:]))
                L += [f"s_cmp_eq_u32 s28, {ph*4+j}", f"s_cselect_b32 s{S_TAB}, {hex(lo)}, s{S_TAB}", f"s_cselect_b32 s{S_TAB+1}, {hex(hi)}, s{S_TAB+1}"]
    L += [f"s_lshl_b32 s28, s{S_B}, 16", f"s_lshl_b32 s29, s{S_W}, 14", "s_add_u32 s28, s28, s29", f"s_lshl_b32 s29, s{S_G}, 19", "s_add_u32 s28, s28, s29",
          f"s_lshl_b32 s29, s{S_C}, 8", f"s_add_u32 s{S_PLOFF}, s28, s29", f"s_lshl_b32 s28, s{S_W}, 13", f"s_add_u32 s{S_PLM0}, s28, 131072"]
    for hr in range(4):
        L += [f"s_add_u32 s28, s{S_C}, {hr}", "s_and_b32 s28, s28, 3", "s_lshl_b32 s28, s28, 17", f"s_lshl_b32 s29, s{S_G}, 19", "s_add_u32 s28, s28, s29",
              f"s_lshl_b32 s29, s{S_C}, 8", "s_add_u32 s28, s28, s29", f"s_lshl_b32 s29, s{S_W}, 15", f"s_add_u32 s{S_WOB[hr]}, s28, s29"]
    return L

def qp_reads(c, ks):
    st = ks % 2; xa = V_QXA[c % 2] + ks; wa = V_QWA[c % 2]
    r = [P(f"ds_read_b128 {R('v', QB[st]+4*n, 4)}, v{xa} offset:{n*4096}") for n in range(5)]
    for e in range(2):
        for hh in range(2):
            r.append(P(f"ds_read_b64_tr_b16 {R('v', QA[st]+e*4+2*hh, 2)}, v{wa} offset:{ks*8192+hh*1024+e*8}"))
    return [r[5], r[6], r[0], r[7], r[8], r[1], r[2], r[3], r[4]]
def qp_addr(c):
    return PL([f"v_add_u32 v{V_QWA[c%2]}, {QP_W[c]}, v{V_WB}"] + [f"v_add_u32 v{V_QXA[c%2]+ks}, {QP_X[c]}, v{V_XB+ks}" for ks in range(4)])
def qp_mfmas(c, ks):
    r = []
    st = ks % 2
    for n in range(5):
        for e in range(2):
            d = R('v', V_QD+(e*5+n)*4, 4)
            cc = "0" if (c == 0 and ks == 0) else d
            r.append(P(f"v_mfma_f32_16x16x32_bf16 {d}, {R('v', QA[st]+e*4, 4)}, {R('v', QB[st]+4*n, 4)}, {cc}"))
    return r

def qproj(opt):
    mf = []; idx = {}
    for c in range(4):
        for ks in range(4):
            idx[(c, ks)] = len(mf); mf += qp_mfmas(c, ks)
    fixed = {}; rd = []; dm = []
    pre = [P("s_barrier", need_vm=[("C", 0)])] + qp_addr(0) + qp_reads(0, 0)
    order = [(c, ks) for c in range(4) for ks in range(4)]
    for gi in range(1, 16):
        c, ks = order[gi]; pc, pks = order[gi-1]
        start = idx[(pc, pks)]
        if ks == 0:
            fixed[start] = [P("s_waitcnt lgkmcnt(0)"), P("s_barrier", need_vm=[("C", c)])] + qp_addr(c)
        for k, ins in enumerate(qp_reads(c, ks)): rd.append(F(ins, start + k, idx[(c, ks)] - 1))
    def sched(items, start, end):
        n = sum(1 for i in items if i.kind in ("dma", "vmem"))
        step = max(1, (end - start) // max(n, 1))
        out = []; k = 0
        for ins in items:
            lo = min(start + k*step, end - 1)
            out.append(F(ins, lo, lo + step))
            if ins.kind in ("dma", "vmem"): k += 1
        return out
    dm += sched(PL(qp_dma(2)), idx[(0, 0)], idx[(0, 3)])
    dm += sched(PL(qp_dma(3)), idx[(0, 3)] + 1, idx[(1, 3)])
    nl = [] if opt.get("latenonce", True) else PL([f"s_lshl_b32 s28, s{S_B}, 5", "v_mov_b32 v254, s28", f"buffer_load_dword v{V_NONCE}, v254, s[{S_DBG}:{S_DBG+3}], 0 offen sc1"])
    dm += sched(nl + k_dma(0), idx[(1, 3)] + 1, idx[(2, 3)])
    dm += sched(v_dma(0), idx[(2, 3)] + 1, idx[(3, 3)] + 8)
    return pre + place(mf, [rd, dm], 8, fixed)

def nonce_publish():
    return [f"s_or_b32 s28, s{S_G}, s{S_C}", f"s_or_b32 s28, s28, s{S_W}", "s_cmp_eq_u32 s28, 0", "s_cbranch_scc0 L_not_leader",
            "s_memrealtime s[28:29]", "s_waitcnt lgkmcnt(0)", "s_or_b32 s28, s28, 1", "v_mov_b32 v5, s28", f"s_lshl_b32 s29, s{S_B}, 5", "v_mov_b32 v4, s29",
            f"buffer_store_dword v5, v4, s[{S_DBG}:{S_DBG+3}], 0 offen sc1", "L_not_leader:"]
def nonce_code(vreg=None):
    return [f"s_cmp_lg_u32 s{S_NONCE}, 0", "s_cbranch_scc1 L_have_nonce", f"v_readfirstlane_b32 s{S_NONCE}, v{vreg or V_NONCE}",
            f"s_cmp_lg_u32 s{S_NONCE}, 0", "s_cbranch_scc1 L_have_nonce",
            f"s_lshl_b32 s28, s{S_B}, 5", "v_mov_b32 v4, s28", "s_mov_b32 s29, 0", "L_nonce_poll:",
            f"buffer_load_dword v5, v4, s[{S_DBG}:{S_DBG+3}], 0 offen sc1", "s_waitcnt vmcnt(0)", f"v_readfirstlane_b32 s{S_NONCE}, v5",
            f"s_cmp_lg_u32 s{S_NONCE}, 0", "s_cbranch_scc1 L_have_nonce", "s_add_u32 s29, s29, 1", "s_cmp_lt_u32 s29, 0x40000", "s_cbranch_scc0 L_have_nonce",
            "s_sleep 2", "s_branch L_nonce_poll", "L_have_nonce:"]

def wave_flag(addr_s, payload):
    return [f"v_mov_b32 v4, s{addr_s}", f"v_mov_b32 v6, s{S_NONCE}", f"v_mov_b32 v7, {payload}", "s_mov_b64 exec, 1",
            f"buffer_store_dwordx2 v[6:7], v4, s[{S_WS}:{S_WS+3}], 0 offen sc1", "s_mov_b64 exec, -1"]
def poll(base_s, mask, shift=3, lane_off=0):
    u = uid()
    return [f"v_and_b32 v4, {mask}, v0", f"v_lshlrev_b32 v4, {shift}, v4", f"v_add_u32 v4, s{base_s}, v4", "s_mov_b32 s29, 0", f"L_pf{u}:",
            f"buffer_load_dwordx2 v[6:7], v4, s[{S_WS}:{S_WS+3}], 0 offen sc1", "s_waitcnt vmcnt(0)",
            f"v_cmp_ne_u32 vcc, s{S_NONCE}, v6", f"s_cbranch_vccz L_pf{u}_ok", "s_add_u32 s29, s29, 1", "s_cmp_lt_u32 s29, 0x40000",
            f"s_cbranch_scc1 L_pf{u}", f"L_pf{u}_ok:"]
def flagline(area_a, area_b=None):
    L = [f"s_lshl_b32 s30, s{S_GRP}, 7", f"s_add_u32 s30, s30, {WS_FLAG}"]
    if area_b is None: L += [f"s_add_u32 s30, s30, {area_a}"] if area_a else []
    else: L += [f"s_mul_i32 s29, s{S_MODE}, {area_b - area_a}", "s_add_u32 s30, s30, s29"] + ([f"s_add_u32 s30, s30, {area_a}"] if area_a else [])
    return L

def q_exchange(opt):
    st = opt.get("stamps")
    L = ["s_waitcnt lgkmcnt(0)", "s_barrier"]
    if not opt.get("late1"): L += k_dma(1)
    L += [f"s_mov_b32 s29, {hex(CSCALE)}", f"s_lshl_b32 s28, s{S_W}, 10", f"v_add_u32 v4, s28, v{V_L16}", f"v_add_u32 v4, {QBUF}, v4"]
    for n in range(5):
        d0 = V_QD + n*4; d1 = V_QD + (5+n)*4
        for r in range(4): L += [f"v_mul_f32 v{d0+r}, s29, v{d0+r}", f"v_mul_f32 v{d1+r}, s29, v{d1+r}"]
        t = 164 + n*4
        L += [f"v_cvt_pk_bf16_f32 v{t}, v{d0}, v{d0+1}", f"v_cvt_pk_bf16_f32 v{t+1}, v{d0+2}, v{d0+3}",
              f"v_cvt_pk_bf16_f32 v{t+2}, v{d1}, v{d1+1}", f"v_cvt_pk_bf16_f32 v{t+3}, v{d1+2}, v{d1+3}",
              f"ds_write_b128 v4, v[{t}:{t+3}] offset:{n*4096}"]
    if not opt.get("late1"): L += v_dma(1)
    L += ["s_waitcnt lgkmcnt(0)", "s_barrier"]
    L += stamp(3, st)
    L += [f"v_add_u32 v4, {QBUF}, v{V_L16}"]
    for n in range(5):
        for j in range(4): L.append(f"ds_read_b128 {Qf(n, j)}, v4 offset:{(n*4+j)*1024}")
    return L

def selector(base):
    return ["v_lshrrev_b32 v4, 2, v2", "v_cmp_eq_u32 vcc, v4, v3", "v_and_b32 v5, 1, v0", "v_lshlrev_b32 v5, 4, v5", "v_mov_b32 v6, 0x3f80", "v_lshlrev_b32 v6, v5, v6",
            "v_cndmask_b32 v6, 0, v6, vcc", "v_and_b32 v5, 2, v0", "v_cmp_eq_u32 vcc, 0, v5",
            f"v_cndmask_b32 v{base}, 0, v6, vcc", f"v_cndmask_b32 v{base+1}, v6, 0, vcc",
            f"v_mov_b32 v{base+2}, 0", f"v_mov_b32 v{base+3}, 0", f"v_mov_b32 v{base+4}, 0", f"v_mov_b32 v{base+5}, 0",
            f"v_mov_b32 v{base+6}, v{base}", f"v_mov_b32 v{base+7}, v{base+1}"]

CBUF = 0
CL = 81920
OLOC = [65536, 86016, 106496, 126976]
def pre_attn(late1=False, latenonce=True):
    L = [] if latenonce else ["s_waitcnt vmcnt(16)" if late1 else "s_waitcnt vmcnt(32)"] + nonce_code()
    L += [f"v_add_u32 v{V_CW}, s{S_M0K}, v{V_L16}", "v_lshlrev_b32 v4, 2, v0", f"s_add_u32 s28, s{S_M0K}, {65536+4096}", f"v_add_u32 v{V_CLW}, s28, v4"]
    return L

def stage1(opt):
    st = opt.get("stamps")
    L = [f"v_add_u32 v44, 0x10000, v{V_CW}"]
    if opt.get("latenonce", True):
        L += [f"s_lshl_b32 s28, s{S_B}, 5", "v_mov_b32 v83, s28", f"buffer_load_dword v82, v83, s[{S_DBG}:{S_DBG+3}], 0 offen sc1"]
    L += combine_writes(4)
    if not opt.get("early", True):
        for n in range(4): L += combine_writes(n)
    L += wo_dma(0)
    L += selector(48)
    L += [f"s_lshl_b32 s28, s{S_W}, 10", f"v_add_u32 v5, s28, v{V_L16}", f"v_add_u32 v45, 0x10000, v5", "v_lshlrev_b32 v6, 2, v0", f"v_add_u32 v6, {65536+4096}, v6"]
    L += ["s_waitcnt lgkmcnt(0)", "s_barrier"]
    L += stamp(6, st)
    PB = V_O
    DB = 164
    rd = []
    for n in range(5):
        for s_ in range(4):
            q0 = n*4
            addr = CREG[n >> 1] + s_*8192 + (n & 1)*4096
            rd.append(P(f"ds_read_b128 v[{PB+(n*4+s_)*4}:{PB+(n*4+s_)*4+3}], v{5 if addr < 65536 else 45} offset:{addr & 0xffff}"))
    lr = [P(f"ds_read_b32 v{56+4*n+s_}, v6 offset:{s_*8192+n*256}") for n in range(5) for s_ in range(4)]
    mf = []
    for n in range(5):
        for s_ in range(4):
            q = f"v[{PB+(n*4+s_)*4}:{PB+(n*4+s_)*4+3}]"
            mf += [P(f"v_mfma_f32_16x16x32_bf16 v[{DB+n*8}:{DB+n*8+3}], v[48:51], {q}, {'0' if s_ == 0 else f'v[{DB+n*8}:{DB+n*8+3}]'}"),
                   P(f"v_mfma_f32_16x16x32_bf16 v[{DB+n*8+4}:{DB+n*8+7}], v[52:55], {q}, {'0' if s_ == 0 else f'v[{DB+n*8+4}:{DB+n*8+7}]'}")]
    va = []
    for n in range(5):
        l = 56 + 4*n
        va += PL([f"v_add_f32 v{l}, v{l}, v{l+1}", f"v_add_f32 v{l+2}, v{l+2}, v{l+3}", f"v_add_f32 v{l}, v{l}, v{l+2}"])
    L += rd[:8]
    ch_rd = [F(rd[i], max(0, 2*(i-8)), 2*i - 6) for i in range(8, 20)]
    ch_lr = [F(x, 4 + i//2, 16) for i, x in enumerate(lr)]
    ch_va = [F(x, 18 + i, 38) for i, x in enumerate(va)]
    w1 = wo_dma(1)
    ch_w = []; kk = 0
    for ins in w1:
        ch_w.append(F(ins, 2 + kk*4, 39))
        if ins.kind == "dma": kk += 1
    L += place(mf, [ch_rd, ch_lr, ch_va, ch_w], 8)
    L += ["s_mov_b32 s29, 0x21800000", "s_mov_b32 s30, 0x5d800000", "s_mov_b64 s[90:91], 0"]
    for n in range(5):
        L += [f"v_cmp_nge_f32 vcc, v{56+4*n}, s29", "s_or_b64 s[90:91], s[90:91], vcc", f"v_cmp_nle_f32 vcc, v{56+4*n}, s30", "s_or_b64 s[90:91], s[90:91], vcc"]
    L += ["s_cmp_lg_u64 s[90:91], 0", "s_cselect_b32 s31, 1, 0", f"s_cmp_eq_u32 s{S_MODE}, 0", "s_cselect_b32 s31, s31, 0", "s_cmp_lg_u32 s31, 0", "s_cbranch_scc1 L_fallback"]
    for n in range(5): L.append(f"v_rcp_f32 v{56+4*n}, v{56+4*n}")
    DB = 164
    L += [f"s_lshl_b32 s28, s{S_W}, 10", f"v_add_u32 v44, s28, v{V_L16}", f"v_add_u32 v44, {OLOC[0]}, v44", f"s_lshl_b32 s29, s{S_GRP}, 2", f"s_add_u32 s29, s29, s{S_C}", "s_mul_i32 s29, s29, 20480",
          "s_add_u32 s93, s29, s28", f"s_add_u32 s93, s93, {WS_OF}"]
    L += ["s_barrier"]
    L += stamp(7, st)
    st_ = []; dw = []
    for n in range(5):
        l = 56 + 4*n; d = DB + n*8
        for r in range(8): L.append(f"v_mul_f32 v{d+r}, v{d+r}, v{l}")
        L += [f"v_cvt_pk_bf16_f32 v{d}, v{d}, v{d+1}", f"v_cvt_pk_bf16_f32 v{d+1}, v{d+2}, v{d+3}",
              f"v_cvt_pk_bf16_f32 v{d+2}, v{d+4}, v{d+5}", f"v_cvt_pk_bf16_f32 v{d+3}, v{d+6}, v{d+7}",
              f"s_add_u32 s30, s93, {n*4096}", f"buffer_store_dwordx4 v[{d}:{d+3}], v{V_L16}, s[{S_WS}:{S_WS+3}], s30 offen sc1"]
        dw.append(f"ds_write_b128 v44, v[{d}:{d+3}] offset:{n*4096}")
    L += dw
    L += wo_dma(2) + wo_dma(3)
    return L

def s2_chunk(hr, nbase):
    reads = []; mfs = []
    for j in range(4):
        for n in range(5):
            addr = OLOC[hr] + (n*4+j)*1024
            breg = 28 + ((nbase + j*5 + n) % 12)*4
            reads.append(P(f"ds_read_b128 v[{breg}:{breg+3}], v{248 + (addr >> 16)} offset:{addr & 0xffff}"))
            for ep in range(2):
                d = R('v', V_O + (ep*5+n)*4, 4)
                c = "0" if (hr == 0 and j == 0) else d
                a = A_WO[hr] + (j*2+ep)*4
                mfs.append(P(f"v_mfma_f32_16x16x32_bf16 {d}, a[{a}:{a+3}], v[{breg}:{breg+3}], {c}"))
    return reads, mfs
def s2_dma(hr):
    L = PL([f"s_add_u32 s29, s{S_C}, {hr}", "s_and_b32 s29, s29, 3", "s_mul_i32 s29, s29, 20480", "s_add_u32 s29, s29, s93", f"s_add_u32 m0, s31, {OLOC[hr]}"])
    for i in range(4): L.append(dma(f"v{V_L16}", f"s[{S_WS}:{S_WS+3}]", "s29", i*1024, ("P", hr), "sc1"))
    L += PL(["s_add_u32 s29, s29, 4096", f"s_add_u32 m0, s31, {OLOC[hr]+4096}"])
    L.append(dma(f"v{V_L16}", f"s[{S_WS}:{S_WS+3}]", "s29", 0, ("P", hr), "sc1"))
    return L

def stage2(opt):
    st = opt.get("stamps")
    L = flagline(F2)
    L += [f"s_lshl_b32 s28, s{S_C}, 2", f"s_add_u32 s28, s28, s{S_W}", "s_lshl_b32 s28, s28, 3", "s_add_u32 s31, s30, s28"]
    L += [f"v_add_u32 v76, 0x10000, v{V_WAX}", f"v_add_u32 v77, 0x10000, v{V_WAX+1}", f"v_add_u32 v78, 0x20000, v{V_WAX}", f"v_add_u32 v79, 0x20000, v{V_WAX+1}"]
    L += ["s_waitcnt vmcnt(16)"] + (nonce_code(82) if opt.get("latenonce", True) else []) + wave_flag(31, 0)
    L += ["s_waitcnt lgkmcnt(0)", "s_barrier"]
    L += [f"v_mov_b32 v248, v{V_L16}", f"v_add_u32 v249, 0x10000, v{V_L16}", f"v_add_u32 v250, 0x20000, v{V_L16}"]
    L = PL(L)
    regs_ = {0: V_WAX, 0x10000: 76, 0x20000: 78}
    L += wo_frag_reads(0, regs_) + wo_frag_reads(1, regs_)
    r0, m0 = s2_chunk(0, 0)
    AH = 6
    L += r0[:AH] + place(m0, [[F(r0[i], 2*(i-AH), 2*i - 4) for i in range(AH, 20)]], 8)
    L += PL(stamp(8, st))
    L += PL(poll(30, 15))
    L += PL(nst("poll2"))
    L += PL(["s_waitcnt lgkmcnt(0)", "s_barrier"])
    L += PL([f"s_mul_i32 s31, s{S_W}, 5120", f"s_mul_i32 s93, s{S_GRP}, 81920", "s_add_u32 s93, s93, s31", f"s_add_u32 s93, s93, {WS_OF}"])
    L += s2_dma(1) + s2_dma(2)
    w23 = wo_frag_reads(2, regs_) + wo_frag_reads(3, regs_)
    L += w23[:16]
    mf = []; idx = {}; rdch = []; dm = []; fixed = {}
    nb = 20
    for hr in (1, 2, 3):
        idx[hr] = len(mf)
        r, m = s2_chunk(hr, nb); nb += 20
        fixed[idx[hr]] = [P("s_barrier", need_vm=[("P", hr)])] + r[:AH]
        for i in range(AH, 20): rdch.append(F(r[i], idx[hr] + 2*(i-AH), idx[hr] + 2*i - 4))
        mf += m
    kk = 0
    for ins in s2_dma(3):
        lo = idx[1] + 2 + kk*6
        dm.append(F(ins, lo, lo + 6))
        if ins.kind == "dma": kk += 1
    wch = [F(x, idx[1] + 4 + 2*i, idx[2] + 20) for i, x in enumerate(w23[16:])]
    L += place(mf, [rdch, dm, wch], 8, fixed)
    L += PL(nst("gemm2"))
    T = [f"s_lshl_b32 s28, s{S_B}, 2", f"s_add_u32 s28, s28, s{S_C}", "s_mul_i32 s28, s28, 20", f"s_mul_i32 s29, s{S_W}, 5", "s_add_u32 s28, s28, s29",
         "s_lshl_b32 s28, s28, 3", f"s_add_u32 s28, s28, s{S_G}", "s_lshl_b32 s28, s28, 10", f"s_add_u32 s28, s28, {WS_OUTP}"]
    for n in range(5):
        a = V_O + n*4; b = V_O + (5+n)*4
        t = 28 + n*4
        T += [f"v_cvt_pk_bf16_f32 v{t}, v{a}, v{a+1}", f"v_cvt_pk_bf16_f32 v{t+1}, v{a+2}, v{a+3}",
              f"v_cvt_pk_bf16_f32 v{t+2}, v{b}, v{b+1}", f"v_cvt_pk_bf16_f32 v{t+3}, v{b+2}, v{b+3}",
              f"s_add_u32 s29, s28, {n*8192}", f"buffer_store_dwordx4 v[{t}:{t+3}], v{V_L16}, s[{S_WS}:{S_WS+3}], s29 offen sc1"]
    return L + PL(T)

def stage3(opt):
    L = [f"s_lshl_b32 s28, s{S_B}, 2", f"s_add_u32 s28, s28, s{S_C}", "s_mov_b32 s67, s28", "s_lshl_b32 s28, s28, 2", f"s_add_u32 s29, s28, s{S_W}", "s_lshl_b32 s29, s29, 6",
         f"s_add_u32 s29, s29, {WS_FLAG+F3}", f"s_lshl_b32 s30, s{S_G}, 3", "s_add_u32 s31, s29, s30"]
    L += selector(48)
    L += ["s_waitcnt vmcnt(0)"] + wave_flag(31, 0) + nst("flag3")
    L += [f"s_lshl_b32 s28, s{S_G}, 2", f"s_add_u32 s28, s28, s{S_W}", "s_cmp_lt_u32 s28, 20", "s_cbranch_scc0 L_done", "s_mov_b32 s65, s28",
          "s_mul_i32 s28, s65, 52", "s_lshr_b32 s92, s28, 8",
          "s_lshl_b32 s28, s67, 2", "s_add_u32 s28, s28, s92", "s_lshl_b32 s28, s28, 6", f"s_add_u32 s31, s28, {WS_FLAG+F3}"]
    L += poll(31, 7) + nst("poll3")
    L += ["s_mul_i32 s29, s67, 20", "s_add_u32 s29, s29, s65", "s_lshl_b32 s29, s29, 13", f"s_add_u32 s29, s29, {WS_OUTP}", "s_add_u32 s30, s29, 4096"]
    for gp in range(8):
        L.append(f"buffer_load_dwordx4 v[{84+4*gp}:{87+4*gp}], v{V_L16}, s[{S_WS}:{S_WS+3}], s{29 if gp < 4 else 30} offen offset:{(gp&3)*1024} sc1")
    for gp in range(8):
        L += [f"v_mfma_f32_16x16x32_bf16 v[60:63], v[48:51], v[{84+4*gp}:{87+4*gp}], {'0' if gp == 0 else 'v[60:63]'}",
              f"v_mfma_f32_16x16x32_bf16 v[64:67], v[52:55], v[{84+4*gp}:{87+4*gp}], {'0' if gp == 0 else 'v[64:67]'}"]
    L += ["s_mul_i32 s29, s92, 5", "s_sub_u32 s29, s65, s29",
          "s_lshl_b32 s29, s29, 14", "s_lshl_b32 s28, s92, 6", "s_add_u32 s28, s28, s29", f"s_lshl_b32 s29, s{S_C}, 8", "s_add_u32 s28, s28, s29",
          f"s_mul_i32 s29, s{S_B}, 81920", "s_add_u32 s28, s28, s29", "v_lshlrev_b32 v4, 10, v2", "v_lshl_add_u32 v4, v3, 3, v4"]
    L += ["v_cvt_pk_bf16_f32 v68, v60, v61", "v_cvt_pk_bf16_f32 v69, v62, v63", "v_cvt_pk_bf16_f32 v70, v64, v65", "v_cvt_pk_bf16_f32 v71, v66, v67",
          f"buffer_store_dwordx2 v[68:69], v4, s[{S_OUT}:{S_OUT+3}], s28 offen", f"buffer_store_dwordx2 v[70:71], v4, s[{S_OUT}:{S_OUT+3}], s28 offen offset:32"]
    L += ["L_done:"]
    return L

def maxpass(late1=False):
    L = ["s_waitcnt vmcnt(0) lgkmcnt(0)", "s_barrier"]
    MXR = [76, 77, 78, 79, 80]
    for n in range(5): L.append(f"v_mov_b32 v{MXR[n]}, 0xff800000")
    L += ["s_mov_b32 s90, 0", "L_maxloop:", f"s_lshl_b32 s{S_KOFF}, s90, 13", f"s_add_u32 s{S_KOFF2}, s{S_KOFF}, 4096"]
    for half in range(2):
        L.append(f"s_add_u32 m0, s{S_M0K}, {half*4096}")
        for i in range(4): L.append(dma(f"v{V_KD+i}", f"s[{S_KSRD}:{S_KSRD+3}]", f"s{S_KOFF if half == 0 else S_KOFF2}", i*1024, ("X", 0)))
    L += ["s_waitcnt vmcnt(0)"]
    L += k_reads(0)
    L += ["s_waitcnt lgkmcnt(0)"]
    for n in range(5):
        for s in range(2):
            for j in range(4):
                d = R("v", V_S + s*4, 4)
                L.append(mfma16(d, Kf(s, j), Qf(n, j), "0" if j == 0 else d))
        m = MXR[n]
        L += [f"v_max3_f32 v{m}, v{V_S}, v{V_S+1}, v{m}", f"v_max3_f32 v{m}, v{V_S+2}, v{V_S+3}, v{m}",
              f"v_max3_f32 v{m}, v{V_S+4}, v{V_S+5}, v{m}", f"v_max3_f32 v{m}, v{V_S+6}, v{V_S+7}, v{m}"]
    L += ["s_add_u32 s90, s90, 1", "s_cmp_lt_u32 s90, 16", "s_cbranch_scc1 L_maxloop"]
    for n in range(5):
        m = MXR[n]
        L += [f"v_mov_b32 v4, v{m}", f"v_permlane16_swap_b32 v4, v{m}", f"v_max_f32 v{m}, v4, v{m}",
              f"v_mov_b32 v4, v{m}", f"v_permlane32_swap_b32 v4, v{m}", f"v_max_f32 v{m}, v4, v{m}"]
    MB = 155648
    L += ["v_lshlrev_b32 v4, 2, v0", f"s_mul_i32 s29, s{S_W}, 1280", "v_add_u32 v5, s29, v4", f"v_add_u32 v5, {MB}, v5", f"v_add_u32 v4, {MB}, v4"]
    for n in range(5): L.append(f"ds_write_b32 v5, v{MXR[n]} offset:{n*256}")
    L += ["s_waitcnt lgkmcnt(0)", "s_barrier"]
    for n in range(5):
        for w in range(4): L.append(f"ds_read_b32 v{V_S+w}, v4 offset:{w*1280+n*256}")
        L += ["s_waitcnt lgkmcnt(0)", f"v_max3_f32 v5, v{V_S}, v{V_S+1}, v{V_S+2}", f"v_max_f32 v5, v5, v{V_S+3}"]
        for r in range(4): L.append(f"v_sub_f32 v{V_NEGM+n*4+r}, 0, v5")
    L += k_dma(0) + v_dma(0) + ([] if late1 else k_dma(1) + v_dma(1))
    return L

def kernel(opt):
    st = opt.get("stamps")
    L = setup0(opt)
    if opt.get("stp"):
        L += [f"s_mov_b32 s{70+i}, 0" for i in range(20)]
    L += ["L_restart:"]
    L += setup1()
    L += srd_first()
    L += stampw(0, st)
    L += qp_dma(0)
    L += srd_rest()
    L += [f"s_cmp_eq_u32 s{S_MODE}, 0", "s_cbranch_scc0 L_not_leader"] + nonce_publish()
    L += qp_lanebases()
    if not opt.get("addr_first", True): L += qp_dma(1)
    L += ring_addrs()
    for i in range(4): L += ["v_mov_b32 v1, 0x3f803f80", f"v_accvgpr_write_b32 a{A_ONE+i}, v1"]
    for i in range(20): L.append(f"v_mov_b32 v{V_NEGM+i}, 0")
    if opt.get("addr_first", True): L += qp_dma(1)
    L += stamp(1, st)
    L += qproj(opt)
    L += stamp(2, st)
    L += q_exchange(opt)
    S1, n1 = finalize(L)
    M = [f"s_cmp_eq_u32 s{S_MODE}, 0", "s_cbranch_scc1 L_attn"] + maxpass(opt.get('late1')) + ["L_attn:"] + pre_attn(opt.get('late1'), opt.get('latenonce', True))
    S1b, n1b = finalize(M)
    vmq = [("K", 0)]*8 + [("V", 0)]*8 + ([] if opt.get("late1") else [("K", 1)]*8 + [("V", 1)]*8)
    kr0 = k_reads(0); kr0[0].need_vm = [("K", 0)]
    body = PL(stampw(4, st)) + kr0 + build(opt)
    S2, _, _ = insert_waits(body, vm_outstanding=vmq)
    S2, n2 = check_hazards(S2)
    T = ["s_nop 7"] + stampw(5, st)
    T = PL(T) + PL(stage1(opt)) + stage2(opt) + PL(stage3(opt))
    E = []
    if st:
        E += ["s_memtime s[88:89]", "s_memrealtime s[90:91]", "s_waitcnt lgkmcnt(0)",
              "s_lshl_b32 s28, s2, 2", f"s_add_u32 s28, s28, s{S_W}", "s_lshl_b32 s28, s28, 6", f"s_add_u32 s28, s28, {WS_STAMP}", "v_mov_b32 v2, s28"]
        if MS[0]: E += ["s_mov_b32 s88, s86"]
        if STP[0]: E += ["s_mov_b32 s86, s88"]
        for k in range(9):
            E += [f"s_sub_u32 s29, s{72+2*k}, s{70+2*k}", "v_mov_b32 v3, s29", f"buffer_store_dword v3, v2, s[{S_WS}:{S_WS+3}], 0 offen offset:{4*k}", "s_nop 1"]
        for k, s in ((12, "s68"), (13, "s90")):
            E += [f"v_mov_b32 v3, {s}", f"buffer_store_dword v3, v2, s[{S_WS}:{S_WS+3}], 0 offen offset:{4*k}", "s_nop 1"]
    E += ["s_waitcnt vmcnt(0)", "s_endpgm", "L_fallback:", f"s_mov_b32 s{S_MODE}, 1", "s_waitcnt vmcnt(0) lgkmcnt(0)", "s_barrier", "s_branch L_restart", "L_end:", "s_endpgm"]
    S3, n3 = finalize(T + PL(E))
    print(f"; nops inserted {n1} {n1b} {n2} {n3}", file=sys.stderr)
    return emit(S1) + "\n" + emit(S1b) + "\n" + emit(S2) + "\n" + emit(S3) + "\n"

def gen(opt):
    mb.OPT["flags"] = opt.get("flags", ""); mb.OPT["rot"] = opt.get("rot", True); mb.OPT["share_off"] = opt.get("share_off", True)
    import sched as _s; _s.MERGE[0] = opt.get("merge", 0)
    MS[0] = (4, 5) if opt.get("mainstamps") else None
    STP[0] = opt.get("stp")
    hdr = open("standalone__gqa_block_cached__near_ridge.s.ref").read().split("; Override")[0]
    s = hdr + "; @launch grid=(256,1,1) block=(256,1,1) lds=163840\n"
    s += f'.amdgcn_target "amdgcn-amd-amdhsa--gfx950"\n.text\n.globl {KN}\n.p2align 8\n.type {KN},@function\n{KN}:\n'
    s += kernel(opt)
    s += footer(vgpr=512, accum=256, name=KN)
    return s

if __name__ == "__main__":
    for nm, o in {"a18": {"merge": 130}}.items():
        open(nm + ".s", "w").write(gen(o))
        o2 = dict(o); o2["stamps"] = True
        open(nm + "_st.s", "w").write(gen(o2))
```
